```python
import torch

def _softmax(x, axis=-1):
    return torch.softmax(x, dim=axis)

def _gelu(x):
    return torch.nn.functional.gelu(x, approximate='tanh')

def _silu(x):
    return torch.nn.functional.silu(x)

def _sigmoid(x):
    return torch.sigmoid(x)

def _layernorm(x, axis=-1, eps=1e-05):
    m = x.mean(dim=axis, keepdim=True)
    v = x.var(dim=axis, keepdim=True, unbiased=False)
    return (x - m) / torch.sqrt(v + eps)

def _scatter_add(tgt, idx, src, axis=0):
    return tgt.clone().index_add_(axis, idx, src)

def _segment_sum(src, seg, n):
    out = torch.zeros((n,) + src.shape[1:], dtype=src.dtype)
    return out.index_add_(0, seg, src)

def _pad(x, pw):
    flat = tuple((v for pair in reversed(pw) for v in pair))
    return torch.nn.functional.pad(x, flat)
kernel_name = 'standalone__tensor_product_equiv_mace__graph'

def setup_inputs():

    _w = lambda a: (lambda t: t.to(torch.bfloat16) if t.is_floating_point() else t)(torch.as_tensor(a))
    N, deg = (10000, 16)
    Lmax, C, De = (1, 256, 16)
    M = (Lmax + 1) ** 2
    E = N * deg
    src = (lambda lo, hi, *s: torch.randint(lo, hi, s))(0, N, E).to(torch.int64)
    dst = (lambda lo, hi, *s: torch.randint(lo, hi, s))(0, N, E).to(torch.int64)
    r = (lambda *s: torch.randn(*s, dtype=torch.bfloat16) * 0.05)(E, 3).to(float)
    r = r / (torch.linalg.norm(r, dim=-1, keepdim=True).to(float) + 1e-06)
    rx, ry, rz = (r[:, 0].clone(), r[:, 1].clone(), r[:, 2].clone())
    x2, y2, z2 = (rx * rx, ry * ry, rz * rz)
    sh_list = [torch.ones_like(rx), rx, ry, rz, rx * ry, ry * rz, 2.0 * z2 - x2 - y2, rx * rz, x2 - y2, ry * (3.0 * x2 - y2), rx * ry * rz, ry * (4.0 * z2 - x2 - y2), rz * (2.0 * z2 - 3.0 * x2 - 3.0 * y2), rx * (4.0 * z2 - x2 - y2), rz * (x2 - y2), rx * (x2 - 3.0 * y2)]
    sh16 = torch.stack(sh_list, dim=-1).to(float)
    pad = max(0, M - 16)
    sh_full = torch.cat([sh16, torch.zeros((E, pad), dtype=float)], dim=-1)[:, :M]
    cg = ((lambda *s: torch.randn(*s, dtype=torch.bfloat16) * 0.05)(M, M, M) * (1.0 / float(M))).to(float)
    return {'x': _w(((lambda *s: torch.randn(*s, dtype=torch.bfloat16) * 0.05)(N, M, C) * 0.3).to(float)), 'src': _w(src), 'dst': _w(dst), 'sh': _w(sh_full.to(float)), 'edge_attr': _w(((lambda *s: torch.randn(*s, dtype=torch.bfloat16) * 0.05)(E, De) * 0.3).to(float)), 'cg': _w(cg), 'w_r': _w(((lambda *s: torch.randn(*s, dtype=torch.bfloat16) * 0.05)(De, C) * (1.0 / float(De) ** 0.5)).to(float)), 'w_out': _w(((lambda *s: torch.randn(*s, dtype=torch.bfloat16) * 0.05)(C, C) * (1.0 / float(C) ** 0.5)).to(float))}

def reference(x, src, dst, sh, edge_attr, cg, w_r, w_out):
    N = x.shape[0]
    M = x.shape[1]
    C = x.shape[2]
    h = x[src]
    tp = torch.einsum('uvw,euc,ev->ewc', cg, h, sh)
    rw = edge_attr @ w_r
    msg = tp * rw[:, None, :]
    msg2 = msg.reshape(-1, M * C)
    agg = _segment_sum(msg2, dst, N).reshape(N, M, C)
    out = torch.einsum('nmc,cd->nmd', agg, w_out)
    return out
```

```python
HEADER = """; Kernarg layout for this problem (88 bytes, ptrs only, base s[0:1]):
"""

class Asm:
    def __init__(self):
        self.lines = []
        self.kernels = []
        self.launches = []
    def __call__(self, s):
        for l in s.split('\n'):
            self.lines.append(l)
    def begin_kernel(self, name):
        self.lines.append(f".globl {name}")
        self.lines.append(".p2align 8")
        self.lines.append(f".type {name},@function")
        self.lines.append(f"{name}:")
    def end_kernel(self, name, vgpr, sgpr, accum=None):
        if accum is None:
            accum = (vgpr + 3) // 4 * 4
        self.kernels.append((name, vgpr, sgpr, accum))
    def launch(self, name, grid, block, lds=0):
        self.launches.append((name, grid, block, lds))
    def srd(self, d, lo, hi, nbytes):
        self(f"s_mov_b32 s{d}, s{lo}")
        self(f"s_and_b32 s{d+1}, s{hi}, 0xffff")
        self(f"s_mov_b32 s{d+2}, {nbytes}")
        self(f"s_mov_b32 s{d+3}, 0x00020000")
    def text(self):
        out = HEADER
        for (name, grid, block, lds) in self.launches:
            out += f"; @launch kernel={name} grid=({grid},1,1) block=({block},1,1) lds={lds}\n"
        out += '.amdgcn_target "amdgcn-amd-amdhsa--gfx950"\n.text\n'
        for l in self.lines:
            ls = l.strip()
            if not ls:
                continue
            if ls.endswith(':') or ls.startswith('.'):
                out += ls + "\n"
            else:
                out += "    " + ls + "\n"
        out += '.section .rodata,"a"\n'
        for (name, vgpr, sgpr, accum) in self.kernels:
            out += f""".p2align 6
.amdhsa_kernel {name}
  .amdhsa_next_free_vgpr {vgpr}
  .amdhsa_next_free_sgpr {sgpr}
  .amdhsa_accum_offset {accum}
  .amdhsa_group_segment_fixed_size 0
  .amdhsa_kernarg_size 88
  .amdhsa_user_sgpr_count 2
  .amdhsa_user_sgpr_kernarg_segment_ptr 1
  .amdhsa_system_sgpr_workgroup_id_x 1
.end_amdhsa_kernel
"""
        return out
```

```python
from layout8 import *

def gen_ka(a, ld='', rst='', pfp='', prefetch=True, lw=6, KN=XS, l1=2, excl=1, v10=0, R0=8500, xrot=0, mix=0):
    name="ka_kernel"
    L_TAB=1024; L_REC=L_TAB+10*1024; L_END=L_REC+CH_STRIDE
    NL=KN*16
    LL=64*lw
    HL=max(0,(NL-16*LL+16*64-1)//(16*64))*64
    assert HL <= 1280
    a.begin_kernel(name)
    XSRD = f"""
    s_add_u32 s34, s2, {xrot}
    s_and_b32 s34, s34, 7
    s_mul_i32 s34, s34, {XS*2048}
    s_add_u32 s24, s16, s34
    s_addc_u32 s25, s17, 0
    s_and_b32 s25, s25, 0xffff
    s_mov_b32 s26, {KN*2048}
    s_mov_b32 s27, 0x20000
    s_bfe_u32 s30, s2, 0x40003
    v_lshlrev_b32 v40, 7, v0
"""
    LIGHT = ""; LATE = ""
    if lw and prefetch:
        LIGHT = XSRD + f"""
    s_mul_i32 s30, s30, {LL*128}
    s_add_u32 s30, s30, {16*HL*128}
    s_cmp_lt_u32 s18, {min(lw,l1)}
    s_cselect_b32 s31, s30, 0x8000000
    buffer_load_dword v42, v40, s[24:27], s31 offen{pfp}
"""
    if lw > l1 and prefetch:
        LATE = f"""
    s_cmp_lt_u32 s18, {l1}
    s_cbranch_scc1 ka_end
    s_cmp_ge_u32 s18, {lw}
    s_cbranch_scc1 ka_end
    buffer_load_dword v42, v40, s[24:27], s30 offen{pfp}
"""
    npf = 1 if (lw and prefetch) else 0
    if v10:
        WA = """s_lshr_b32 s38, s36, 1
    s_lshl_b32 s38, s38, 7
    s_add_u32 s37, s37, s38
    s_and_b32 s38, s36, 1
    s_lshl2_add_u32 s37, s38, s37
    v_lshrrev_b32 v44, 4, v1
    v_lshlrev_b32 v44, 11, v44
    v_and_b32 v45, 7, v1
    v_lshl_add_u32 v44, v45, 4, v44
    v_and_b32 v45, 8, v1
    v_add3_u32 v44, v44, v45, s37"""
        WB = """s_lshr_b32 s36, s36, 1
    s_lshl3_add_u32 s36, s36, s35
    s_lshl1_add_u32 s36, s36, s38
    s_lshl_b32 s36, s36, 11"""
    else:
        WA = """s_lshl_b32 s38, s36, 6
    s_add_u32 s37, s37, s38
    v_lshrrev_b32 v44, 4, v1
    v_lshlrev_b32 v44, 11, v44
    v_and_b32 v45, 3, v1
    v_lshl_add_u32 v44, v45, 4, v44
    v_and_b32 v45, 12, v1
    v_add3_u32 v44, v44, v45, s37"""
        WB = """s_lshl_b32 s36, s36, 3
    s_add_u32 s36, s36, s35
    s_lshl_b32 s36, s36, 11"""
    a(f"""
    s_cmp_ge_u32 s2, 256
    s_cbranch_scc1 ka_end
    s_load_dwordx8 s[4:11], s[0:1], 8
    s_load_dwordx2 s[16:17], s[0:1], 0
    s_load_dwordx2 s[14:15], s[0:1], 80
    s_load_dwordx2 s[32:33], s[0:1], 56
    v_lshrrev_b32 v9, 6, v0
    v_and_b32 v1, 63, v0
    v_readfirstlane_b32 s18, v9
    s_cmp_ge_u32 s2, 128
    s_cbranch_scc1 ka_pf
    v_lshlrev_b32 v2, 2, v0
    v_and_b32 v2, 0x3fc, v2
    v_mov_b32 v3, 0
    ds_write_b32 v2, v3
    s_mul_i32 s3, s2, {CHUNK}
    v_add_u32 v4, s3, v0
    v_lshlrev_b32 v5, 2, v4
    v_lshlrev_b32 v6, 3, v4
    v_add_u32 v8, {640*8}, v6
    v_and_b32 v7, 0xffffffc0, v4
    v_lshlrev_b32 v7, 5, v7
    v_lshl_add_u32 v7, v1, 4, v7
    v_add_u32 v9, {640*32}, v7
    s_mov_b32 s22, {WS_LOW}
    s_mov_b32 s23, 0x20000
    s_and_b32 s28, s2, 7
    s_lshl_b32 s28, s28, 6
    s_lshr_b32 s29, s2, 3
    s_lshl2_add_u32 s28, s29, s28
    s_add_u32 s28, s28, {WS_T}
    s_cmp_ge_u32 s2, {NCHUNK}
    s_waitcnt lgkmcnt(0)
    s_mov_b32 s20, s14
    s_cbranch_scc1 ka_extra
    global_load_dword v10, v5, s[6:7]{ld}
    global_load_dword v60, v5, s[6:7] offset:{640*4}{ld}
    global_load_dword v11, v5, s[4:5]{ld}
    global_load_dword v61, v5, s[4:5] offset:{640*4}{ld}
    s_and_b32 s21, s15, 0xffff
    v_mov_b32 v3, 1
    v_lshrrev_b32 v24, 1, v1
    v_lshlrev_b32 v24, 2, v24
    v_and_b32 v25, 1, v0
    v_lshlrev_b32 v25, 4, v25
    v_lshlrev_b32 v26, 4, v1
    s_lshl_b32 s19, s18, 10
    v_add_u32 v27, s19, v26
    s_movk_i32 s29, 625
    s_movk_i32 s39, {XS}
    s_barrier
    global_load_dwordx2 v[12:13], v6, s[8:9]{ld}
    global_load_dwordx4 v[16:19], v7, s[10:11]{ld}
    global_load_dwordx4 v[20:23], v7, s[10:11] offset:1024{ld}
    global_load_dwordx2 v[72:73], v8, s[8:9]{ld}
    global_load_dwordx4 v[64:67], v9, s[10:11]{ld}
    global_load_dwordx4 v[68:71], v9, s[10:11] offset:1024{ld}
    """)
    sets = [dict(d=10,s=11,L=32,T=33,A=35,R=36,U=39,sh=12,e0=16,e1=20,B=43,P=48),
            dict(d=60,s=61,L=62,T=63,A=76,R=77,U=78,sh=72,e0=64,e1=68,B=79,P=80)]
    for i,z in enumerate(sets):
        a(f"""
    s_waitcnt vmcnt({9-i})
    v_mul_u32_u24 v{z['L']}, {MAGICB}, v{z['d']}
    v_lshrrev_b32 v{z['L']}, 23, v{z['L']}
    v_min_u32 v{z['L']}, {NBLK-1}, v{z['L']}
    v_lshlrev_b32 v{z['A']}, 2, v{z['L']}
    ds_add_rtn_u32 v{z['R']}, v{z['A']}, v3
    """)
    a(f"s_waitcnt vmcnt(6)")
    for z in (sets if v10 != 2 else []):
        w10 = z['sh']+2; w11 = z['sh']+3
        a(f"""
    v_mad_u32_u24 v{z['T']}, v{z['L']}, s29, 15
    v_lshrrev_b32 v{z['T']}, 4, v{z['T']}
    v_sub_u32 v{z['T']}, v{z['d']}, v{z['T']}
    v_mul_u32_u24 v{z['U']}, {MAGIC625}, v{z['s']}
    v_lshrrev_b32 v{z['U']}, {21 if v10 else 22}, v{z['U']}
    v_lshlrev_b32 v{z['L']}, {2 if v10 else 1}, v{z['L']}
    v_sub_u32 v{z['U']}, v{z['U']}, v{z['L']}
    v_and_b32 v{z['U']}, {31 if v10 else 15}, v{z['U']}
    v_and_b32 v{w11}, {1 if v10 else 3}, v{z['T']}
    v_lshl_or_b32 v{z['U']}, v{w11}, {5 if v10 else 4}, v{z['U']}
    v_and_b32 v{w10}, 0x3fff, v{z['s']}
    v_lshl_or_b32 v{w10}, v{z['U']}, 18, v{w10}
    v_and_b32 v{w11}, {0x3e if v10 else 0x3c}, v{z['T']}
    {f"v_lshlrev_b32 v{w11}, 1, v{w11}" if v10 else ""}
    v_add_u32 v{z['A']}, s19, v{z['A']}
    """)
    MB = (27<<20)//(R0-(XS if mix else 0))
    MIX = lambda z: f"""v_cmp_gt_u32 vcc, s39, v{z['U']}
    v_mul_u32_u24 v{z['L']}, {mix}, v{z['U']}
    v_lshrrev_b32 v{z['L']}, 3, v{z['L']}
    v_subrev_u32 v{z['U']}, s39, v{z['U']}
    v_cndmask_b32 v{z['U']}, v{z['U']}, v{z['L']}, vcc""" if mix else ""
    for z in (sets if v10 == 2 else []):
        w10 = z['sh']+2; w11 = z['sh']+3
        a(f"""
    v_mad_u32_u24 v{z['T']}, v{z['L']}, s29, 15
    v_lshrrev_b32 v{z['T']}, 4, v{z['T']}
    v_sub_u32 v{z['T']}, v{z['d']}, v{z['T']}
    v_and_b32 v{z['L']}, 7, v{z['L']}
    v_mul_u32_u24 v{z['L']}, {XS}, v{z['L']}
    v_sub_u32 v{z['U']}, v{z['s']}, v{z['L']}
    v_add_u32 v{z['L']}, {N}, v{z['U']}
    v_min_u32 v{z['U']}, v{z['U']}, v{z['L']}
    {MIX(z)}
    v_mul_u32_u24 v{z['U']}, {MB}, v{z['U']}
    v_lshrrev_b32 v{z['U']}, 20, v{z['U']}
    v_subrev_u32 v{z['L']}, 20, v{z['T']}
    v_min_u32 v{w11}, v{z['L']}, v{z['T']}
    v_min_u32 v{w11}, 19, v{w11}
    v_lshrrev_b32 v{z['L']}, 2, v{w11}
    v_add_u32 v{z['L']}, 27, v{z['L']}
    v_cmp_gt_u32 vcc, 27, v{z['U']}
    v_lshlrev_b32 v{w11}, 2, v{w11}
    v_and_b32 v{w10}, 0x3fff, v{z['s']}
    v_cndmask_b32 v{z['U']}, v{z['L']}, v{z['U']}, vcc
    v_cmp_le_u32 vcc, 20, v{z['T']}
    v_lshl_or_b32 v{w10}, v{z['U']}, 18, v{w10}
    v_add_u32 v{z['L']}, {32<<18}, v{w10}
    v_add_u32 v{z['A']}, s19, v{z['A']}
    v_cndmask_b32 v{w10}, v{w10}, v{z['L']}, vcc
    """)
    a(f"""
    s_waitcnt lgkmcnt(0)
    s_barrier
    ds_read_b128 v[44:47], v26
    ds_read_b32 v37, v2
    {LIGHT}
    v_add_u32 v28, s19, v2
    v_lshlrev_b32 v29, 9, v0
    s_mul_i32 s19, s2, {CH_STRIDE}
    s_waitcnt lgkmcnt(1)
    v_add_u32 v53, v44, v45
    v_add_u32 v54, v53, v46
    v_add_u32 v38, v54, v47
    v_mov_b32 v55, v38
    s_nop 0
    v_add_u32_dpp v38, v38, v38 row_shr:1 row_mask:0xf bank_mask:0xf
    s_nop 1
    v_add_u32_dpp v38, v38, v38 row_shr:2 row_mask:0xf bank_mask:0xf
    s_nop 1
    v_add_u32_dpp v38, v38, v38 row_shr:4 row_mask:0xf bank_mask:0xf
    s_nop 1
    v_add_u32_dpp v38, v38, v38 row_shr:8 row_mask:0xf bank_mask:0xf
    s_nop 1
    v_add_u32_dpp v38, v38, v38 row_bcast:15 row_mask:0xa bank_mask:0xf
    s_nop 1
    v_add_u32_dpp v38, v38, v38 row_bcast:31 row_mask:0xc bank_mask:0xf
    v_sub_u32 v56, v38, v55
    v_add_u32 v57, v56, v44
    v_add_u32 v58, v56, v53
    v_add_u32 v59, v56, v54
    ds_write_b128 v27, v[56:59] offset:{L_TAB}
    ds_read_b32 v43, v35 offset:{L_TAB}
    ds_read_b32 v79, v76 offset:{L_TAB}
    ds_read_b32 v30, v28 offset:{L_TAB}
    s_waitcnt lgkmcnt(1)
    """)
    for z in sets:
        a(f"""
    v_add_u32 v{z['B']}, v{z['B']}, v{z['R']}
    v_mul_u32_u24 v{z['B']}, {REC}, v{z['B']}
    ds_bpermute_b32 v{z['P']}, v24, v{z['B']}
    ds_bpermute_b32 v{z['P']+1}, v24, v{z['B']} offset:128
    """)
    a(f"""
    s_cmp_ge_u32 s18, 4
    s_waitcnt lgkmcnt(0)
    v_lshl_or_b32 v30, v37, 16, v30
    """)
    for z in sets:
        a(f"""
    v_add_u32 v{z['P']}, v{z['P']}, v25
    v_add_u32 v{z['P']+1}, v{z['P']+1}, v25
    """)
    for i,z in enumerate(sets):
        b0 = 3*(1-i) + npf
        a(f"""
    s_waitcnt vmcnt({b0+2})
    ds_write_b128 v{z['B']}, v[{z['sh']}:{z['sh']+3}] offset:{L_REC+32}
    s_waitcnt vmcnt({b0+1})
    ds_write_b128 v{z['P']}, v[{z['e0']}:{z['e0']+3}] offset:{L_REC}
    s_waitcnt vmcnt({b0})
    ds_write_b128 v{z['P']+1}, v[{z['e1']}:{z['e1']+3}] offset:{L_REC}
    """)
    a(f"""
    s_cbranch_scc1 ka_nohdr
    buffer_store_dword v30, v29, s[20:23], s28 offen
ka_nohdr:
    v_lshlrev_b32 v5, 4, v0
    s_waitcnt lgkmcnt(0)
    s_barrier
    """)
    for r in range(6):
        a(f"ds_read_b128 v[{12+4*r}:{15+4*r}], v5 offset:{L_REC+r*10240}")
    for r in range(6):
        a(f"s_waitcnt lgkmcnt({5-r})")
        a(f"buffer_store_dwordx4 v[{12+4*r}:{15+4*r}], v5, s[20:23], s19 offen{rst}")
        if r < 5: a("s_addk_i32 s19, 10240")
    a(f"""
ka_late:
    {LATE}
    s_endpgm
ka_pf:
    s_waitcnt lgkmcnt(0)
    {XSRD}
    s_mul_i32 s30, s30, {HL*128}
    s_cmp_lg_u32 s18, 9
    s_cbranch_scc1 ka_pf1
    s_bitcmp1_b32 s2, 3
    s_cbranch_scc1 ka_pf0
    s_and_b32 s35, s2, 7
    s_bfe_u32 s36, s2, 0x30004
    s_lshl_b32 s37, s35, 14
    {WA}
    v_add_u32 v45, 0x2000, v44
    """)
    for j in range(8):
        a(f"global_load_dword v{48+j}, v{44+(j>>2)}, s[32:33] offset:{(j&3)*512}")
    a(f"""
    {WB}
    s_add_u32 s36, s36, {WS_WT}
    v_lshl_add_u32 v46, v1, 4, s36
    s_mov_b32 s38, 0x05040100
    s_mov_b32 s39, 0x07060302
    s_waitcnt vmcnt(0)
    """)
    for i in range(4):
        a(f"v_perm_b32 v{56+i}, v{49+2*i}, v{48+2*i}, s38")
        a(f"v_perm_b32 v{60+i}, v{49+2*i}, v{48+2*i}, s39")
    a(f"""
    global_store_dwordx4 v46, v[56:59], s[14:15]
    global_store_dwordx4 v46, v[60:63], s[14:15] offset:1024
    s_branch ka_pf1
ka_pf0:
    s_load_dwordx4 s[36:39], s[0:1], 40
    v_lshlrev_b32 v44, 7, v1
    v_mov_b32 v45, 0
    s_waitcnt lgkmcnt(0)
    global_load_dword v46, v44, s[38:39]
    global_load_dword v47, v45, s[36:37]
ka_pf1:
    """)
    if prefetch:
        n1 = min(10, HL//64); n2 = max(0, HL//64-10)
        a(f"""
    s_cmp_ge_u32 s18, {n1}
    s_cbranch_scc1 ka_pf2
    buffer_load_dword v42, v40, s[24:27], s30 offen{pfp}
    s_cmp_ge_u32 s18, {n2}
    s_cbranch_scc1 ka_pf2
    s_add_u32 s30, s30, {640*128}
    buffer_load_dword v43, v40, s[24:27], s30 offen{pfp}
    """)
    a(f"""
ka_pf2:
    s_waitcnt vmcnt(0)
    s_endpgm
ka_extra:
    {LIGHT}
    s_branch ka_late
ka_end:
    s_endpgm
    """)
    a.end_kernel(name, 88, 40)
    a.launch(name, 256, 640, 90112 if excl else L_END)
```

```python
from layout8 import *

L_CNT=0; L_MORE=272; L_DONE=276; L_CG=512; L_WR=1024
SSTR=576; QSTR=20*SSTR; GSTR=4*QSTR; RB=163840-2*GSTR
NPOS=(RB-9216)//48//32*32
L_P2=9216; L_EA=L_P2+16*NPOS
assert L_EA+32*NPOS <= RB and RB % 64 == 0
NR=4; LPR=6
MAGIC6=10923
assert all((t*MAGIC6)>>16 == t//6 for t in range(768))

vTR=1; vE=2; vEAa=3; vX=4; vSh=8; vAop=12; vSHa=18; vSl=19; vB=20; vD=28; vRW=44; vEA1=60; vEA2=64
vW1=68; vW2=72; vCG=76; vRem=84; vAddr=85; vAcc=88
vR=44
vT=20
NV=168
sX=4; sLOW=8; sOUT=12
sWv=16; sQ=17; sG=18; sLeft=19; sLim=20; sMore=21; sN0=22; sTot=23; sMaskA=24; sMaskB=26; sA=28; sStart=32; sEnd=33; sM=40
sT=64

def gen_main(a, rld='', stamps=False, exp='', ost=' sc0 sc1', KN=XS, pfm='', wld='', xld='', prio=3, slp=2, R=6, wd=1, warm=0):
    name="main_kernel"
    PAD=2*R+8
    CAP=NPOS-2*PAD
    assert CAP >= 768 and 24 % R == 0
    a.begin_kernel(name)
    def st(i):
        if stamps == 2 and i in (5,6): return f"s_memrealtime s[{sT+2*i}:{sT+2*i+1}]\ns_memtime s[{sT+2*(i-3)}:{sT+2*(i-3)+1}]"
        return f"s_memrealtime s[{sT+2*i}:{sT+2*i+1}]" if (stamps and (stamps == 1 or i in (0,5,6,7))) else ""
    LO = f"s[{sLOW}:{sLOW+3}]"
    t = list(range(vT, vT+24))
    vK=t[0]; vRk=t[4]; vLane=t[8]; vL4=t[9]; vOne=t[10]; vPadv=t[11]; vDum=t[12]; vEp=t[16]; vEh=t[17]; vC0=t[18]; vC1=t[19]; vC2=t[20]; u0=t[21]; u1=t[22]; u2=t[23]
    def pf():
        if KN >= XS: return
        per = ((XS-KN)*16+31)//32; nw = (per+63)//64
        assert nw <= 12
        a(f"""
    s_cmp_ge_u32 s{sWv}, {nw}
    s_cbranch_scc1 mn_nopf
    s_lshr_b32 s52, s2, 3
    s_mul_i32 s52, s52, {per}
    s_and_b32 s53, s2, 7
    s_mul_i32 s53, s53, {XS*16}
    s_add_u32 s52, s52, s53
    s_add_u32 s52, s52, {KN*16}
    s_lshl_b32 s52, s52, 7
    s_mov_b32 s36, s50
    s_and_b32 s37, s51, 0xffff
    s_mov_b32 s38, {N*2048}
    s_mov_b32 s39, 0x20000
    v_lshlrev_b32 v{vSh}, 7, v0
    buffer_load_dword v86, v{vSh}, s[36:39], s52 offen{pfm}
mn_nopf:
""")
    a(f"""
    {st(0)}
    s_cmp_ge_u32 s2, {NBLK}
    s_cbranch_scc1 mn_end
    s_load_dwordx2 s[54:55], s[0:1], 80
    s_load_dwordx2 s[50:51], s[0:1], 0
    s_load_dwordx4 s[60:63], s[0:1], 40
    s_load_dwordx2 s[56:57], s[0:1], 64
    v_lshrrev_b32 v{u0}, 6, v0
    v_lshlrev_b32 v{u1}, 2, v0
    v_readfirstlane_b32 s{sWv}, v{u0}
    v_and_b32 v{u1}, 0x1fc, v{u1}
    v_mov_b32 v{u2}, 0
    ds_write_b32 v{u1}, v{u2}
    v_mul_u32_u24 v{vC0}, {MAGIC6}, v0
    v_lshrrev_b32 v{vC0}, 16, v{vC0}
    v_lshlrev_b32 v{u0}, 2, v{vC0}
    s_lshl_b32 s49, s2, 9
    s_add_u32 s49, s49, {WS_T}
    s_mov_b32 s{sLOW+2}, {WS_LOW}
    s_mov_b32 s{sLOW+3}, 0x20000
    v_lshlrev_b32 v{u1}, 4, v0
    s_lshl_b32 s52, s{sWv}, 10
    s_add_u32 s52, s52, {L_WR}
    s_mov_b32 m0, s52
    s_cmp_ge_u32 s{sWv}, 8
    s_waitcnt lgkmcnt(0)
    s_mov_b32 s{sLOW}, s54
    s_and_b32 s{sLOW+1}, s55, 0xffff
    s_cmp_ge_u32 s{sWv}, 8
    buffer_load_dword v{vRem}, v{u0}, {LO}, s49 offen
    s_cbranch_scc1 mn_cg
    global_load_lds_dwordx4 v{u1}, s[62:63]
mn_cg_back:
    s_and_b32 s{sQ}, s{sWv}, 3
    s_bfe_u32 s{sG}, s{sWv}, 0x10002
    s_lshl_b32 s53, s{sQ}, 7
    s_add_u32 s{sX}, s50, s53
    s_addc_u32 s{sX+1}, s51, 0
    s_and_b32 s{sX+1}, s{sX+1}, 0xffff
    s_or_b32 s{sX+1}, s{sX+1}, 0x08000000
    s_movk_i32 s{sX+2}, {N}
    s_mov_b32 s{sX+3}, 0x20000
    s_mul_i32 s{sN0}, s2, 625
    s_add_u32 s52, s{sN0}, {625+15}
    s_add_u32 s{sN0}, s{sN0}, 15
    s_lshr_b32 s{sN0}, s{sN0}, 4
    s_lshr_b32 s52, s52, 4
    s_mov_b32 s{sOUT}, s56
    s_and_b32 s{sOUT+1}, s57, 0xffff
    s_lshl_b32 s{sOUT+2}, s52, 11
    s_mov_b32 s{sOUT+3}, 0x20000
    s_and_b32 s52, s{sWv}, 7
    s_mul_i32 s{sM}, s52, {QSTR}
    s_add_u32 s{sM}, s{sM}, {RB}
    """)
    for r in range(1, R): a(f"s_add_u32 s{sM+r}, s{sM}, {1024*r}")
    a(f"""
    s_mov_b32 s{sMaskA}, 0x0f0f0f0f
    s_mov_b32 s{sMaskA+1}, 0x0f0f0f0f
    s_not_b64 s[{sMaskB}:{sMaskB+1}], s[{sMaskA}:{sMaskA+1}]
    s_movk_i32 s{sLim}, {LPR*NR}
    v_and_b32 v{u0}, 15, v{vC0}
    v_lshrrev_b32 v{u1}, 4, v{vC0}
    v_lshl_or_b32 v{u0}, v{u0}, 3, v{u1}
    v_cmp_gt_u32 vcc, {NCHUNK}, v{u0}
    v_mul_u32_u24 v{vAddr}, {CH_STRIDE}, v{u0}
    v_mul_u32_u24 v{vC0}, {LPR}, v{vC0}
    v_sub_u32 v{vC0}, v0, v{vC0}
    v_mad_u32_u24 v{vAddr}, v{vC0}, {REC}, v{vAddr}
    v_and_b32 v{u0}, 3, v0
    v_bfe_u32 v{u1}, v0, 2, 2
    v_bfe_u32 v{u2}, v0, 4, 1
    v_bfe_u32 v{vC1}, v0, 5, 1
    v_lshlrev_b32 v{vTR}, 3, v{u0}
    v_lshl_add_u32 v{vTR}, v{u2}, 5, v{vTR}
    v_lshl_add_u32 v{vTR}, v{u1}, 6, v{vTR}
    v_lshl_add_u32 v{vTR}, v{vC1}, 8, v{vTR}
    v_add_u32 v{vTR}, s{sM}, v{vTR}
    v_lshlrev_b32 v{vX+1}, 4, v{u0}
    v_lshl_add_u32 v{vX+1}, v{u2}, 6, v{vX+1}
    v_lshl_add_u32 v{vX+1}, v{u1}, 9, v{vX+1}
    v_mov_b32 v{vX+3}, v{vX+1}
    """)
    for i in range(8): a(f"v_mov_b32 v{vEA1+i}, 0")
    a(f"""
    s_barrier
    s_waitcnt vmcnt(1)
    {st(1)}
    v_and_b32 v{u0}, 0xffff, v{vRem}
    v_lshrrev_b32 v{vRem}, 16, v{vRem}
    v_mad_u32_u24 v{vAddr}, v{u0}, {REC}, v{vAddr}
    v_cndmask_b32 v{vRem}, 0, v{vRem}, vcc
    v_sub_u32 v{vRem}, v{vRem}, v{vC0}
    """)
    def rounds(tag, body):
        for r in range(NR):
            if r == 1:
                a(f"s_cmp_le_u32 s{sLim}, {LPR}")
                a(f"s_cbranch_scc1 mn_{tag}_done")
            a(f"v_cmpx_lt_i32 vcc, {LPR*r}, v{vRem}")
            a(f"s_cbranch_execz mn_{tag}_done")
            body(r)
        a(f"mn_{tag}_done:")
        a("s_mov_b64 exec, -1")
    def ldrec(r):
        a(f"buffer_load_dwordx4 v[{vR+4*r}:{vR+4*r+3}], v{vAddr}, {LO}, 0 offen offset:{LPR*REC*r+32}{rld}")
    rounds("ld", ldrec)
    for i in range(0, 80, 2): a(f"v_mov_b64 v[{vAcc+i}:{vAcc+i+1}], 0")
    a(f"""
mn_pass:
    v_and_b32 v{vLane}, 63, v0
    v_mov_b32 v{vOne}, 1
    v_lshlrev_b32 v{vL4}, 2, v{vLane}
    v_bfe_u32 v{vE}, v0, 5, 1
    v_bfe_u32 v{vEAa}, v0, 3, 2
    v_and_b32 v{vSHa}, 3, v0
    v_lshl_add_u32 v{vEAa}, v{vEAa}, 2, v{vSHa}
    v_mul_u32_u24 v{vPadv}, {PAD}, v{vE}
    v_lshlrev_b32 v{vE}, 4, v{vE}
    v_lshl_add_u32 v{vEAa}, v{vEAa}, 5, v{vE}
    v_lshrrev_b32 v{u0}, 2, v{vLane}
    v_lshl_add_u32 v{vSHa}, v{vSHa}, 4, v{u0}
    v_lshlrev_b32 v{vSHa}, 4, v{vSHa}
    v_mov_b32 v{vDum}, 0
    v_mov_b32 v{vDum+1}, 0
    v_mov_b32 v{vDum+2}, 0xffff
    v_mov_b32 v{vDum+3}, 0x7fffff00
    v_lshrrev_b32 v{vEp}, 1, v0
    v_lshlrev_b32 v{vEp}, 4, v{vEp}
    v_and_b32 v{vEh}, 1, v0
    v_lshlrev_b32 v{vEh}, 4, v{vEh}
    s_waitcnt vmcnt(0)
    {st(2)}
mn_count:
    v_cmp_lt_i32 vcc, s{sLim}, v{vRem}
    s_cbranch_vccnz mn_setmore
mn_setmore_back:
    """)
    def cnt(r):
        a(f"v_lshrrev_b32 v{vK+r}, 16, v{vR+4*r+2}")
        a(f"ds_add_rtn_u32 v{vRk+r}, v{vK+r}, v{vOne}")
    rounds("cn", cnt)
    pf()
    a(f"""
    v_lshlrev_b32 v{u0}, 4, v{vAddr}
    s_lshl_b32 s52, s{sG}, 5
    s_add_u32 s53, s52, 31
    s_waitcnt lgkmcnt(0)
    s_barrier
    {st(3)}
    ds_read_b32 v{vC1}, v{vL4} offset:{L_CNT}
    ds_read_b32 v{vC0}, v{vDum} offset:{L_MORE}
    s_waitcnt lgkmcnt(1)
    v_mov_b32 v{vC2}, v{vC1}
    v_sub_u32 v{vC1}, v{vPadv}, v{vC1}
    v_or_b32 v{vR+3}, v{vR+3}, v{u0}
    v_add_u32_dpp v{vC2}, v{vC2}, v{vC2} row_shr:1 row_mask:0xf bank_mask:0xf
    v_add_u32 v{u0}, {LPR*REC*16}, v{u0}
    v_or_b32 v{vR+7}, v{vR+7}, v{u0}
    v_add_u32_dpp v{vC2}, v{vC2}, v{vC2} row_shr:2 row_mask:0xf bank_mask:0xf
    v_add_u32 v{u0}, {LPR*REC*16}, v{u0}
    v_or_b32 v{vR+11}, v{vR+11}, v{u0}
    v_add_u32_dpp v{vC2}, v{vC2}, v{vC2} row_shr:4 row_mask:0xf bank_mask:0xf
    v_add_u32 v{u0}, {LPR*REC*16}, v{u0}
    v_or_b32 v{vR+15}, v{vR+15}, v{u0}
    v_add_u32_dpp v{vC2}, v{vC2}, v{vC2} row_shr:8 row_mask:0xf bank_mask:0xf
    s_nop 1
    v_add_u32_dpp v{vC2}, v{vC2}, v{vC2} row_bcast:15 row_mask:0xa bank_mask:0xf
    s_nop 1
    v_add_u32_dpp v{vC2}, v{vC2}, v{vC2} row_bcast:31 row_mask:0xc bank_mask:0xf
    v_add_u32 v{vC1}, v{vC1}, v{vC2}
    v_add_u32 v{vC2}, v{vC2}, v{vPadv}
    """)
    for r in range(NR):
        a(f"ds_bpermute_b32 v{vK+r}, v{vK+r}, v{vC1}")
    a(f"""
    v_readlane_b32 s{sStart}, v{vC1}, s52
    v_readlane_b32 s{sEnd}, v{vC2}, s53
    v_readlane_b32 s{sTot}, v{vC2}, 63
    s_waitcnt lgkmcnt({NR})
    v_readfirstlane_b32 s{sMore}, v{vC0}
    s_cmp_gt_u32 s{sTot}, {CAP+PAD}
    s_cbranch_scc1 mn_ovf
    v_add_lshl_u32 v{u0}, s{sEnd}, v{vLane}, 4
    s_lshl_b32 s52, s{sStart}, 4
    s_lshl_b32 s53, s{sStart}, 5
    s_add_u32 s53, s53, {L_EA}
    s_mov_b32 exec_lo, {(1<<PAD)-1}
    s_mov_b32 exec_hi, 0
    ds_write_b128 v{u0}, v[{vDum}:{vDum+3}] offset:{L_P2}
    s_mov_b64 exec, -1
    v_add_u32 v{vE}, s52, v{vE}
    v_add_u32 v{vEAa}, s53, v{vEAa}
    v_add_u32 v{vSHa}, s52, v{vSHa}
    s_sub_u32 s{sLeft}, s{sEnd}, s{sStart}
    s_add_u32 s{sLeft}, s{sLeft}, 3
    s_lshr_b32 s{sLeft}, s{sLeft}, 2
    s_add_u32 s{sTot}, s{sTot}, 3
    s_waitcnt lgkmcnt(1)
    """)
    def w2(r):
        a(f"v_add_lshl_u32 v{vK+r}, v{vK+r}, v{vRk+r}, 4")
        a(f"ds_write_b128 v{vK+r}, v[{vR+4*r}:{vR+4*r+3}] offset:{L_P2}")
    rounds("w2", w2)
    vS0 = vRW
    a(f"""
    s_lshl_b32 s52, s{sWv}, 5
    s_lshl_b32 s53, s{sWv}, 10
    s_add_u32 s53, s53, {L_EA}
    s_mov_b32 m0, s53
    s_waitcnt lgkmcnt(0)
    s_barrier
    {st(4)}
    ds_read_b32 v{u0}, v{vEp} offset:{L_P2+12}
    ds_read_b32 v{u1}, v{vEp} offset:{L_P2+12+384*16}
    """)
    for r in range(R+2): a(f"ds_read_u16 v{vS0+r}, v{vE} offset:{L_P2+8+32*r}")
    a(f"""
    ds_read_b128 v[{vSh}:{vSh+3}], v{vSHa} offset:{L_P2}
    s_add_u32 s52, s52, 384
    s_cmp_lt_u32 s52, s{sTot}
    s_waitcnt lgkmcnt({R+3})
    v_lshrrev_b32 v{u0}, 8, v{u0}
    v_lshl_add_u32 v{u0}, v{u0}, 4, v{vEh}
    buffer_load_dwordx4 v{u0}, {LO}, 0 offen lds
    s_cbranch_scc0 mn_ea_done
mn_ea2:
    v_lshrrev_b32 v{u1}, 8, v{u1}
    s_add_u32 m0, m0, {384*32}
    v_lshl_add_u32 v{u1}, v{u1}, 4, v{vEh}
    buffer_load_dwordx4 v{u1}, {LO}, 0 offen lds
    s_add_u32 s52, s52, 384
    s_cmp_lt_u32 s52, s{sTot}
    s_cbranch_scc1 mn_ea3
mn_ea_done:
    s_cmp_ge_u32 s{sWv}, 8
    s_cbranch_scc1 gm_start
    s_waitcnt lgkmcnt(1)
    """)
    def XD(j): return f"buffer_load_dwordx4 v[{vX+2*j}:{vX+2*j+1}], s[{sX}:{sX+3}], 0 idxen offen{xld} lds"
    for r in range(R):
        a(f"s_mov_b32 m0, s{sM+r}")
        a(f"v_mov_b32 v{vX}, v{vS0+r}")
        a(XD(0))
    a(f"""
    v_mov_b32 v{vX}, v{vS0+R}
    v_mov_b32 v{vX+2}, v{vS0+R+1}
    v_bfe_u32 v{vB}, v0, 2, 2
    v_bfe_u32 v{vB+1}, v0, 5, 1
    v_lshlrev_b32 v{vB+2}, 3, v{vB}
    v_lshl_add_u32 v{vB}, v{vB+1}, 3, v{vB}
    v_lshlrev_b32 v{vB}, 9, v{vB}
    v_bfe_u32 v{vB+1}, v0, 4, 1
    v_lshl_add_u32 v{vB}, v{vB+1}, 5, v{vB}
    v_and_b32 v{vB+1}, 3, v0
    v_lshl_add_u32 v{vB}, v{vB+1}, 3, v{vB}
    v_lshl_add_u32 v{vB}, s{sQ}, 7, v{vB}
    ds_read_b64_tr_b16 v[{vCG}:{vCG+1}], v{vB+2} offset:{L_CG}
    ds_read_b64_tr_b16 v[{vCG+2}:{vCG+3}], v{vB+2} offset:{L_CG+32}
    ds_read_b64_tr_b16 v[{vCG+4}:{vCG+5}], v{vB+2} offset:{L_CG+64}
    ds_read_b64_tr_b16 v[{vCG+6}:{vCG+7}], v{vB+2} offset:{L_CG+96}
    ds_read_b64_tr_b16 v[{vW1}:{vW1+1}], v{vB} offset:{L_WR}
    ds_read_b64_tr_b16 v[{vW1+2}:{vW1+3}], v{vB} offset:{L_WR+2048}
    ds_read_b64_tr_b16 v[{vW2}:{vW2+1}], v{vB} offset:{L_WR+64}
    ds_read_b64_tr_b16 v[{vW2+2}:{vW2+3}], v{vB} offset:{L_WR+2048+64}
    s_waitcnt lgkmcnt(4)
    v_mov_b32 v{vSl}, v{vSh+3}
    """)
    def ea_reads(off):
        a(f"s_mov_b64 exec, s[{sMaskA}:{sMaskA+1}]")
        a(f"ds_read_b128 v[{vEA1}:{vEA1+3}], v{vEAa} offset:{off}")
        a(f"s_mov_b64 exec, s[{sMaskB}:{sMaskB+1}]")
        a(f"ds_read_b128 v[{vEA2}:{vEA2+3}], v{vEAa} offset:{off}")
        a("s_mov_b64 exec, -1")
    def a_mfma():
        for u in range(4):
            a(f"v_mfma_f32_4x4x4_16b_bf16 v[{vD+4*u}:{vD+4*u+3}], v[{vSh}:{vSh+1}], v[{vCG+2*u}:{vCG+2*u+1}], 0")
    def a_cvt():
        for h in range(2):
            for i in range(3):
                a(f"v_cvt_pk_bf16_f32 v{vAop+2*i+h}, v{vD+8*h+i}, v{vD+8*h+4+i}")
    def rw_mfma():
        a(f"v_mfma_f32_32x32x16_bf16 v[{vRW}:{vRW+15}], v[{vEA1}:{vEA1+3}], v[{vW1}:{vW1+3}], 0")
        a(f"v_mfma_f32_32x32x16_bf16 v[{vRW}:{vRW+15}], v[{vEA2}:{vEA2+3}], v[{vW2}:{vW2+3}], v[{vRW}:{vRW+15}]")
    def trreads(slot, h):
        for j in range(2):
            a(f"ds_read_b64_tr_b16 v[{vB+4*h+2*j}:{vB+4*h+2*j+1}], v{vTR} offset:{slot*1024+j*512}")
    a_mfma()
    if prio: a(f"s_setprio {prio}")
    a("s_nop 3")
    a_cvt()
    a(f"s_waitcnt vmcnt({R})")
    a("s_barrier")
    ea_reads(0)
    a(f"s_sub_u32 s{sLeft}, s{sLeft}, 1")
    a("s_cbranch_scc1 mn_exit")
    a(f"s_waitcnt vmcnt({R-2})")
    trreads(0,0); trreads(1,1)
    a("s_waitcnt lgkmcnt(4)")
    rw_mfma()
    a(f"s_mov_b32 m0, s{sM}")
    a("s_waitcnt lgkmcnt(0)")
    a(XD(0))
    a(f"s_mov_b32 m0, s{sM+1}")
    a(st(5) if st(5) else "s_nop 0")
    a(XD(1))
    if stamps == 3: a(f"s_mov_b32 s{sT+6}, 0")
    a("mn_loop:")
    for d in range(12):
        b = d >> 2; k0 = 4*(d & 3)
        for j in range(4):
            a(f"v_mfma_f32_4x4x4_16b_bf16 v[{vD+4*j}:{vD+4*j+3}], v[{vAop+2*b}:{vAop+2*b+1}], v[{vB+2*j}:{vB+2*j+1}], 0 cbsz:4 abid:{k0+j}")
        s0 = (2*d+2) % R; s1 = (2*d+3) % R
        a(f"ds_read_u16 v{vX}, v{vE} offset:{L_P2+8+32*(2*d+2+R)}")
        a(f"ds_read_u16 v{vX+2}, v{vE} offset:{L_P2+8+32*(2*d+3+R)}")
        for j in range(4): a(f"v_readlane_b32 s{sA+j}, v{vSl}, {4*(k0+j)+b}")
        if (d & 3) == 2: ea_reads(16*(b+1)*32)
        if d == 9: a(f"ds_read_b128 v[{vSh}:{vSh+3}], v{vSHa} offset:{L_P2+48*16}")
        a(f"s_waitcnt vmcnt({R-1})")
        trreads(s0, 0)
        a(f"s_waitcnt vmcnt({R-2})")
        trreads(s1, 1)
        for j in range(4):
            a(f"s_set_gpr_idx_on s{sA}, gpr_idx(DST)" if j == 0 else f"s_set_gpr_idx_idx s{sA+j}")
            for w in range(4): a(f"v_fmac_f32 v{vAcc+w}, v{vD+4*j+w}, v{vRW+k0+j}")
        a("s_set_gpr_idx_off")
        if d == 11: a_mfma()
        if (d & 3) == 3: rw_mfma()
        if d == 11:
            a(f"v_mov_b32 v{vSl}, v{vSh+3}")
            a(f"v_add_u32 v{vE}, {48*16}, v{vE}")
            a(f"v_add_u32 v{vEAa}, {48*32}, v{vEAa}")
            a(f"v_add_u32 v{vSHa}, {48*16}, v{vSHa}")
        a(f"s_sub_u32 s{sLeft}, s{sLeft}, 1")
        a("s_cbranch_scc1 mn_exit")
        a(f"s_mov_b32 m0, s{sM+s0}")
        a("s_waitcnt lgkmcnt(2)")
        a(XD(0))
        if d == 11: a_cvt()
        a(f"s_mov_b32 m0, s{sM+s1}")
        a("s_waitcnt lgkmcnt(0)")
        a(XD(1))
    if stamps == 3:
        a(f"s_memrealtime s[{sT+4}:{sT+5}]")
        a("s_waitcnt lgkmcnt(0)")
        a(f"s_lshl_b64 exec, 1, s{sT+6}")
        a(f"v_mov_b32 v0, s{sT+4}")
        a(f"s_mov_b64 exec, -1")
        a(f"s_add_u32 s{sT+6}, s{sT+6}, 1")
    a("s_branch mn_loop")
    a(f"""
mn_exit:
    {st(6)}
    s_cmp_lg_u32 s{sMore}, 0
    s_cbranch_scc1 mn_next
    v_mbcnt_lo_u32_b32 v2, -1, 0
    v_mbcnt_hi_u32_b32 v2, -1, v2
    v_lshl_add_u32 v1, v2, 3, s{sM}
    """)
    for j in range(20):
        a(f"v_cvt_pk_bf16_f32 v{vAcc+4*j}, v{vAcc+4*j}, v{vAcc+4*j+1}")
        a(f"v_cvt_pk_bf16_f32 v{vAcc+4*j+1}, v{vAcc+4*j+2}, v{vAcc+4*j+3}")
        if j == 3: a("s_waitcnt vmcnt(0)")
        if j >= 3: a(f"ds_write_b64 v1, v[{vAcc+4*(j-3)}:{vAcc+4*(j-3)+1}] offset:{SSTR*(j-3)}")
    for j in range(17, 20): a(f"ds_write_b64 v1, v[{vAcc+4*j}:{vAcc+4*j+1}] offset:{SSTR*j}")
    a(f"""
    s_lshl_b32 s52, s{sG}, 3
    s_lshl_b32 s52, 1, s52
    v_mov_b32 v2, s52
    v_mov_b32 v3, 0
    s_mov_b64 exec, 1
    ds_add_u32 v3, v2 offset:{L_DONE}
    s_waitcnt lgkmcnt(0)
    {"s_mov_b64 exec, -1" if stamps else ""}
    {st(7)}
    {"s_branch mn_fin" if stamps else ""}
mn_end:
    s_endpgm
    """)
    vAa=0; vOut=1; vTt=2; vO=4; vA=12; vC=24; vW=40
    sTodo=36; sO=37; sOb=38; sAb=39; sSt=34
    AH=2; KS=8
    a(f"""
gm_start:
    s_waitcnt vmcnt(0) lgkmcnt(0)
    s_barrier
    s_cmp_lg_u32 s{sMore}, 0
    s_cbranch_scc1 mn_next
    {st(5)}
    v_and_b32 v3, 63, v0
    v_lshlrev_b32 v2, 4, v3
    s_lshl_b32 s52, s{sQ}, 15
    s_add_u32 s52, s52, {WS_WT}
    """)
    for f in range(32):
        a(f"buffer_load_dwordx4 v[{vW+4*f}:{vW+4*f+3}], v2, {LO}, s52 offen offset:{(f%4)*1024}{wld}")
        if f >= wd: a(f"s_waitcnt vmcnt({wd})")
        if f%4==3 and f<31: a("s_addk_i32 s52, 4096")
    a(f"""
    v_lshrrev_b32 v{vOut}, 4, v3
    v_lshlrev_b32 v{vOut}, 12, v{vOut}
    v_and_b32 v4, 7, v3
    v_lshl_add_u32 v{vOut}, v4, 4, v{vOut}
    v_bfe_u32 v4, v3, 3, 1
    v_lshl_add_u32 v{vOut}, v4, 9, v{vOut}
    v_and_b32 v4, 3, v3
    v_lshrrev_b32 v5, 2, v3
    v_mul_u32_u24 v{vAa}, {SSTR}, v4
    v_lshl_add_u32 v{vAa}, v5, 3, v{vAa}
    v_add_u32 v{vAa}, {RB}, v{vAa}
    s_lshl_b32 s{sOb}, s{sN0}, 11
    s_lshl_b32 s53, s{sQ}, 7
    s_add_u32 s{sOb}, s{sOb}, s53
    s_movk_i32 s{sTodo}, 0x0404
    s_mov_b32 s{sAb}, 0
    s_waitcnt vmcnt(0)
    {st(6)}
    """)
    if warm:
        a(f"s_mov_b32 s{sO}, 0x7ff00000\ns_branch gm_job")
    a(f"""
gm_poll:
    v_mov_b32 v{vTt}, 0
    ds_read_b32 v{vTt}, v{vTt} offset:{L_DONE}
    s_waitcnt lgkmcnt(0)
    v_readfirstlane_b32 s52, v{vTt}
    s_and_b32 s52, s52, s{sTodo}
    s_cbranch_scc1 gm_go
    s_sleep {slp}
    s_branch gm_poll
gm_go:
    {st(7)}
    s_ff1_i32_b32 s52, s52
    s_bitset0_b32 s{sTodo}, s52
    s_lshr_b32 s52, s52, 3
    s_lshl_b32 s{sO}, s52, 11
    s_add_u32 s{sO}, s{sO}, s{sOb}
    s_mul_i32 s52, s52, {GSTR}
    s_sub_u32 s53, s52, s{sAb}
    s_mov_b32 s{sAb}, s52
    v_add_u32 v{vAa}, s53, v{vAa}
gm_job:
    """)
    NT=5
    def rd(sn, half):
        tt, s = divmod(sn, KS)
        if tt >= NT: return
        bn = vA + 4*(sn % (AH+1))
        a(f"ds_read_b64_tr_b16 v[{bn+2*half}:{bn+2*half+1}], v{vAa} offset:{tt*4*SSTR+(s>>1)*QSTR+(s&1)*256+128*half}")
    for s in range(AH): rd(s,0); rd(s,1)
    cvlo = [f"v_cvt_pk_bf16_f32 v{vO+2*r}, v{vC+r}, v{vC+4+r}" for r in range(4)]
    cvhi = [f"v_cvt_pk_bf16_f32 v{vO+2*r+1}, v{vC+8+r}, v{vC+12+r}" for r in (1,0,3,2)]
    def fin(tt):
        ops = []
        for h in range(2):
            O = vO + 4*h
            ops += [f"v_mov_b32_dpp v{vTt}, v{O+2} row_ror:8 row_mask:0xf bank_mask:0xf",
                    f"v_mov_b32_dpp v{vTt+1}, v{O+3} row_ror:8 row_mask:0xf bank_mask:0xf",
                    f"v_mov_b32_dpp v{O+2}, v{O} row_ror:8 row_mask:0xf bank_mask:0x3",
                    f"v_mov_b32_dpp v{O+3}, v{O+1} row_ror:8 row_mask:0xf bank_mask:0x3",
                    f"v_mov_b32_dpp v{O}, v{vTt} quad_perm:[0,1,2,3] row_mask:0xf bank_mask:0xc",
                    f"v_mov_b32_dpp v{O+1}, v{vTt+1} quad_perm:[0,1,2,3] row_mask:0xf bank_mask:0xc",
                    f"buffer_store_dwordx4 v[{O}:{O+3}], v{vOut}, s[{sOUT}:{sOUT+3}], s{sO} offen offset:{h*1024}{ost}"]
        ops += [f"s_add_u32 s{sO}, s{sO}, {8*2048}"]
        return ops
    for tt in range(NT):
        ops = fin(tt-1) if tt else []
        for s in range(KS):
            sn = tt*KS+s
            pend = min(AH-1, NT*KS-1-sn)
            a(f"s_waitcnt lgkmcnt({2*pend})")
            b = vA + 4*(sn % (AH+1))
            for j in range(4):
                w = vW + 4*(s*4+j)
                c = "0" if s == 0 else f"v[{vC+4*j}:{vC+4*j+3}]"
                a(f"v_mfma_f32_16x16x32_bf16 v[{vC+4*j}:{vC+4*j+3}], v[{b}:{b+3}], v[{w}:{w+3}], {c}")
                if s == 0 and tt:
                    if j == 0: a(cvhi[0]); a(cvhi[1])
                    if j == 1: a(cvhi[2]); a(cvhi[3])
                    if j >= 2: rd(sn+AH, j-2)
                elif s == KS-1:
                    if j >= 2: rd(sn+AH, j-2)
                else:
                    if j < 2: rd(sn+AH, j)
                    if s >= 1 and j >= 1 and ops: a(ops.pop(0))
            if s == KS-1:
                assert not ops
                a("s_nop 3" if tt < NT-1 else "s_nop 5")
                for o in cvlo: a(o)
    for o in cvhi: a(o)
    for o in fin(NT-1): a(o)
    a(f"""
    s_cmp_lg_u32 s{sTodo}, 0
    s_cbranch_scc1 gm_poll
    """)
    if stamps: a("s_branch mn_fin")
    a(f"""
    s_endpgm
mn_cg:
    v_and_b32 v{u1}, 0x70, v{u1}
    s_movk_i32 m0, {L_CG}
    s_mov_b64 exec, 0xff
    global_load_lds_dwordx4 v{u1}, s[60:61]
    s_mov_b64 exec, -1
    s_branch mn_cg_back
mn_ea3:
    v_add_u32 v{vEp}, {384*16}, v{vEp}
    ds_read_b32 v{u1}, v{vEp} offset:{L_P2+12+384*16}
    s_waitcnt lgkmcnt(0)
    s_branch mn_ea2
mn_setmore:
    v_mov_b32 v{u0}, {L_MORE}
    ds_write_b32 v{u0}, v{vOne}
    s_branch mn_setmore_back
mn_ovf:
    s_movk_i32 s{sLim}, {LPR}
    s_waitcnt lgkmcnt(0)
    s_barrier
    ds_write_b32 v{vL4}, v{vDum} offset:{L_CNT}
    ds_write_b32 v{vDum}, v{vDum} offset:{L_MORE}
    s_waitcnt lgkmcnt(0)
    s_barrier
    s_branch mn_count
mn_next:
    s_waitcnt vmcnt(0) lgkmcnt(0)
    s_nop 7
    v_and_b32 v{vL4}, 63, v0
    v_lshlrev_b32 v{vL4}, 2, v{vL4}
    v_mov_b32 v{u0}, 0
    ds_write_b32 v{vL4}, v{u0} offset:{L_CNT}
    ds_write_b32 v{u0}, v{u0} offset:{L_MORE}
    v_subrev_u32 v{vRem}, s{sLim}, v{vRem}
    s_mul_i32 s52, s{sLim}, {REC}
    v_add_u32 v{vAddr}, s52, v{vAddr}
    s_waitcnt lgkmcnt(0)
    s_barrier
    """)
    rounds("ld2", ldrec)
    a("s_branch mn_pass")
    if stamps:
        a(f"""
mn_fin:
    s_memrealtime s[{sT+16}:{sT+17}]
    s_waitcnt vmcnt(0)
    s_memrealtime s[{sT+18}:{sT+19}]
    s_waitcnt lgkmcnt(0)
    s_lshl_b32 s90, s2, 4
    s_add_u32 s90, s90, s{sWv}
    s_lshl_b32 s90, s90, 6
    s_add_u32 s90, s90, 0xF000000
    s_add_u32 s92, s54, s90
    s_addc_u32 s93, s55, 0
    {"v_mbcnt_lo_u32_b32 v2, -1, 0" if stamps == 3 else ""}
    {"v_lshlrev_b32 v2, 2, v2" if stamps == 3 else ""}
    {"s_mov_b64 exec, 0x3f" if stamps == 3 else ""}
    {"global_store_dword v2, v0, s[92:93] offset:40" if stamps == 3 else ""}
    {"s_mov_b64 exec, -1" if stamps == 3 else ""}
    v_mov_b32 v0, 0
    """)
        if stamps == 2: a(f"s_sub_u32 s{sT+2}, s{sEnd}, s{sStart}\ns_lshr_b32 s{sT+2}, s{sT+2}, 2")
        for i in range(10):
            a(f"v_mov_b32 v1, s{sT+2*i}")
            a(f"global_store_dword v0, v1, s[92:93] offset:{4*i}")
        a("s_endpgm")
    a.end_kernel(name, NV, 96 if stamps else 64)
    a.launch(name, NBLK, 768, 163840)
```

```python
N=10000; E=160000
NCHUNK=125; CHUNK=1280; REC=48
CH_STRIDE=CHUNK*REC
NBLK=256
WS_REC=0
WS_T=0x0A00000
WS_WT=0x0B00000
WS_LOW=0x0C00000
MAGICB=214749
assert all(((d*MAGICB)>>23)==d*16//625 for d in range(10000))
assert all(0 <= d-(((d*16//625)*625+15)>>4) < 40 for d in range(10000))
MAGIC625=6711
assert all(((d*MAGIC625)>>22)==d//625 for d in range(10000))
XS=1250
```

```python
import sys
from common import *
from k_a8 import gen_ka
from k_main10 import gen_main
a = Asm()
opts=dict(x.split('=') for x in sys.argv[2:])
def pol(k, d):
    v = opts.get(k, d)
    return '' if v in ('', '0') else ' ' + v.replace('+', ' ')
I = lambda k, d: int(opts.get(k, d))
gen_ka(a, prefetch=I('pfa',1), ld=pol('kld','0'), rst=pol('rst','0'), pfp=pol('pfpa','0'), lw=I('lw',6), excl=I('excl',1), KN=I('KN',1250), l1=I('l1',2), v10=1)
gen_main(a, rld=pol('rld','0'), stamps=I('stamps',0), exp=opts.get('exp',''), ost=pol('ost','sc0+sc1'), KN=I('KN',1250), pfm=pol('pfm','0'), wld=pol('wld','0'), xld=pol('xld','0'), prio=I('prio',3), slp=I('slp',2), R=I('R',6), wd=I('wd',1), warm=I('warm',0))
open(sys.argv[1],'w').write(a.text())
```

```python
from layout8 import *

def gen_ka(a, ld='', rst='', pfp='', prefetch=True, KN=XS, R0=8500, cst='', cpf=1, swap=0):
    name="ka_kernel"
    L_TAB=1024; L_CELL=L_TAB+10*1024; L_REC=L_CELL+16384; L_END=L_REC+CH_STRIDE
    NL=KN*16
    HL=(NL+16*64-1)//(16*64)*64
    assert HL <= 1280
    a.begin_kernel(name)
    CPF = """s_cmp_lg_u32 s18, 0
    s_cbranch_scc1 ka_nocpf
    s_cmp_ge_u32 s2, 144
    s_cbranch_scc1 ka_nocpf
    s_getpc_b64 s[36:37]
ka_pc:
    s_add_u32 s36, s36, main_kernel-ka_pc
    s_addc_u32 s37, s37, 0
    s_bfe_u32 s38, s2, 0x10003
    s_lshl_b32 s38, s38, 13
    v_lshl_add_u32 v41, v1, 7, s38
    v_min_u32 v41, mn_last-main_kernel, v41
    global_load_dword v41, v41, s[36:37]
ka_nocpf:""" if cpf else ""
    a(f"""
    s_cmp_ge_u32 s2, 256
    s_cbranch_scc1 ka_end
    s_load_dwordx8 s[4:11], s[0:1], 8
    s_load_dwordx2 s[16:17], s[0:1], 0
    s_load_dwordx2 s[14:15], s[0:1], 80
    s_load_dwordx2 s[32:33], s[0:1], 56
    v_lshrrev_b32 v9, 6, v0
    v_and_b32 v1, 63, v0
    v_readfirstlane_b32 s18, v9
    s_cmp_ge_u32 s2, 128
    s_cbranch_scc1 ka_pf
    s_cmp_ge_u32 s2, {NCHUNK}
    s_cbranch_scc1 ka_extra
    s_mul_i32 s3, s2, {CHUNK}
    v_add_u32 v4, s3, v0
    v_lshlrev_b32 v5, 2, v4
    v_lshlrev_b32 v2, 2, v0
    v_and_b32 v2, 0x3fc, v2
    v_mov_b32 v3, 0
    v_lshlrev_b32 v6, 3, v4
    v_add_u32 v8, {640*8}, v6
    v_and_b32 v7, 0xffffffc0, v4
    v_lshlrev_b32 v7, 5, v7
    v_lshl_add_u32 v7, v1, 4, v7
    v_add_u32 v9, {640*32}, v7
    s_waitcnt lgkmcnt(0)
    global_load_dword v10, v5, s[6:7]{ld}
    global_load_dword v60, v5, s[6:7] offset:{640*4}{ld}
    global_load_dword v11, v5, s[4:5]{ld}
    global_load_dword v61, v5, s[4:5] offset:{640*4}{ld}
    ds_write_b32 v2, v3
    v_lshlrev_b32 v5, 4, v0
    v_mov_b32 v44, 0
    v_mov_b32 v45, 0
    v_mov_b32 v46, 0
    v_mov_b32 v47, 0
    ds_write_b128 v5, v[44:47] offset:{L_CELL}
    ds_write_b128 v5, v[44:47] offset:{L_CELL+16384-10240}
    s_mov_b32 s20, s14
    s_and_b32 s21, s15, 0xffff
    s_mov_b32 s22, {WS_LOW}
    s_mov_b32 s23, 0x20000
    s_and_b32 s28, s2, 7
    s_lshl_b32 s28, s28, 4
    s_lshr_b32 s29, s2, 3
    s_add_u32 s28, s28, s29
    s_lshl_b32 s30, s28, 6
    s_add_u32 s30, s30, {WS_C}
    s_lshl_b32 s28, s28, 2
    s_add_u32 s28, s28, {WS_T}
    v_mov_b32 v3, 1
    v_lshrrev_b32 v24, 1, v1
    v_lshlrev_b32 v24, 2, v24
    v_and_b32 v25, 1, v0
    v_lshlrev_b32 v25, 4, v25
    v_lshlrev_b32 v26, 4, v1
    s_lshl_b32 s19, s18, 10
    v_add_u32 v27, s19, v26
    s_movk_i32 s29, 625
    s_movk_i32 s38, {KN}
    s_movk_i32 s39, {XS}
    s_waitcnt lgkmcnt(0)
    s_barrier
    global_load_dwordx2 v[12:13], v6, s[8:9]{ld}
    global_load_dwordx4 v[16:19], v7, s[10:11]{ld}
    global_load_dwordx4 v[20:23], v7, s[10:11] offset:1024{ld}
    global_load_dwordx2 v[72:73], v8, s[8:9]{ld}
    global_load_dwordx4 v[64:67], v9, s[10:11]{ld}
    global_load_dwordx4 v[68:71], v9, s[10:11] offset:1024{ld}
    """)
    sets = [dict(d=10,s=11,L=32,T=33,A=35,R=36,U=39,sh=12,e0=16,e1=20,B=43,P=48,C=40,W=41),
            dict(d=60,s=61,L=62,T=63,A=76,R=77,U=78,sh=72,e0=64,e1=68,B=79,P=80,C=82,W=83)]
    for i,z in enumerate(sets):
        a(f"""
    s_waitcnt vmcnt({9-i})
    v_mul_u32_u24 v{z['L']}, {MAGICB}, v{z['d']}
    v_lshrrev_b32 v{z['L']}, 23, v{z['L']}
    v_min_u32 v{z['L']}, {NBLK-1}, v{z['L']}
    v_and_b32 v{z['A']}, 7, v{z['L']}
    v_lshrrev_b32 v{z['T']}, 3, v{z['L']}
    v_lshl_add_u32 v{z['A']}, v{z['A']}, 5, v{z['T']}
    v_lshlrev_b32 v{z['A']}, 2, v{z['A']}
    ds_add_rtn_u32 v{z['R']}, v{z['A']}, v3
    """)
    a(f"s_waitcnt vmcnt(6)")
    MB = (27<<20)//R0
    SW = lambda z: f"""v_subrev_u32 v{z['L']}, s38, v{z['U']}
    v_cmp_gt_u32 vcc, s39, v{z['L']}
    v_subrev_u32 v{z['L']}, s39, v{z['U']}
    v_min_u32 v{z['L']}, v{z['L']}, v{z['U']}
    v_add_u32 v{z['L']}, s38, v{z['L']}
    v_cndmask_b32 v{z['U']}, v{z['U']}, v{z['L']}, vcc""" if swap else ""
    for z in sets:
        w10 = z['sh']+2; w11 = z['sh']+3
        a(f"""
    v_mad_u32_u24 v{z['T']}, v{z['L']}, s29, 15
    v_lshrrev_b32 v{z['T']}, 4, v{z['T']}
    v_sub_u32 v{z['T']}, v{z['d']}, v{z['T']}
    v_and_b32 v{z['L']}, 7, v{z['L']}
    v_mul_u32_u24 v{z['L']}, {XS}, v{z['L']}
    v_sub_u32 v{z['U']}, v{z['s']}, v{z['L']}
    v_add_u32 v{z['L']}, {N}, v{z['U']}
    v_min_u32 v{z['U']}, v{z['U']}, v{z['L']}
    {SW(z)}
    v_mul_u32_u24 v{z['U']}, {MB}, v{z['U']}
    v_lshrrev_b32 v{z['U']}, 20, v{z['U']}
    v_subrev_u32 v{z['L']}, 20, v{z['T']}
    v_min_u32 v{w11}, v{z['L']}, v{z['T']}
    v_min_u32 v{w11}, 19, v{w11}
    v_lshrrev_b32 v{z['L']}, 2, v{w11}
    v_add_u32 v{z['L']}, 27, v{z['L']}
    v_cmp_gt_u32 vcc, 27, v{z['U']}
    v_lshlrev_b32 v{w11}, 2, v{w11}
    v_and_b32 v{w10}, 0x3fff, v{z['s']}
    v_cndmask_b32 v{z['U']}, v{z['L']}, v{z['U']}, vcc
    v_cmp_le_u32 vcc, 20, v{z['T']}
    v_add_u32 v{z['L']}, 32, v{z['U']}
    v_lshlrev_b32 v{z['C']}, 4, v{z['A']}
    v_cndmask_b32 v{z['U']}, v{z['U']}, v{z['L']}, vcc
    v_add_u32 v{z['A']}, s19, v{z['A']}
    v_or_b32 v{z['U']}, 64, v{z['U']}
    v_lshl_or_b32 v{w10}, v{z['U']}, 25, v{w10}
    """)
    a(f"""
    s_waitcnt lgkmcnt(0)
    s_barrier
    ds_read_b128 v[44:47], v26
    ds_read_b32 v37, v2
    v_add_u32 v28, s19, v2
    v_lshlrev_b32 v29, 9, v0
    s_mul_i32 s19, s2, {CH_STRIDE}
    """)
    for z in sets:
        a(f"""
    v_and_b32 v{z['L']}, 3, v{z['R']}
    v_lshl_add_u32 v{z['C']}, v{z['L']}, 4, v{z['C']}
    v_and_b32 v{z['L']}, 12, v{z['R']}
    v_add_u32 v{z['C']}, v{z['L']}, v{z['C']}
    v_cmp_lt_u32 vcc, 15, v{z['R']}
    v_mov_b32 v{z['L']}, 0x40000
    v_lshl_add_u32 v{z['sh']+3}, s19, 4, v{z['sh']+3}
    v_cndmask_b32 v{z['C']}, v{z['C']}, v{z['L']}, vcc
    """)
    a(f"""
    s_waitcnt lgkmcnt(1)
    v_add_u32 v53, v44, v45
    v_add_u32 v54, v53, v46
    v_add_u32 v38, v54, v47
    v_mov_b32 v55, v38
    s_nop 0
    v_add_u32_dpp v38, v38, v38 row_shr:1 row_mask:0xf bank_mask:0xf
    s_nop 1
    v_add_u32_dpp v38, v38, v38 row_shr:2 row_mask:0xf bank_mask:0xf
    s_nop 1
    v_add_u32_dpp v38, v38, v38 row_shr:4 row_mask:0xf bank_mask:0xf
    s_nop 1
    v_add_u32_dpp v38, v38, v38 row_shr:8 row_mask:0xf bank_mask:0xf
    s_nop 1
    v_add_u32_dpp v38, v38, v38 row_bcast:15 row_mask:0xa bank_mask:0xf
    s_nop 1
    v_add_u32_dpp v38, v38, v38 row_bcast:31 row_mask:0xc bank_mask:0xf
    v_sub_u32 v56, v38, v55
    v_add_u32 v57, v56, v44
    v_add_u32 v58, v56, v53
    v_add_u32 v59, v56, v54
    ds_write_b128 v27, v[56:59] offset:{L_TAB}
    ds_read_b32 v43, v35 offset:{L_TAB}
    ds_read_b32 v79, v76 offset:{L_TAB}
    ds_read_b32 v30, v28 offset:{L_TAB}
    s_waitcnt lgkmcnt(1)
    """)
    for z in sets:
        a(f"""
    v_add_u32 v{z['B']}, v{z['B']}, v{z['R']}
    v_lshl_or_b32 v{z['W']}, v{z['B']}, 14, v{z['sh']+2}
    v_mul_u32_u24 v{z['B']}, {REC}, v{z['B']}
    ds_bpermute_b32 v{z['P']}, v24, v{z['B']}
    ds_bpermute_b32 v{z['P']+1}, v24, v{z['B']} offset:128
    ds_write_b32 v{z['C']}, v{z['W']} offset:{L_CELL}
    v_lshl_add_u32 v{z['sh']+3}, v{z['B']}, 4, v{z['sh']+3}
    """)
    a(f"""
    s_cmp_ge_u32 s18, 4
    s_waitcnt lgkmcnt(1)
    v_lshl_or_b32 v30, v37, 16, v30
    """)
    for z in sets:
        a(f"""
    v_add_u32 v{z['P']}, v{z['P']}, v25
    v_add_u32 v{z['P']+1}, v{z['P']+1}, v25
    """)
    for i,z in enumerate(sets):
        b0 = 3*(1-i)
        a(f"""
    s_waitcnt vmcnt({b0+2})
    ds_write_b128 v{z['B']}, v[{z['sh']}:{z['sh']+3}] offset:{L_REC+32}
    s_waitcnt vmcnt({b0+1})
    ds_write_b128 v{z['P']}, v[{z['e0']}:{z['e0']+3}] offset:{L_REC}
    s_waitcnt vmcnt({b0})
    ds_write_b128 v{z['P']+1}, v[{z['e1']}:{z['e1']+3}] offset:{L_REC}
    """)
    a(f"""
    s_cbranch_scc1 ka_nohdr
    buffer_store_dword v30, v29, s[20:23], s28 offen
ka_nohdr:
    v_lshrrev_b32 v6, 2, v0
    v_lshlrev_b32 v6, 13, v6
    v_and_b32 v7, 0x30, v5
    v_or_b32 v6, v6, v7
    v_add_u32 v7, {L_REC}, v5
    s_add_u32 s31, s30, {160*8192}
    s_cmp_ge_u32 s18, 6
    s_waitcnt lgkmcnt(0)
    s_barrier
    ds_read_b128 v[36:39], v5 offset:{L_CELL}
    ds_read_b128 v[40:43], v5 offset:{L_CELL+10240}
    """)
    for r in range(6):
        a(f"ds_read_b128 v[{12+4*r}:{15+4*r}], v7 offset:{r*10240}")
    a(f"""
    s_waitcnt lgkmcnt(6)
    buffer_store_dwordx4 v[36:39], v6, s[20:23], s30 offen{cst}
    s_cbranch_scc1 ka_noc2
    buffer_store_dwordx4 v[40:43], v6, s[20:23], s31 offen{cst}
ka_noc2:
    """)
    for r in range(6):
        a(f"s_waitcnt lgkmcnt({5-r})")
        a(f"buffer_store_dwordx4 v[{12+4*r}:{15+4*r}], v5, s[20:23], s19 offen{rst}")
        if r < 5: a("s_addk_i32 s19, 10240")
    a(f"""
    s_endpgm
ka_pf:
    s_waitcnt lgkmcnt(0)
    s_and_b32 s34, s2, 7
    s_mul_i32 s34, s34, {XS*2048}
    s_add_u32 s24, s16, s34
    s_addc_u32 s25, s17, 0
    s_and_b32 s25, s25, 0xffff
    s_mov_b32 s26, {KN*2048}
    s_mov_b32 s27, 0x20000
    s_bfe_u32 s30, s2, 0x40003
    v_lshlrev_b32 v40, 7, v0
    s_mul_i32 s30, s30, {HL*128}
    {CPF}
    s_cmp_lg_u32 s18, 9
    s_cbranch_scc1 ka_pf1
    s_bitcmp1_b32 s2, 3
    s_cbranch_scc1 ka_pf1
    s_and_b32 s35, s2, 7
    s_bfe_u32 s36, s2, 0x30004
    s_lshl_b32 s37, s35, 14
    s_lshr_b32 s38, s36, 1
    s_lshl_b32 s38, s38, 7
    s_add_u32 s37, s37, s38
    s_and_b32 s38, s36, 1
    s_lshl2_add_u32 s37, s38, s37
    v_lshrrev_b32 v44, 4, v1
    v_lshlrev_b32 v44, 11, v44
    v_and_b32 v45, 7, v1
    v_lshl_add_u32 v44, v45, 4, v44
    v_and_b32 v45, 8, v1
    v_add3_u32 v44, v44, v45, s37
    v_add_u32 v45, 0x2000, v44
    """)
    for j in range(8):
        a(f"global_load_dword v{48+j}, v{44+(j>>2)}, s[32:33] offset:{(j&3)*512}")
    a(f"""
    s_lshr_b32 s36, s36, 1
    s_lshl3_add_u32 s36, s36, s35
    s_lshl1_add_u32 s36, s36, s38
    s_lshl_b32 s36, s36, 11
    s_add_u32 s36, s36, {WS_WT}
    v_lshl_add_u32 v46, v1, 4, s36
    s_mov_b32 s38, 0x05040100
    s_mov_b32 s39, 0x07060302
    s_waitcnt vmcnt(0)
    """)
    for i in range(4):
        a(f"v_perm_b32 v{56+i}, v{49+2*i}, v{48+2*i}, s38")
        a(f"v_perm_b32 v{60+i}, v{49+2*i}, v{48+2*i}, s39")
    a(f"""
    global_store_dwordx4 v46, v[56:59], s[14:15]
    global_store_dwordx4 v46, v[60:63], s[14:15] offset:1024
ka_pf1:
    """)
    if prefetch:
        n1 = min(10, HL//64); n2 = max(0, HL//64-10)
        a(f"""
    s_cmp_ge_u32 s18, {n1}
    s_cbranch_scc1 ka_end
    buffer_load_dword v42, v40, s[24:27], s30 offen{pfp}
    s_cmp_ge_u32 s18, {n2}
    s_cbranch_scc1 ka_end
    s_add_u32 s30, s30, {640*128}
    buffer_load_dword v43, v40, s[24:27], s30 offen{pfp}
    """)
    a(f"""
    s_endpgm
ka_extra:
    s_cmp_lg_u32 s2, {NCHUNK}
    s_cbranch_scc1 ka_end
    s_cmp_ge_u32 s18, 6
    s_cbranch_scc1 ka_end
    s_load_dwordx4 s[36:39], s[0:1], 40
    s_lshl_b32 s34, s18, 11
    s_add_u32 s34, s34, {WS_WRF}
    v_lshl_add_u32 v46, v1, 4, s34
    s_cmp_eq_u32 s18, 5
    s_cbranch_scc1 ka_dum
    s_cmp_eq_u32 s18, 4
    s_cbranch_scc1 ka_cg
    v_lshrrev_b32 v44, 5, v1
    v_lshlrev_b32 v44, 12, v44
    v_and_b32 v45, 31, v1
    v_lshl_add_u32 v44, v45, 1, v44
    v_lshl_add_u32 v44, s18, 7, v44
    s_waitcnt lgkmcnt(0)
    """)
    for j in range(16):
        a(f"global_load_ushort v{48+j}, v44, s[38:39] offset:{(j&7)*512+(j>>3)*64}")
    a(f"""
    s_branch ka_pk
ka_cg:
    v_and_b32 v44, 3, v1
    v_lshlrev_b32 v44, 1, v44
    s_waitcnt lgkmcnt(0)
    """)
    for j in range(16):
        a(f"global_load_ushort v{48+j}, v44, s[36:37] offset:{j*8}")
    a("ka_pk:")
    a("s_waitcnt vmcnt(0)")
    for i in range(8):
        a(f"v_lshl_or_b32 v{64+i}, v{49+2*i}, 16, v{48+2*i}")
    a(f"""
    global_store_dwordx4 v46, v[64:67], s[14:15]
    global_store_dwordx4 v46, v[68:71], s[14:15] offset:1024
    s_endpgm
ka_dum:
    v_mov_b32 v46, {WS_DUM}
    v_mov_b32 v48, 0
    v_mov_b32 v49, 0
    v_mov_b32 v50, 0
    v_mov_b32 v51, 0
    v_mov_b32 v52, 0x3fff
    v_mov_b32 v53, {WS_DUM<<4}
    s_mov_b64 exec, 1
    s_waitcnt lgkmcnt(0)
    global_store_dwordx4 v46, v[48:51], s[14:15]
    global_store_dwordx4 v46, v[48:51], s[14:15] offset:16
    global_store_dwordx4 v46, v[50:53], s[14:15] offset:32
ka_end:
    s_endpgm
    """)
    a.end_kernel(name, 88, 40)
    a.launch(name, 256, 640, L_END)
```

```python
from layout8 import *

L_CNT=0; L_MORE=272; L_DONE=276; L_ALLOC=280; L_DIFF=288; L_ZERO=320; L_LIST=512
SSTR=576
NR=5; LPR=4

vTR=1; vE=2; vEAa=3; vX=4; vSh=8; vAop=12; vSHa=18; vSl=19; vB=20; vD=28; vRW=44; vEA1=60; vEA2=64
vW1=68; vW2=72; vCG=76; vSa=84; vSd=85; vKc=86; vAW=87; vAcc=88
NV=168
sX=4; sLOW=8; sOUT=12
sWv=16; sQ=17; sG=18; sLeft=19; sLim=20; sMore=21; sN0=22; sTot=23; sDone=24; sTo=25; sA=28; sStart=32; sEnd=33; sRem=34; sOR=35; sM=40; sRet=48; sK=58; sP=59; sC=84; sF=46; sAc=47; sBar=31
sT=64

def gen_main(a, rld='', stamps=False, exp='', ost=' sc0 sc1', KN=XS, pfm='', wld='', xld='', prio=3, slp=2, R=6, wd=1, warm=0, nref=0, span=100, tw=2, w1=1, steer=0, sper=4, nored=0, gprio=0, pm=0, ntouch=2, pfs=0, bd=2, ed=0, KM=0, pol_s=3):
    name="main_kernel"
    PAD=2*R+8
    QSTR=16*SSTR+R*1024; GSTR=4*QSTR; RB=163840-2*GSTR
    CAP=(RB-L_LIST-8*PAD-16)//52
    L_RAW=(L_LIST+4*(CAP+2*PAD)+15)//16*16
    L_TAB=RB+1024
    assert L_RAW+48*CAP <= RB and RB % 256 == 0 and CAP >= 512 and 24 % R == 0 and not pm and not steer
    a.begin_kernel(name)
    def st(i):
        if stamps == 2 and i in (5,6): return f"s_memrealtime s[{sT+2*i}:{sT+2*i+1}]\ns_memtime s[{sT+2*(i-3)}:{sT+2*(i-3)+1}]"
        return f"s_memrealtime s[{sT+2*i}:{sT+2*i+1}]" if (stamps and (stamps == 1 or i in (0,5,6,7))) else ""
    LO = f"s[{sLOW}:{sLOW+3}]"
    vWd=20; vK=25; vRk=30; vG=36
    vRi=41; vN=42; vNs=43; vAl=44; vLane=46; vL4=47; vOne=48; vPadv=49; vDum=50; vC0=52; vC1=53; vC2=54; u0=55; u1=56; u2=57; vCb=58; vTt_=59; vJ=35
    def pf():
        if KN+KM >= XS or pfs: return
        assert not KM
        per = ((XS-KN)*16+31)//32; nw = (per+63)//64
        assert nw <= 12
        a(f"""
    s_cmp_ge_u32 s{sWv}, {nw}
    s_cbranch_scc1 mn_nopf
    s_lshr_b32 s52, s2, 3
    s_mul_i32 s52, s52, {per}
    s_and_b32 s53, s2, 7
    s_mul_i32 s53, s53, {XS*16}
    s_add_u32 s52, s52, s53
    s_add_u32 s52, s52, {KN*16}
    s_lshl_b32 s52, s52, 7
    s_mov_b32 s36, s50
    s_and_b32 s37, s51, 0xffff
    s_mov_b32 s38, {N*2048}
    s_mov_b32 s39, 0x20000
    v_lshlrev_b32 v{u0}, 7, v0
    buffer_load_dword v{vSd}, v{u0}, s[36:39], s52 offen{pfm}
mn_nopf:
""")
    CELL = f"""
    v_lshrrev_b32 v{u1}, 6, v0
    v_lshlrev_b32 v{u0}, 1, v0
    v_and_b32 v{u0}, 0x78, v{u0}
    v_or_b32 v{u0}, v{u0}, v{u1}
    v_mul_u32_u24 v{vCb}, {CH_STRIDE}, v{u0}
    v_lshl_or_b32 v{u0}, v{u1}, 4, v{u0}
    v_and_b32 v{u0}, 0xffffff87, v{u0}
"""
    a(f"""
    {st(0)}
    s_cmp_ge_u32 s2, {NBLK}
    s_cbranch_scc1 mn_end
    s_load_dwordx2 s[54:55], s[0:1], 80
    s_load_dwordx2 s[50:51], s[0:1], 0
    s_load_dwordx2 s[56:57], s[0:1], 64
    v_lshrrev_b32 v{u1}, 6, v0
    v_lshlrev_b32 v{u0}, 1, v0
    v_readfirstlane_b32 s{sWv}, v{u1}
    v_and_b32 v{u0}, 0x78, v{u0}
    v_or_b32 v{u0}, v{u0}, v{u1}
    v_mul_u32_u24 v{vCb}, {CH_STRIDE}, v{u0}
    v_and_b32 v{u1}, 0x200, v0
    v_or_b32 v{u0}, v{u0}, v{u1}
    v_cmp_gt_u32 vcc, {NCHUNK}, v{u0}
    v_bfrev_b32 v{u1}, 2
    v_lshlrev_b32 v{u0}, 4, v0
    v_and_b32 v{u2}, 0x1fc, v0
    v_cndmask_b32 v{u0}, v{u1}, v{u0}, vcc
    v_cndmask_b32 v{u2}, v{u1}, v{u2}, vcc
    s_and_b32 s48, s2, 7
    s_lshr_b32 s47, s2, 3
    s_lshl_b32 s{sTo}, s48, 5
    s_add_u32 s{sTo}, s{sTo}, s47
    s_lshl_b32 s49, s{sTo}, 13
    s_add_u32 s49, s49, {WS_C}
    s_lshl_b32 s{sTo}, s{sTo}, 9
    s_add_u32 s{sTo}, s{sTo}, {WS_T}
    s_mov_b32 s{sLOW+2}, {WS_LOW}
    s_mov_b32 s{sLOW+3}, 0x20000
    s_and_b32 s{sQ}, s{sWv}, 3
    v_and_b32 v{vLane}, 63, v0
    s_waitcnt lgkmcnt(0)
    s_mov_b32 s{sLOW}, s54
    s_and_b32 s{sLOW+1}, s55, 0xffff
    buffer_load_dwordx4 v[{vWd}:{vWd+3}], v{u0}, {LO}, s49 offen{rld}
    buffer_load_dword v{vTt_}, v{u2}, {LO}, s{sTo} offen
    s_cmp_ge_u32 s{sWv}, 8
    s_cbranch_scc1 gm_touch
gm_touch_back:
    v_lshlrev_b32 v{u1}, 2, v0
    v_and_b32 v{u1}, 0x1fc, v{u1}
    v_mov_b32 v{vWd+4}, 0
    ds_write_b32 v{u1}, v{vWd+4}
    s_bfe_u32 s{sG}, s{sWv}, 0x10002
    s_lshl_b32 s53, s{sQ}, 7
    s_add_u32 s{sX}, s50, s53
    s_addc_u32 s{sX+1}, s51, 0
    s_and_b32 s{sX+1}, s{sX+1}, 0xffff
    s_or_b32 s{sX+1}, s{sX+1}, 0x08000000
    s_movk_i32 s{sX+2}, {N}
    s_mov_b32 s{sX+3}, 0x20000
    s_mul_i32 s{sN0}, s2, 625
    s_add_u32 s52, s{sN0}, {625+15}
    s_add_u32 s{sN0}, s{sN0}, 15
    s_lshr_b32 s{sN0}, s{sN0}, 4
    s_lshr_b32 s52, s52, 4
    s_mov_b32 s{sOUT}, s56
    s_and_b32 s{sOUT+1}, s57, 0xffff
    s_lshl_b32 s{sOUT+2}, s52, 11
    s_mov_b32 s{sOUT+3}, 0x20000
    s_and_b32 s52, s{sWv}, 7
    s_mul_i32 s{sM}, s52, {QSTR}
    s_add_u32 s{sM}, s{sM}, {RB}
    v_lshl_add_u32 v{vAW}, v{vLane}, 3, s{sM}
    s_add_u32 s{sM}, s{sM}, {16*SSTR}
    s_waitcnt lgkmcnt(0)
    s_barrier
    """)
    for r in range(1, R): a(f"s_add_u32 s{sM+r}, s{sM}, {1024*r}")
    a(f"""
    s_movk_i32 s{sLim}, {LPR*NR}
    s_mov_b32 s{sDone}, 0
    v_and_b32 v{u0}, 3, v0
    v_bfe_u32 v{u1}, v0, 2, 2
    v_bfe_u32 v{u2}, v0, 4, 1
    v_bfe_u32 v{vC1}, v0, 5, 1
    v_lshlrev_b32 v{vTR}, 3, v{u0}
    v_lshl_add_u32 v{vTR}, v{u2}, 5, v{vTR}
    v_lshl_add_u32 v{vTR}, v{u1}, 6, v{vTR}
    v_lshl_add_u32 v{vTR}, v{vC1}, 8, v{vTR}
    v_add_u32 v{vTR}, s{sM}, v{vTR}
    v_lshlrev_b32 v{vX+1}, 4, v{u0}
    v_lshl_add_u32 v{vX+1}, v{u2}, 6, v{vX+1}
    v_lshl_add_u32 v{vX+1}, v{u1}, 9, v{vX+1}
    v_mov_b32 v{vX+3}, v{vX+1}
    """)
    CONST = f"""
    v_and_b32 v{vLane}, 63, v0
    v_mov_b32 v{vOne}, 1
    v_lshlrev_b32 v{vL4}, 2, v{vLane}
    v_bfe_u32 v{vE}, v0, 5, 1
    v_bfe_u32 v{vEAa}, v0, 3, 2
    v_and_b32 v{vSHa}, 3, v0
    v_lshl_add_u32 v{vEAa}, v{vEAa}, 2, v{vSHa}
    v_mul_u32_u24 v{vPadv}, {PAD}, v{vE}
    v_bfe_u32 v{u0}, v0, 2, 1
    v_lshlrev_b32 v{vKc}, 4, v{vE}
    v_lshl_or_b32 v{vKc}, v{u0}, 18, v{vKc}
    v_lshrrev_b32 v{u0}, 2, v{vLane}
    v_lshl_add_u32 v{vSHa}, v{vSHa}, 4, v{u0}
    v_mov_b32 v{vDum}, {((L_ZERO//16)<<16)|0x3fff}
    v_and_b32 v{vJ}, 3, v0
    v_min_u32 v{vAl}, 1, v{vLane}
    v_lshlrev_b32 v{vAl}, 18, v{vAl}
"""
    a(CONST)
    for i in range(0, 40, 2): a(f"v_mov_b64 v[{vAcc+i}:{vAcc+i+1}], 0")
    a(f"""
    s_mov_b32 s52, 0x110000
    s_cmp_ge_u32 s{sWv}, 8
    s_cbranch_scc1 gm_pre
    s_waitcnt vmcnt(0)
    {st(1)}
    v_cmp_le_u32 vcc, s52, v{vTt_}
    s_cbranch_vccnz mn_w5
mn_count:
    v_lshrrev_b32 v{vN}, 16, v{vTt_}
    v_subrev_u32 v{vN}, s{sDone}, v{vN}
    v_med3_i32 v{vN}, v{vN}, 0, s{sLim}
    v_mov_b32 v{vNs}, v{vN}
    """)
    def rounds(tag, body):
        for r in range(NR):
            a(f"v_cmpx_gt_i32 vcc, 0, v{vWd+r}")
            a(f"s_cbranch_execz mn_{tag}_done")
            body(r)
        a(f"mn_{tag}_done:")
        a("s_mov_b64 exec, -1")
    fill = []
    for r in range(NR):
        fill += [f"v_lshrrev_b32 v{vK+r}, 23, v{vWd+r}", f"v_and_b32 v{vK+r}, 0xfc, v{vK+r}"]
    for op in ("row_shr:4 row_mask:0xf","row_shr:8 row_mask:0xf","row_bcast:15 row_mask:0xa","row_bcast:31 row_mask:0xc"):
        a(fill.pop(0)); a(fill.pop(0))
        a(f"v_add_u32_dpp v{vNs}, v{vNs}, v{vNs} {op} bank_mask:0xf")
    a(fill.pop(0)); a(fill.pop(0))
    a(f"""
    v_readlane_b32 s52, v{vNs}, 63
    v_sub_u32 v{vRi}, v{vNs}, v{vN}
    v_add_u32 v{vRi}, v{vRi}, v{vJ}
    v_mov_b32 v{u0}, s52
    ds_add_rtn_u32 v{u0}, v{vAl}, v{u0} offset:{L_ALLOC}
    """)
    def cnt(r):
        a(f"ds_add_rtn_u32 v{vRk+r}, v{vK+r}, v{vOne}")
        a(f"v_bfe_u32 v{vG+r}, v{vWd+r}, 14, 11")
        a(f"v_mad_u32_u24 v{vG+r}, v{vG+r}, {REC}, v{vCb}")
    rounds("cn", cnt)
    a(f"""
    s_waitcnt lgkmcnt(0)
    s_nop 2
    v_readfirstlane_b32 s52, v{u0}
    s_min_u32 s52, s52, {CAP}
    v_add_u32 v{vRi}, s52, v{vRi}
    v_lshlrev_b32 v{u0}, 2, v{vRi}
    """)
    def tab(r):
        a(f"ds_write_b32 v{u0}, v{vG+r} offset:{L_TAB+4*LPR*r}")
    rounds("tb", tab)
    a(f"""
    s_lshl_b32 s52, s{sQ}, 11
    s_add_u32 s52, s52, {WS_WRF}
    s_mov_b32 s53, {WS_CGF}
    v_lshlrev_b32 v{vC0}, 4, v{vLane}
    buffer_load_dwordx4 v[{vW1}:{vW1+3}], v{vC0}, {LO}, s52 offen
    buffer_load_dwordx4 v[{vW2}:{vW2+3}], v{vC0}, {LO}, s52 offen offset:1024
    buffer_load_dwordx4 v[{vCG}:{vCG+3}], v{vC0}, {LO}, s53 offen
    buffer_load_dwordx4 v[{vCG+4}:{vCG+7}], v{vC0}, {LO}, s53 offen offset:1024
mn_cbar:
    """)
    pf()
    a(f"""
    s_lshl_b32 s52, s{sG}, 5
    s_add_u32 s53, s52, 31
    v_mov_b32 v{vC0}, 0
    s_movk_i32 s48, 0x3fff
    s_movk_i32 s49, {L_RAW//16}
    s_cmp_ge_u32 s{sWv}, 8
    s_waitcnt lgkmcnt(0)
    s_barrier
    {st(3)}
    ds_read_b32 v{vC1}, v{vL4} offset:{L_CNT}
    ds_read_b32 v{vC0}, v{vC0} offset:{L_MORE}
    s_cbranch_scc1 gm_raw
gm_raw_back:
    v_mad_u32_u24 v{vRi}, v{vRi}, 3, s49
    v_lshlrev_b32 v{vRi}, 16, v{vRi}
    """)
    fill = []
    for r in range(NR):
        fill += [f"v_and_or_b32 v{vG+r}, v{vWd+r}, s48, v{vRi}", f"v_add_u32 v{vRi}, {(3*LPR)<<16}, v{vRi}"]
    a(f"""
    s_waitcnt lgkmcnt(1)
    v_mov_b32 v{vC2}, v{vC1}
    v_sub_u32 v{vC1}, v{vPadv}, v{vC1}
    s_nop 0
    """)
    for op in ("row_shr:1 row_mask:0xf","row_shr:2 row_mask:0xf","row_shr:4 row_mask:0xf","row_shr:8 row_mask:0xf","row_bcast:15 row_mask:0xa","row_bcast:31 row_mask:0xc"):
        a(f"v_add_u32_dpp v{vC2}, v{vC2}, v{vC2} {op} bank_mask:0xf")
        if fill: a(fill.pop(0)); a(fill.pop(0))
    a(f"""
    v_add_u32 v{vC1}, v{vC1}, v{vC2}
    v_add_u32 v{vC2}, v{vC2}, v{vPadv}
    """)
    for r in range(NR):
        a(f"ds_bpermute_b32 v{vK+r}, v{vK+r}, v{vC1}")
    a(f"""
    v_readlane_b32 s{sTot}, v{vC2}, 63
    v_readlane_b32 s{sEnd}, v{vC2}, s53
    v_readlane_b32 s{sStart}, v{vC1}, s52
    s_cmp_gt_u32 s{sTot}, {CAP+PAD}
    s_cbranch_scc1 mn_ovf
    v_add_lshl_u32 v{u0}, s{sEnd}, v{vLane}, 2
    s_mov_b32 exec_lo, {(1<<PAD)-1}
    s_mov_b32 exec_hi, 0
    ds_write_b32 v{u0}, v{vDum} offset:{L_LIST}
    s_mov_b64 exec, -1
    s_waitcnt lgkmcnt(1)
    """)
    def w2(r):
        a(f"v_add_lshl_u32 v{vK+r}, v{vK+r}, v{vRk+r}, 2")
        a(f"ds_write_b32 v{vK+r}, v{vG+r} offset:{L_LIST}")
    rounds("w2", w2)
    vS0 = vRW
    a(f"""
    v_add_lshl_u32 v{vE}, s{sStart}, v{vE}, 2
    v_add_lshl_u32 v{vEAa}, s{sStart}, v{vEAa}, 2
    v_add_lshl_u32 v{vSHa}, s{sStart}, v{vSHa}, 2
    s_cmp_ge_u32 s{sWv}, 8
    v_readfirstlane_b32 s{sMore}, v{vC0}
    s_waitcnt lgkmcnt(0)
    s_barrier
    {st(4)}
    s_cbranch_scc1 gm_start
    """)
    for r in range(R+2): a(f"ds_read_u16 v{vS0+r}, v{vE} offset:{L_LIST+8*r}")
    a(f"""
    ds_read_u16 v{vSa}, v{vEAa} offset:{L_LIST+2}
    ds_read_u16 v{vSh}, v{vSHa} offset:{L_LIST+2}
    s_sub_u32 s53, s53, 4
    v_readlane_b32 s{sC}, v{vC2}, s53
    s_add_u32 s53, s53, 1
    v_readlane_b32 s{sC+1}, v{vC2}, s53
    s_add_u32 s53, s53, 1
    v_readlane_b32 s{sC+2}, v{vC2}, s53
    s_add_u32 s53, s53, 1
    v_readlane_b32 s{sC+3}, v{vC2}, s53
    s_waitcnt lgkmcnt(2)
    """)
    def XD(j): return f"buffer_load_dwordx4 v[{vX+2*j}:{vX+2*j+1}], s[{sX}:{sX+3}], 0 idxen offen{xld} lds"
    for r in range(R):
        a(f"s_mov_b32 m0, s{sM+r}")
        a(f"v_mov_b32 v{vX}, v{vS0+r}")
        a(XD(0))
    a(f"""
    v_mov_b32 v{vX}, v{vS0+R}
    v_mov_b32 v{vX+2}, v{vS0+R+1}
    s_sub_u32 s{sStart}, s{sStart}, 3
    s_sub_u32 s{sP}, s{sEnd}, s{sStart}
    s_lshr_b32 s{sP}, s{sP}, 2
    s_sub_u32 s{sC}, s{sC}, s{sStart}
    s_sub_u32 s{sC+1}, s{sC+1}, s{sStart}
    s_sub_u32 s{sC+2}, s{sC+2}, s{sStart}
    s_sub_u32 s{sC+3}, s{sC+3}, s{sStart}
    s_lshr_b32 s{sC}, s{sC}, 2
    s_lshr_b32 s{sC+1}, s{sC+1}, 2
    s_lshr_b32 s{sC+2}, s{sC+2}, 2
    s_lshr_b32 s{sC+3}, s{sC+3}, 2
    s_sub_u32 s{sC+4}, s{sP}, s{sC+3}
    s_sub_u32 s{sC+3}, s{sC+3}, s{sC+2}
    s_sub_u32 s{sC+2}, s{sC+2}, s{sC+1}
    s_sub_u32 s{sC+1}, s{sC+1}, s{sC}
    s_cmp_lg_u32 s{sMore}, 0
    s_cselect_b32 s{sLeft}, s{sP}, s{sC}
    s_mov_b32 s{sK}, 0
    s_mov_b32 s{sOR}, 0
    s_sub_i32 s{sRem}, s{sP}, {1+R//2}
    s_max_i32 s{sRem}, s{sRem}, 0
    s_cmp_lg_u32 s{sDone}, 0
    s_cbranch_scc1 mn_noz
    """)
    for i in range(40, 80, 2): a(f"v_mov_b64 v[{vAcc+i}:{vAcc+i+1}], 0")
    a("mn_noz:")
    if nref:
        a(f"""
    s_sub_i32 s{sF}, {nref+PAD}, s{sTot}
    s_max_i32 s{sF}, s{sF}, 0
    s_min_i32 s{sF}, s{sF}, {span}
    s_mul_i32 s{sF}, s{sF}, {(2**32-1)//span}
    s_mov_b32 s{sAc}, 0
    """)
    def ea_reads():
        a(f"v_lshl_add_u32 v{vSa}, v{vSa}, 4, v{vKc}")
        a(f"v_xor_b32 v{vSd}, 0x40000, v{vSa}")
        a(f"ds_read_b128 v[{vEA1}:{vEA1+3}], v{vSa}")
        a(f"ds_read_b128 v[{vEA2}:{vEA2+3}], v{vSd}")
    def sh_read():
        a(f"v_lshlrev_b32 v{vSh}, 4, v{vSh}")
        a(f"ds_read_b128 v[{vSh}:{vSh+3}], v{vSh} offset:32")
    def mk_sl():
        a(f"v_and_b32 v{vSh+3}, 0xff, v{vSh+3}")
        a(f"v_or_b32 v{vSh+3}, 0xc000, v{vSh+3}")
        a(f"v_lshlrev_b32 v{vSh+2}, 16, v{vSh+3}")
    def mk_sl2():
        a(f"v_or_b32_dpp v{vSl}, v{vSh+2}, v{vSh+3} row_shl:4 row_mask:0xf bank_mask:0xf bound_ctrl:0")
    def a_mfma():
        for u in range(4):
            a(f"v_mfma_f32_4x4x4_16b_bf16 v[{vD+4*u}:{vD+4*u+3}], v[{vSh}:{vSh+1}], v[{vCG+2*u}:{vCG+2*u+1}], 0")
    def a_cvt():
        for h in range(2):
            for i in range(3):
                a(f"v_cvt_pk_bf16_f32 v{vAop+2*i+h}, v{vD+8*h+i}, v{vD+8*h+4+i}")
    def rw_mfma():
        a(f"v_mfma_f32_32x32x16_bf16 v[{vRW}:{vRW+15}], v[{vEA1}:{vEA1+3}], v[{vW1}:{vW1+3}], 0")
        a(f"v_mfma_f32_32x32x16_bf16 v[{vRW}:{vRW+15}], v[{vEA2}:{vEA2+3}], v[{vW2}:{vW2+3}], v[{vRW}:{vRW+15}]")
    def trreads(slot, h):
        for j in range(2):
            a(f"ds_read_b64_tr_b16 v[{vB+4*h+2*j}:{vB+4*h+2*j+1}], v{vTR} offset:{slot*1024+j*512}")
    if prio: a(f"s_setprio {prio}")
    a(f"s_waitcnt vmcnt({R}) lgkmcnt(0)")
    a("s_barrier")
    sh_read(); ea_reads()
    a("s_waitcnt lgkmcnt(2)")
    a_mfma()
    mk_sl()
    a(f"s_waitcnt lgkmcnt(0)")
    rw_mfma()
    mk_sl2()
    a_cvt()
    a(f"s_sub_u32 s{sLeft}, s{sLeft}, 1")
    a("s_cbranch_scc1 mn_st12")
    a("mn_st12_back:")
    a(f"s_waitcnt vmcnt({R-2})")
    trreads(0,0); trreads(1,1)
    a(f"s_set_gpr_idx_on s{sM}, gpr_idx(SRC2,DST)")
    a(f"s_mov_b32 m0, s{sM}")
    a("s_waitcnt lgkmcnt(0)")
    a(XD(0))
    a(f"s_mov_b32 m0, s{sM+1}")
    a(st(5) if st(5) else "s_nop 0")
    a(XD(1))
    if stamps == 3: a(f"s_mov_b32 s{sT+6}, 0")
    a("mn_loop:")
    for d in range(12):
        b = d >> 2; k0 = 4*(d & 3)
        for j in range(4):
            a(f"v_mfma_f32_4x4x4_16b_bf16 v[{vD+4*j}:{vD+4*j+3}], v[{vAop+2*b}:{vAop+2*b+1}], v[{vB+2*j}:{vB+2*j+1}], 0 cbsz:4 abid:{k0+j}")
        if pm: a("s_setprio 0")
        s0 = (2*d+2) % R; s1 = (2*d+3) % R
        a(f"ds_read_u16 v{vX}, v{vE} offset:{L_LIST+8*(2*d+2+R)}")
        a(f"ds_read_u16 v{vX+2}, v{vE} offset:{L_LIST+8*(2*d+3+R)}")
        for j in range(2): a(f"v_readlane_b32 s{sA+j}, v{vSl}, {4*(k0+2*j)+b}")
        if steer and d % sper == 0: a(f"ds_add_rtn_u32 v{vSh+2}, v{vSa}, v{vSd} offset:{L_DIFF}")
        if (d & 3) == 1: a(f"ds_read_u16 v{vSa}, v{vEAa} offset:{L_LIST+2+64*(b+1)}")
        if (d & 3) == 2: ea_reads()
        if d == 8: a(f"ds_read_u16 v{vSh}, v{vSHa} offset:{L_LIST+2+48*4}")
        if d == 9: sh_read()
        if w1: a(f"s_waitcnt vmcnt({R-1})"); trreads(s0, 0)
        a(f"s_waitcnt vmcnt({R-2})")
        if not w1: trreads(s0, 0)
        trreads(s1, 1)
        if not nored:
            a(f"s_sub_u32 s{sRem}, s{sRem}, 1")
            a(f"s_cmov_b32 s{sOR}, 0x30000")
        for j in range(4):
            a(f"s_mov_b32 m0, s{sA+j//2}" if j%2 == 0 else f"s_lshr_b32 m0, s{sA+j//2}, 16")
            for w in range(4): a(f"v_fmac_f32 v{vAcc+w}, v{vD+4*j+w}, v{vRW+k0+j}")
        a(f"s_or_b32 m0, s{sM+s0}, s{sOR}")
        if pm and (d & 3) == 3: a("s_setprio 3")
        if d == 11: a_mfma()
        if (d & 3) == 3: rw_mfma()
        if pm and (d & 3) == 3: a("s_setprio 0")
        if pm == 1:
            a(f"s_cbranch_vccz mn_pq{d}")
            a("s_setprio 3")
            a(f"mn_pq{d}:")
        if nref:
            a(f"s_add_u32 s{sAc}, s{sAc}, s{sF}")
            a(f"s_cbranch_scc0 mn_th{d}")
            a(f"s_waitcnt vmcnt({tw})")
            a(f"mn_th{d}:")
        a("s_waitcnt lgkmcnt(2)")
        a(XD(0))
        a(f"s_or_b32 m0, s{sM+s1}, s{sOR}")
        a("s_waitcnt lgkmcnt(0)")
        a(XD(1))
        if d == 10: mk_sl()
        if d == 11:
            a_cvt()
            mk_sl2()
            a(f"v_add_u32 v{vE}, {48*4}, v{vE}")
            a(f"v_add_u32 v{vEAa}, {48*4}, v{vEAa}")
            a(f"v_add_u32 v{vSHa}, {48*4}, v{vSHa}")
        if steer and d % sper == 0:
            a(f"v_readfirstlane_b32 s27, v{vSh+2}")
        if steer and d % sper == 0 and pm:
            a(f"s_xor_b32 s27, s27, s26")
            a(f"s_cmp_ge_i32 s27, 0")
            a(f"s_cselect_b64 vcc, -1, 0")
        if steer and d % sper == 0 and not pm:
            a(f"s_setprio {prio}")
            a(f"s_xor_b32 s27, s27, s26")
            a(f"s_cmp_ge_i32 s27, 0")
            a(f"s_cbranch_scc1 mn_pr{d}")
            a(f"s_setprio {prio-1}")
            a(f"mn_pr{d}:")
        a(f"s_sub_u32 s{sLeft}, s{sLeft}, 1")
        a(f"s_cbranch_scc1 mn_st{d}")
        a(f"mn_st{d}_back:")
        if pm: a("s_setprio 3")
    if stamps == 3:
        a(f"s_memrealtime s[{sT+4}:{sT+5}]")
        a("s_waitcnt lgkmcnt(0)")
        a(f"s_lshl_b64 exec, 1, s{sT+6}")
        a(f"v_mov_b32 v0, s{sT+4}")
        a(f"s_mov_b64 exec, -1")
        a(f"s_add_u32 s{sT+6}, s{sT+6}, 1")
    a("s_branch mn_loop")
    for d in range(13):
        a(f"mn_st{d}:")
        a(f"s_cmp_lg_u32 s{sMore}, 0")
        a(f"s_cbranch_scc1 mn_next")
        a(f"s_call_b64 s[{sRet}:{sRet+1}], mn_flush")
        a(f"s_branch mn_st{d}_back")
    a(f"""
mn_flush:
    s_cmp_eq_u32 s{sK}, 4
    s_cbranch_scc1 mn_fl4
    s_cmp_eq_u32 s{sK}, 3
    s_cbranch_scc1 mn_fl3
    s_cmp_eq_u32 s{sK}, 2
    s_cbranch_scc1 mn_fl2
    s_cmp_eq_u32 s{sK}, 1
    s_cbranch_scc1 mn_fl1
    """)
    for k in range(5):
        a(f"mn_fl{k}:")
        if stamps == 4 and k < 4: a(f"s_memrealtime s[{sT+2+2*k}:{sT+3+2*k}]")
        if k == 4:
            a(st(6))
            a(f"s_cmp_ge_u32 s{sP}, {1000 if nored else R//2+1}\ns_cbranch_scc1 mn_fl4b\ns_waitcnt vmcnt(0)\nmn_fl4b:")
        for j in range(4*k, 4*k+4):
            a(f"v_cvt_pk_bf16_f32 v{vAcc+4*j}, v{vAcc+4*j}, v{vAcc+4*j+1}")
            a(f"v_cvt_pk_bf16_f32 v{vAcc+4*j+1}, v{vAcc+4*j+2}, v{vAcc+4*j+3}")
            a(f"ds_write_b64 v{vAW}, v[{vAcc+4*j}:{vAcc+4*j+1}] offset:{SSTR*j}")
        z = vAcc+16*k+2
        a(f"""
    s_mul_i32 s52, s{sG}, 3
    s_lshl_b32 s52, {1<<(6*k)}, s52
    v_mov_b32 v{z}, s52
    v_mov_b32 v{z+1}, 0
    s_mov_b64 exec, 1
    ds_add_u32 v{z+1}, v{z} offset:{L_DONE}
    s_mov_b64 exec, -1
    """)
        if k < 4:
            a(f"""
    s_add_u32 s{sK}, s{sK}, 1
    s_sub_u32 s{sLeft}, s{sC+k+1}, 1
    s_cbranch_scc1 mn_fl{k+1}
    s_setpc_b64 s[{sRet}:{sRet+1}]
    """)
    a(f"""
    s_waitcnt vmcnt(0) lgkmcnt(0)
    {st(7)}
    {"s_branch mn_fin" if stamps else ""}
mn_end:
    s_endpgm
    """)
    vAa=0; vOut=1; vTt=2; vO=4; vA=12; vC=24; vW=40
    sTodo=36; sO=37; sOb=38; sAb=39; sOp=32; sOn=33; sNx=34
    AH=2; KS=8
    WARM = f"s_setprio {gprio}" if gprio else ""
    a(f"""
gm_touch:
    s_lshl2_add_u32 s47, s47, s{sQ}
    s_mul_i32 s47, s47, {CH_STRIDE}
    s_mul_i32 s48, s48, {CH_STRIDE//8}
    s_add_u32 s47, s47, s48
    s_sub_i32 s47, s47, 256
    s_max_i32 s47, s47, 0
    v_lshlrev_b32 v{u1}, 7, v{vLane}
    {f"buffer_load_dword v{vSa}, v{u1}, {LO}, s47 offen" if ntouch else ""}
    s_branch gm_touch_back
gm_pre:
    v_and_b32 v2, 0xff, v0
    """)
    NPF = (KM*16//32+255)//256
    if KM:
        a(f"""
    s_lshr_b32 s52, s2, 3
    s_lshl_b32 s52, s52, 15
    s_and_b32 s53, s2, 7
    s_mul_i32 s53, s53, {XS*2048}
    s_add_u32 s53, s53, {KN*2048}
    s_add_u32 s36, s50, s53
    s_addc_u32 s37, s51, 0
    s_and_b32 s37, s37, 0xffff
    s_mov_b32 s38, {KM*2048}
    s_mov_b32 s39, 0x20000
    v_lshlrev_b32 v3, 7, v2
    """)
        if KM*16 < 32*256: a(f"s_lshr_b32 s52, s2, 3\ns_mul_i32 s52, s52, {KM*16//32*128}\ns_movk_i32 s53, {KM*16//32}\nv_cmpx_gt_u32 vcc, s53, v2")
        for i in range(NPF):
            a(f"buffer_load_dword v{vSd}, v3, s[36:39], s52 offen{pfm}")
            if i < NPF-1: a(f"s_add_u32 s52, s52, {32*256*128}")
        a("s_mov_b64 exec, -1")
        KN = KN + KM
    NRAW=(3*CAP+255)//256
    for i in range(NRAW):
        a(f"v_add_u32 v3, {256*i}, v2")
        a(f"v_mul_u32_u24 v{88+i}, 21846, v3")
        a(f"v_lshrrev_b32 v{88+i}, 16, v{88+i}")
        a(f"v_lshlrev_b32 v{120+i}, 2, v{88+i}")
        a(f"v_mad_i32_i24 v{88+i}, v{88+i}, -3, v3")
        a(f"v_lshlrev_b32 v{88+i}, 4, v{88+i}")
    assert NRAW <= 12 and all((p*21846)>>16 == p//3 for p in range(256*NRAW))
    a(f"""
    s_waitcnt vmcnt({(1 if ntouch else 0)+NPF})
    s_branch mn_cbar
gm_raw:
    v_mov_b32 v1, 0
    ds_read_b32 v1, v1 offset:{L_ALLOC}
    """)
    for i in range(NRAW): a(f"ds_read_b32 v{104+i}, v{120+i} offset:{L_TAB}")
    a(f"""
    s_lshl_b32 s36, s{sQ}, 6
    s_lshl_b32 s37, s{sQ}, 10
    s_add_u32 m0, s37, {L_RAW}
    s_waitcnt lgkmcnt({NRAW})
    v_readfirstlane_b32 s37, v1
    s_min_u32 s37, s37, {CAP}
    s_mul_i32 s37, s37, 3
    """)
    for i in range(NRAW):
        a(f"s_cmp_ge_u32 s36, s37")
        a(f"s_cbranch_scc1 gm_raw_back")
        a(f"s_waitcnt lgkmcnt({NRAW-1-i})")
        a(f"v_add_u32 v{104+i}, v{88+i}, v{104+i}")
        a(f"buffer_load_dwordx4 v{104+i}, {LO}, 0 offen{rld} lds")
        a(f"s_add_u32 m0, m0, {256*16}")
        a(f"s_addk_i32 s36, 256")
    a(f"""
    s_branch gm_raw_back
gm_start:
    s_waitcnt vmcnt(0)
    s_barrier
    s_cmp_lg_u32 s{sMore}, 0
    s_cbranch_scc1 mn_next
    """)
    if pfs and KN < XS:
        per = ((XS-KN)*16+127)//128
        per = (per+7)//8*8
        a(f"""
    s_lshr_b32 s52, s2, 3
    s_lshl2_add_u32 s52, s52, s{sQ}
    s_lshl_b32 s52, s52, 3
    s_and_b32 s53, s2, 7
    s_mul_i32 s53, s53, {XS*16}
    s_add_u32 s52, s52, s53
    s_add_u32 s52, s52, {KN*16}
    s_movk_i32 s53, {per//8}
gm_pf:
    s_min_u32 s36, s52, {N*16-8}
    s_lshl_b32 s36, s36, 7
    """)
        for j in range(8):
            for h in range(pfs): a(f"s_load_dword s37, s[50:51], s36 offset:{j*128+h*64}")
        a(f"""
    s_addk_i32 s52, 1024
    s_sub_u32 s53, s53, 1
    s_cmp_lg_u32 s53, 0
    s_cbranch_scc1 gm_pf
    """)
    a(f"""
    {st(5)}
    {WARM}
gm_warm_back:
    v_and_b32 v3, 63, v0
    v_lshlrev_b32 v2, 4, v3
    s_lshl_b32 s52, s{sQ}, 15
    s_add_u32 s52, s52, {WS_WT}
    """)
    for f in range(32):
        a(f"buffer_load_dwordx4 v[{vW+4*f}:{vW+4*f+3}], v2, {LO}, s52 offen offset:{(f%4)*1024}{wld}")
        if f >= wd: a(f"s_waitcnt vmcnt({wd})")
        if f%4==3 and f<31: a("s_addk_i32 s52, 4096")
    a(f"""
    v_lshrrev_b32 v{vOut}, 4, v3
    v_lshlrev_b32 v{vOut}, 11, v{vOut}
    v_and_b32 v4, 7, v3
    v_lshl_add_u32 v{vOut}, v4, 4, v{vOut}
    v_bfe_u32 v4, v3, 3, 1
    v_lshl_add_u32 v{vOut}, v4, 9, v{vOut}
    v_and_b32 v4, 3, v3
    v_lshrrev_b32 v5, 2, v3
    v_mul_u32_u24 v{vAa}, {SSTR}, v4
    v_lshl_add_u32 v{vAa}, v5, 3, v{vAa}
    v_add_u32 v{vAa}, {RB}, v{vAa}
    s_lshl_b32 s{sOb}, s{sN0}, 11
    s_lshl_b32 s53, s{sQ}, 7
    s_add_u32 s{sOb}, s{sOb}, s53
    s_mov_b32 s{sTodo}, {"0xc0000000" if warm & 2 else "0x24924924"}
    {f"s_mov_b32 s35, s{sOb}" if warm & 2 else ""}
    {f"s_mov_b32 s{sOb}, 0x7ff00000" if warm & 2 else ""}
    {f"s_mov_b32 s31, 0x24924924" if warm & 2 else ""}
    s_mov_b32 s{sAb}, 0
    s_waitcnt vmcnt(0)
    {st(6)}
    """)
    pick = [f"s_ff1_i32_b32 s52, s52",
            f"s_bitset0_b32 s{sTodo}, s52",
            f"s_mul_i32 s52, s52, 11",
            f"s_bfe_u32 s53, s52, 0x10005",
            f"s_bfe_u32 s52, s52, 0x30006",
            f"s_mul_i32 s{sOn}, s53, 5",
            f"s_add_u32 s{sOn}, s{sOn}, s52",
            f"s_lshl_b32 s{sOn}, s{sOn}, 13",
            f"s_add_u32 s{sOn}, s{sOn}, s{sOb}",
            f"s_mul_i32 s53, s53, {GSTR}",
            f"s_mul_i32 s52, s52, {4*SSTR}",
            f"s_add_u32 s52, s52, s53",
            f"s_sub_u32 s53, s52, s{sAb}",
            f"s_mov_b32 s{sAb}, s52",
            f"v_add_u32 v{vAa}, s53, v{vAa}"]
    if warm & 2: a("s_mov_b32 s52, 1\ns_branch gm_go")
    a(f"""
gm_poll:
    v_mov_b32 v{vTt}, 0
    ds_read_b32 v{vTt}, v{vTt} offset:{L_DONE}
    s_waitcnt lgkmcnt(0)
    v_readfirstlane_b32 s52, v{vTt}
    s_and_b32 s52, s52, s{sTodo}
    s_cbranch_scc1 gm_go
    s_sleep {slp}
    s_branch gm_poll
gm_go:
    {st(7) if stamps != 4 else ""}
    """)
    for o in pick: a(o)
    def rd(base, s, half):
        bn = vA + 4*((base+s) % 3); s %= KS
        a(f"ds_read_b64_tr_b16 v[{bn+2*half}:{bn+2*half+1}], v{vAa} offset:{(s>>1)*QSTR+(s&1)*256+128*half}")
    for s in range(AH): rd(0,s,0); rd(0,s,1)
    a(f"s_mov_b32 s{sO}, s{sOn}")
    a(f"s_mov_b32 s{sOp}, 0x7ffffff0")
    cvlo = [f"v_cvt_pk_bf16_f32 v{vO+2*r}, v{vC+r}, v{vC+4+r}" for r in range(4)]
    cvhi = [f"v_cvt_pk_bf16_f32 v{vO+2*r+1}, v{vC+8+r}, v{vC+12+r}" for r in (1,0,3,2)]
    def fin():
        ops = []
        for h in range(2):
            O = vO + 4*h
            ops += [f"v_mov_b32_dpp v{vTt}, v{O+2} row_ror:8 row_mask:0xf bank_mask:0xf",
                    f"v_mov_b32_dpp v{vTt+1}, v{O+3} row_ror:8 row_mask:0xf bank_mask:0xf",
                    f"v_mov_b32_dpp v{O+2}, v{O} row_ror:8 row_mask:0xf bank_mask:0x3",
                    f"v_mov_b32_dpp v{O+3}, v{O+1} row_ror:8 row_mask:0xf bank_mask:0x3",
                    f"v_mov_b32_dpp v{O}, v{vTt} quad_perm:[0,1,2,3] row_mask:0xf bank_mask:0xc",
                    f"v_mov_b32_dpp v{O+1}, v{vTt+1} quad_perm:[0,1,2,3] row_mask:0xf bank_mask:0xc",
                    f"buffer_store_dwordx4 v[{O}:{O+3}], v{vOut}, s[{sOUT}:{sOUT+3}], s{sOp} offen offset:{h*1024}{ost}"]
        if 's' in exp: ops = [o if not o.startswith('buffer_store') else 's_nop 0' for o in ops]
        return ops
    a("gm_loop:")
    for base in (0, 2, 1):
        ops = fin(); pk = list(pick)
        G = {(s_, j): [] for s_ in range(KS) for j in range(4)}
        RD = lambda s_, h: ("rd", s_, h)
        for s_ in range(KS):
            G[(s_,0)].append(RD(s_+AH,0)); G[(s_,1)].append(RD(s_+AH,1))
        G[(0,0)] = [cvhi[0], cvhi[1]] + G[(0,0)]; G[(0,1)] = [cvhi[2], cvhi[3]] + G[(0,1)]
        h0, h1 = ops[:7], ops[7:]
        G[(0,2)] += h0[0:2]; G[(0,3)] += h0[2:4]; G[(1,0)] += h0[4:5]; G[(1,1)] += h0[5:6]; G[(1,2)] += h0[6:7] + h1[0:1]
        G[(1,3)] += h1[1:3]; G[(2,0)] += h1[3:4]; G[(2,1)] += h1[4:5]; G[(2,2)] += h1[5:7]
        ps = pol_s
        G[(ps,2)] += [f"v_mov_b32 v{vTt}, 0"]; G[(ps,3)] += [f"ds_read_b32 v{vTt}, v{vTt} offset:{L_DONE}"]
        seq = [f"v_readfirstlane_b32 s52, v{vTt}", f"s_and_b32 s52, s52, s{sTodo}", f"s_cselect_b32 s{sNx}, 1, 0"] + pk
        adr = seq[:8] + [f"s_mul_i32 s35, s53, {GSTR}", f"s_mul_i32 s31, s52, {4*SSTR}", f"s_add_u32 s31, s31, s35", f"s_sub_u32 s35, s31, s{sAb}", f"v_add_u32 v{vAa}, s35, v{vAa}"]
        out = [f"s_mov_b32 s{sAb}, s31"] + seq[8:12]
        slots = [(ps+1,2),(ps+1,3)] + [(5,j) for j in range(4)] if ps == 3 else [(ps+2,j) for j in range(4)] + [(5,j) for j in range(4)]
        if ps == 3: G[(4,2)].append("s_waitcnt lgkmcnt(2)")
        for sl in slots:
            cap = 3 - len(G[sl]) - (1 if sl[1] == 3 else 0)
            if sl == slots[-1]: cap = 99
            elif len(adr) - cap < 1: cap = len(adr) - 1
            for _ in range(max(cap,0)):
                if adr: G[sl].append(adr.pop(0))
        assert not adr
        G[(6,2)] += out[:3]; G[(6,3)] += out[3:]
        G[(7,1)] += [f"s_mov_b32 s{sOp}, s{sO}", f"s_mov_b32 s{sO}, s{sOn}"]
        G[(7,2)] += [f"s_cmp_eq_u32 s{sNx}, 0", "s_nop 1"]
        for s in range(KS):
            a(f"s_waitcnt lgkmcnt({3 if s == ps+1 else 2})")
            b = vA + 4*((base+s) % 3)
            for j in range(4):
                w = vW + 4*(s*4+j)
                c = "0" if s == 0 else f"v[{vC+4*j}:{vC+4*j+3}]"
                if 'm' not in exp: a(f"v_mfma_f32_16x16x32_bf16 v[{vC+4*j}:{vC+4*j+3}], v[{b}:{b+3}], v[{w}:{w+3}], {c}")
                for o in G[(s,j)]:
                    if isinstance(o, tuple): rd(base, o[1], o[2])
                    else: a(o)
        if stamps == 4:
            for i in range(9): a(f"s_mov_b32 s{sT+2*i}, s{sT+2*i+2}")
            a(f"s_memrealtime s[{sT+18}:{sT+19}]")
        for o in cvlo: a(o)
        a("s_nop 0")
        a("s_cbranch_scc1 gm_drain" if base != 1 else "s_cbranch_scc0 gm_loop")
    a("gm_drain:")
    a("s_nop 2")
    for o in cvhi: a(o)
    for o in fin(): a(o)
    if warm & 2:
        a(f"s_or_b32 s{sTodo}, s{sTodo}, s31\ns_mov_b32 s31, 0\ns_mov_b32 s{sOb}, s35")
    a(f"""
    s_cmp_lg_u32 s{sTodo}, 0
    s_cbranch_scc1 gm_poll
    """)
    if stamps: a("s_branch mn_fin")
    a(f"""
    s_endpgm
    """)
    def gen(r):
        a(f"""
    v_add_u32 v{u0}, {LPR*r}, v{vJ}
    v_add_u32 v{u0}, s{sDone}, v{u0}
    v_lshrrev_b32 v{u1}, 16, v{vTt_}
    v_mov_b32 v{vWd+r}, 0
    v_cmpx_lt_u32 vcc, v{u0}, v{u1}
    s_cbranch_execz mn_g{gen.n}
    v_and_b32 v{u1}, 0xffff, v{vTt_}
    v_add_u32 v{u0}, v{u0}, v{u1}
    v_mad_u32_u24 v{u1}, v{u0}, {REC}, v{vCb}
    buffer_load_dword v{vWd+r}, v{u1}, {LO}, 0 offen offset:40
    s_waitcnt vmcnt(0)
    v_lshl_or_b32 v{vWd+r}, v{u0}, 14, v{vWd+r}
mn_g{gen.n}:
    s_mov_b64 exec, -1
    """)
        gen.n += 1
    gen.n = 0
    MORE = f"""
    s_add_u32 s52, s{sDone}, s{sLim}
    v_lshrrev_b32 v{u1}, 16, v{vTt_}
    v_cmp_lt_u32 vcc, s52, v{u1}
    s_cbranch_vccz mn_count
    v_mov_b32 v{u0}, {L_MORE}
    ds_write_b32 v{u0}, v{vOne}
    s_branch mn_count
"""
    a(f"mn_w5:")
    gen(4)
    a(f"""
mn_more:
    {MORE}
mn_ovf:
    s_movk_i32 s{sLim}, {LPR}
    s_waitcnt vmcnt(0) lgkmcnt(0)
    s_barrier
    s_branch mn_again
mn_next:
    s_set_gpr_idx_off
mn_next2:
    s_waitcnt vmcnt(0) lgkmcnt(0)
    s_nop 7
    s_add_u32 s{sDone}, s{sDone}, s{sLim}
    {CONST}
    v_lshrrev_b32 v{u1}, 6, v0
    v_lshlrev_b32 v{u0}, 1, v0
    v_and_b32 v{u0}, 0x78, v{u0}
    v_or_b32 v{u0}, v{u0}, v{u1}
    v_mul_u32_u24 v{vCb}, {CH_STRIDE}, v{u0}
    v_and_b32 v{u1}, 0x200, v0
    v_or_b32 v{u0}, v{u0}, v{u1}
    v_cmp_gt_u32 vcc, {NCHUNK}, v{u0}
    v_bfrev_b32 v{u1}, 2
    v_and_b32 v{u2}, 0x1fc, v0
    s_nop 0
    v_cndmask_b32 v{u2}, v{u1}, v{u2}, vcc
    buffer_load_dword v{vTt_}, v{u2}, {LO}, s{sTo} offen
mn_again:
    v_mov_b32 v{u0}, 0
    ds_write_b32 v{vL4}, v{u0} offset:{L_CNT}
    ds_write_b32 v{vL4}, v{u0} offset:{L_CNT+256}
    s_waitcnt vmcnt(0) lgkmcnt(0)
    s_barrier
    """)
    gen(0)
    for r in range(1, NR): a(f"v_mov_b32 v{vWd+r}, 0")
    a(f"s_cmp_le_u32 s{sLim}, {LPR}\ns_cbranch_scc1 mn_more")
    for r in range(1, NR): gen(r)
    a("s_branch mn_more")
    if stamps:
        a(f"""
mn_fin:
    s_set_gpr_idx_off
    {f"s_memrealtime s[{sT+16}:{sT+17}]" if stamps != 4 else ""}
    s_waitcnt vmcnt(0)
    {f"s_memrealtime s[{sT+18}:{sT+19}]" if stamps != 4 else "s_memrealtime s[88:89]"}
    s_waitcnt lgkmcnt(0)
    s_lshl_b32 s90, s2, 4
    s_add_u32 s90, s90, s{sWv}
    s_lshl_b32 s90, s90, 6
    s_add_u32 s90, s90, 0xF000000
    s_add_u32 s92, s54, s90
    s_addc_u32 s93, s55, 0
    {"v_mbcnt_lo_u32_b32 v2, -1, 0" if stamps == 3 else ""}
    {"v_lshlrev_b32 v2, 2, v2" if stamps == 3 else ""}
    {"s_mov_b64 exec, 0x3f" if stamps == 3 else ""}
    {"global_store_dword v2, v0, s[92:93] offset:40" if stamps == 3 else ""}
    {"s_mov_b64 exec, -1" if stamps == 3 else ""}
    v_mov_b32 v0, 0
    """)
        if stamps == 2: a(f"s_mov_b32 s{sT+2}, s{sP}")
        for i in range(10):
            a(f"v_mov_b32 v1, s{sT+2*i}")
            a(f"global_store_dword v0, v1, s[92:93] offset:{4*i}")
        if stamps == 4:
            a("v_mov_b32 v1, s88"); a("global_store_dword v0, v1, s[92:93] offset:40")
        a("s_endpgm")
    a("mn_last:\ns_endpgm")
    a.end_kernel(name, NV, 96)
    a.launch(name, NBLK, 768, 163840)
```

```python
N=10000; E=160000
NCHUNK=125; CHUNK=1280; REC=48
CH_STRIDE=CHUNK*REC
NBLK=256
WS_REC=0
WS_T=0x0A00000
WS_WT=0x0B00000
WS_LOW=0x0C00000
MAGICB=214749
assert all(((d*MAGICB)>>23)==d*16//625 for d in range(10000))
assert all(0 <= d-(((d*16//625)*625+15)>>4) < 40 for d in range(10000))
MAGIC625=6711
assert all(((d*MAGIC625)>>22)==d//625 for d in range(10000))
XS=1250
WS_C=0x0800000
WS_WRF=0x0B20000
WS_CGF=0x0B22000
WS_DUM=0x0B23000
assert NCHUNK*CH_STRIDE <= WS_C
```

```python
import sys
from common import *
from k_a9 import gen_ka
from k_main15 import gen_main
a = Asm()
opts=dict(x.split('=') for x in sys.argv[2:])
def pol(k, d):
    v = opts.get(k, d)
    return '' if v in ('', '0') else ' ' + v.replace('+', ' ')
I = lambda k, d: int(opts.get(k, d))
gen_ka(a, prefetch=I('pfa',1), ld=pol('kld','0'), rst=pol('rst','sc1'), pfp=pol('pfpa','0'), KN=I('KN',640), R0=I('R0',8500), cst=pol('cst','0'), cpf=I('cpf',1), swap=I('swap',0))
gen_main(a, rld=pol('rld','0'), stamps=I('stamps',0), exp=opts.get('exp',''), ost=pol('ost','sc0+sc1'), KN=I('KN',640), pfm=pol('pfm','0'), wld=pol('wld','0'), xld=pol('xld','0'),
  prio=I('prio',3), slp=I('slp',2), R=I('R',6), wd=I('wd',1), warm=I('warm',0), nref=I('nref',0), span=I('span',100), tw=I('tw',2), w1=I('w1',1), steer=I('steer',0), sper=I('sper',4),
  nored=I('nored',0), gprio=I('gprio',0), ntouch=I('ntouch',1), pfs=I('pfs',2), bd=I('bd',2), ed=I('ed',0), KM=I('KM',0), pol_s=I('ps',3))
open(sys.argv[1],'w').write(a.text())
```

```python
from layout8 import *

def gen_ka(a, ld='', rst='', pfp='', prefetch=True, KN=XS, R0=8500, cst='', cpf=1, swap=0, XR=XS, XP=XS, dly=0, spf=1, nb0=6, late=0, hlp=0):
    name="ka_kernel"
    L_TAB=1024; L_CELL=L_TAB+10*1024; L_REC=L_CELL+16384; L_END=L_REC+CH_STRIDE
    NL=KN*16
    HL=(NL+16*64-1)//(16*64)*64
    assert HL <= 1280
    a.begin_kernel(name)
    HLP = f"""s_sub_u32 s34, s2, 127
    s_mul_i32 s34, s34, {CHUNK*32}
    s_sub_u32 s34, s34, {hlp*8192}
    v_lshl_add_u32 v44, v0, 7, s34
    v_min_u32 v44, {E*32-4}, v44""" if hlp else ""
    HLP2 = f"""s_cmp_ge_u32 s18, {hlp}
    s_cbranch_scc1 ka_nohlp
    global_load_dword v45, v44, s[10:11]
ka_nohlp:""" if hlp else ""
    SPF = """s_cmp_lt_u32 s2, 128
    s_cbranch_scc1 ka_nospf
    s_getpc_b64 s[36:37]
ka_pc0:
    v_lshlrev_b32 v41, 7, v0
    v_min_u32 v41, mn_last-ka_pc0, v41
    global_load_dword v41, v41, s[36:37]
ka_nospf:""" if spf else ""
    if spf: cpf = 0
    CPF = """s_cmp_lg_u32 s18, 0
    s_cbranch_scc1 ka_nocpf
    s_cmp_ge_u32 s2, 144
    s_cbranch_scc1 ka_nocpf
    s_getpc_b64 s[36:37]
ka_pc:
    s_add_u32 s36, s36, main_kernel-ka_pc
    s_addc_u32 s37, s37, 0
    s_bfe_u32 s38, s2, 0x10003
    s_lshl_b32 s38, s38, 13
    v_lshl_add_u32 v41, v1, 7, s38
    v_min_u32 v41, mn_last-main_kernel, v41
    global_load_dword v41, v41, s[36:37]
ka_nocpf:""" if cpf else ""
    a(f"""
    s_cmp_ge_u32 s2, 256
    s_cbranch_scc1 ka_end
    {SPF}
    s_load_dwordx8 s[4:11], s[0:1], 8
    s_load_dwordx2 s[16:17], s[0:1], 0
    s_load_dwordx2 s[14:15], s[0:1], 80
    s_load_dwordx2 s[32:33], s[0:1], 56
    v_lshrrev_b32 v9, 6, v0
    v_and_b32 v1, 63, v0
    v_readfirstlane_b32 s18, v9
    s_cmp_ge_u32 s2, 128
    s_cbranch_scc1 ka_pf
    s_cmp_ge_u32 s2, {NCHUNK}
    s_cbranch_scc1 ka_extra
    s_mul_i32 s3, s2, {CHUNK}
    v_add_u32 v4, s3, v0
    v_lshlrev_b32 v5, 2, v4
    v_lshlrev_b32 v2, 2, v0
    v_and_b32 v2, 0x3fc, v2
    v_mov_b32 v3, 0
    v_lshlrev_b32 v6, 3, v4
    v_add_u32 v8, {640*8}, v6
    v_and_b32 v7, 0xffffffc0, v4
    v_lshlrev_b32 v7, 5, v7
    v_lshl_add_u32 v7, v1, 4, v7
    v_add_u32 v9, {640*32}, v7
    s_waitcnt lgkmcnt(0)
    global_load_dword v10, v5, s[6:7]{ld}
    global_load_dword v60, v5, s[6:7] offset:{640*4}{ld}
    global_load_dword v11, v5, s[4:5]{ld}
    global_load_dword v61, v5, s[4:5] offset:{640*4}{ld}
    ds_write_b32 v2, v3
    v_lshlrev_b32 v5, 4, v0
    v_mov_b32 v44, 0
    v_mov_b32 v45, 0
    v_mov_b32 v46, 0
    v_mov_b32 v47, 0
    ds_write_b128 v5, v[44:47] offset:{L_CELL}
    ds_write_b128 v5, v[44:47] offset:{L_CELL+16384-10240}
    s_mov_b32 s20, s14
    s_and_b32 s21, s15, 0xffff
    s_mov_b32 s22, {WS_LOW}
    s_mov_b32 s23, 0x20000
    s_and_b32 s28, s2, 7
    s_lshl_b32 s28, s28, 4
    s_lshr_b32 s29, s2, 3
    s_add_u32 s28, s28, s29
    s_lshl_b32 s30, s28, 6
    s_add_u32 s30, s30, {WS_C}
    s_lshl_b32 s28, s28, 2
    s_add_u32 s28, s28, {WS_T}
    v_mov_b32 v3, 1
    v_lshrrev_b32 v24, 1, v1
    v_lshlrev_b32 v24, 2, v24
    v_and_b32 v25, 1, v0
    v_lshlrev_b32 v25, 4, v25
    v_lshlrev_b32 v26, 4, v1
    s_lshl_b32 s19, s18, 10
    v_add_u32 v27, s19, v26
    s_movk_i32 s29, 625
    s_movk_i32 s38, {KN}
    s_movk_i32 s39, {XS}
    s_waitcnt lgkmcnt(0)
    s_barrier
    """)
    BIG = [f"global_load_dwordx2 v[12:13], v6, s[8:9]{ld}", f"global_load_dwordx4 v[16:19], v7, s[10:11]{ld}", f"global_load_dwordx4 v[20:23], v7, s[10:11] offset:1024{ld}",
           f"global_load_dwordx2 v[72:73], v8, s[8:9]{ld}", f"global_load_dwordx4 v[64:67], v9, s[10:11]{ld}", f"global_load_dwordx4 v[68:71], v9, s[10:11] offset:1024{ld}"]
    for o in BIG[:nb0]: a(o)
    sets = [dict(d=10,s=11,L=32,T=33,A=35,R=36,U=39,sh=12,e0=16,e1=20,B=43,P=48,C=40,W=41),
            dict(d=60,s=61,L=62,T=63,A=76,R=77,U=78,sh=72,e0=64,e1=68,B=79,P=80,C=82,W=83)]
    for i,z in enumerate(sets):
        a(f"""
    s_waitcnt vmcnt({3+nb0-i})
    v_mul_u32_u24 v{z['L']}, {MAGICB}, v{z['d']}
    v_lshrrev_b32 v{z['L']}, 23, v{z['L']}
    v_min_u32 v{z['L']}, {NBLK-1}, v{z['L']}
    v_and_b32 v{z['A']}, 7, v{z['L']}
    v_lshrrev_b32 v{z['T']}, 3, v{z['L']}
    v_lshl_add_u32 v{z['A']}, v{z['A']}, 5, v{z['T']}
    v_lshlrev_b32 v{z['A']}, 2, v{z['A']}
    ds_add_rtn_u32 v{z['R']}, v{z['A']}, v3
    """)
    if not late:
        for o in BIG[nb0:]: a(o)
    a(f"s_waitcnt vmcnt({nb0 if late else 6})")
    MB = (27<<20)//R0
    SW = lambda z: f"""v_subrev_u32 v{z['L']}, s38, v{z['U']}
    v_cmp_gt_u32 vcc, s39, v{z['L']}
    v_subrev_u32 v{z['L']}, s39, v{z['U']}
    v_min_u32 v{z['L']}, v{z['L']}, v{z['U']}
    v_add_u32 v{z['L']}, s38, v{z['L']}
    v_cndmask_b32 v{z['U']}, v{z['U']}, v{z['L']}, vcc""" if swap else ""
    for z in sets:
        w10 = z['sh']+2; w11 = z['sh']+3
        a(f"""
    v_mad_u32_u24 v{z['T']}, v{z['L']}, s29, 15
    v_lshrrev_b32 v{z['T']}, 4, v{z['T']}
    v_sub_u32 v{z['T']}, v{z['d']}, v{z['T']}
    v_and_b32 v{z['L']}, 7, v{z['L']}
    v_mul_u32_u24 v{z['L']}, {XR}, v{z['L']}
    v_sub_u32 v{z['U']}, v{z['s']}, v{z['L']}
    v_add_u32 v{z['L']}, {N}, v{z['U']}
    v_min_u32 v{z['U']}, v{z['U']}, v{z['L']}
    {SW(z)}
    v_mul_u32_u24 v{z['U']}, {MB}, v{z['U']}
    v_lshrrev_b32 v{z['U']}, 20, v{z['U']}
    v_subrev_u32 v{z['L']}, 20, v{z['T']}
    v_min_u32 v{w11}, v{z['L']}, v{z['T']}
    v_min_u32 v{w11}, 19, v{w11}
    v_lshrrev_b32 v{z['L']}, 2, v{w11}
    v_add_u32 v{z['L']}, 27, v{z['L']}
    v_cmp_gt_u32 vcc, 27, v{z['U']}
    v_lshlrev_b32 v{w11}, 2, v{w11}
    v_and_b32 v{w10}, 0x3fff, v{z['s']}
    v_cndmask_b32 v{z['U']}, v{z['L']}, v{z['U']}, vcc
    v_cmp_le_u32 vcc, 20, v{z['T']}
    v_add_u32 v{z['L']}, 32, v{z['U']}
    v_lshlrev_b32 v{z['C']}, 4, v{z['A']}
    v_cndmask_b32 v{z['U']}, v{z['U']}, v{z['L']}, vcc
    v_add_u32 v{z['A']}, s19, v{z['A']}
    v_or_b32 v{z['U']}, 64, v{z['U']}
    v_lshl_or_b32 v{w10}, v{z['U']}, 25, v{w10}
    """)
    a(f"""
    s_waitcnt lgkmcnt(0)
    s_barrier
    ds_read_b128 v[44:47], v26
    ds_read_b32 v37, v2
    {chr(10).join(BIG[nb0:]) if late else ""}
    v_add_u32 v28, s19, v2
    v_lshlrev_b32 v29, 9, v0
    s_mul_i32 s19, s2, {CH_STRIDE}
    """)
    for z in sets:
        a(f"""
    v_and_b32 v{z['L']}, 3, v{z['R']}
    v_lshl_add_u32 v{z['C']}, v{z['L']}, 4, v{z['C']}
    v_and_b32 v{z['L']}, 12, v{z['R']}
    v_add_u32 v{z['C']}, v{z['L']}, v{z['C']}
    v_cmp_lt_u32 vcc, 15, v{z['R']}
    v_mov_b32 v{z['L']}, 0x40000
    v_lshl_add_u32 v{z['sh']+3}, s19, 4, v{z['sh']+3}
    v_cndmask_b32 v{z['C']}, v{z['C']}, v{z['L']}, vcc
    """)
    a(f"""
    s_waitcnt lgkmcnt(1)
    v_add_u32 v53, v44, v45
    v_add_u32 v54, v53, v46
    v_add_u32 v38, v54, v47
    v_mov_b32 v55, v38
    s_nop 0
    v_add_u32_dpp v38, v38, v38 row_shr:1 row_mask:0xf bank_mask:0xf
    s_nop 1
    v_add_u32_dpp v38, v38, v38 row_shr:2 row_mask:0xf bank_mask:0xf
    s_nop 1
    v_add_u32_dpp v38, v38, v38 row_shr:4 row_mask:0xf bank_mask:0xf
    s_nop 1
    v_add_u32_dpp v38, v38, v38 row_shr:8 row_mask:0xf bank_mask:0xf
    s_nop 1
    v_add_u32_dpp v38, v38, v38 row_bcast:15 row_mask:0xa bank_mask:0xf
    s_nop 1
    v_add_u32_dpp v38, v38, v38 row_bcast:31 row_mask:0xc bank_mask:0xf
    v_sub_u32 v56, v38, v55
    v_add_u32 v57, v56, v44
    v_add_u32 v58, v56, v53
    v_add_u32 v59, v56, v54
    ds_write_b128 v27, v[56:59] offset:{L_TAB}
    ds_read_b32 v43, v35 offset:{L_TAB}
    ds_read_b32 v79, v76 offset:{L_TAB}
    ds_read_b32 v30, v28 offset:{L_TAB}
    s_waitcnt lgkmcnt(1)
    """)
    for z in sets:
        a(f"""
    v_add_u32 v{z['B']}, v{z['B']}, v{z['R']}
    v_lshl_or_b32 v{z['W']}, v{z['B']}, 14, v{z['sh']+2}
    v_mul_u32_u24 v{z['B']}, {REC}, v{z['B']}
    ds_bpermute_b32 v{z['P']}, v24, v{z['B']}
    ds_bpermute_b32 v{z['P']+1}, v24, v{z['B']} offset:128
    ds_write_b32 v{z['C']}, v{z['W']} offset:{L_CELL}
    v_lshl_add_u32 v{z['sh']+3}, v{z['B']}, 4, v{z['sh']+3}
    """)
    a(f"""
    s_cmp_ge_u32 s18, 4
    s_waitcnt lgkmcnt(1)
    v_lshl_or_b32 v30, v37, 16, v30
    """)
    for z in sets:
        a(f"""
    v_add_u32 v{z['P']}, v{z['P']}, v25
    v_add_u32 v{z['P']+1}, v{z['P']+1}, v25
    """)
    for i,z in enumerate(sets):
        b0 = 3*(1-i)
        a(f"""
    s_waitcnt vmcnt({b0+2})
    ds_write_b128 v{z['B']}, v[{z['sh']}:{z['sh']+3}] offset:{L_REC+32}
    s_waitcnt vmcnt({b0+1})
    ds_write_b128 v{z['P']}, v[{z['e0']}:{z['e0']+3}] offset:{L_REC}
    s_waitcnt vmcnt({b0})
    ds_write_b128 v{z['P']+1}, v[{z['e1']}:{z['e1']+3}] offset:{L_REC}
    """)
    a(f"""
    s_cbranch_scc1 ka_nohdr
    buffer_store_dword v30, v29, s[20:23], s28 offen
ka_nohdr:
    v_lshrrev_b32 v6, 2, v0
    v_lshlrev_b32 v6, 13, v6
    v_and_b32 v7, 0x30, v5
    v_or_b32 v6, v6, v7
    v_add_u32 v7, {L_REC}, v5
    s_add_u32 s31, s30, {160*8192}
    s_cmp_ge_u32 s18, 6
    s_waitcnt lgkmcnt(0)
    s_barrier
    ds_read_b128 v[36:39], v5 offset:{L_CELL}
    ds_read_b128 v[40:43], v5 offset:{L_CELL+10240}
    """)
    for r in range(6):
        a(f"ds_read_b128 v[{12+4*r}:{15+4*r}], v7 offset:{r*10240}")
    a(f"""
    s_waitcnt lgkmcnt(6)
    buffer_store_dwordx4 v[36:39], v6, s[20:23], s30 offen{cst}
    s_cbranch_scc1 ka_noc2
    buffer_store_dwordx4 v[40:43], v6, s[20:23], s31 offen{cst}
ka_noc2:
    """)
    for r in range(6):
        a(f"s_waitcnt lgkmcnt({5-r})")
        a(f"buffer_store_dwordx4 v[{12+4*r}:{15+4*r}], v5, s[20:23], s19 offen{rst}")
        if r < 5: a("s_addk_i32 s19, 10240")
    a(f"""
    s_endpgm
ka_pf:
    {HLP}
    s_waitcnt lgkmcnt(0)
    {HLP2}
    s_and_b32 s34, s2, 7
    s_mul_i32 s34, s34, {XP*2048}
    s_add_u32 s24, s16, s34
    s_addc_u32 s25, s17, 0
    s_and_b32 s25, s25, 0xffff
    s_mov_b32 s26, {KN*2048}
    s_mov_b32 s27, 0x20000
    s_bfe_u32 s30, s2, 0x40003
    v_lshlrev_b32 v40, 7, v0
    s_mul_i32 s30, s30, {HL*128}
    {CPF}
    s_cmp_lg_u32 s18, 9
    s_cbranch_scc1 ka_pf1
    s_bitcmp1_b32 s2, 3
    s_cbranch_scc1 ka_pf1
    s_and_b32 s35, s2, 7
    s_bfe_u32 s36, s2, 0x30004
    s_lshl_b32 s37, s35, 14
    s_lshr_b32 s38, s36, 1
    s_lshl_b32 s38, s38, 7
    s_add_u32 s37, s37, s38
    s_and_b32 s38, s36, 1
    s_lshl2_add_u32 s37, s38, s37
    v_lshrrev_b32 v44, 4, v1
    v_lshlrev_b32 v44, 11, v44
    v_and_b32 v45, 7, v1
    v_lshl_add_u32 v44, v45, 4, v44
    v_and_b32 v45, 8, v1
    v_add3_u32 v44, v44, v45, s37
    v_add_u32 v45, 0x2000, v44
    """)
    for j in range(8):
        a(f"global_load_dword v{48+j}, v{44+(j>>2)}, s[32:33] offset:{(j&3)*512}")
    a(f"""
    s_lshr_b32 s36, s36, 1
    s_lshl3_add_u32 s36, s36, s35
    s_lshl1_add_u32 s36, s36, s38
    s_lshl_b32 s36, s36, 11
    s_add_u32 s36, s36, {WS_WT}
    v_lshl_add_u32 v46, v1, 4, s36
    s_mov_b32 s38, 0x05040100
    s_mov_b32 s39, 0x07060302
    s_waitcnt vmcnt(0)
    """)
    for i in range(4):
        a(f"v_perm_b32 v{56+i}, v{49+2*i}, v{48+2*i}, s38")
        a(f"v_perm_b32 v{60+i}, v{49+2*i}, v{48+2*i}, s39")
    a(f"""
    global_store_dwordx4 v46, v[56:59], s[14:15]
    global_store_dwordx4 v46, v[60:63], s[14:15] offset:1024
ka_pf1:
    """)
    if prefetch:
        n1 = min(10, HL//64); n2 = max(0, HL//64-10)
        a(f"""
    s_cmp_ge_u32 s18, {n1}
    s_cbranch_scc1 ka_end
    {f"s_sleep {dly}" if dly else ""}
    buffer_load_dword v42, v40, s[24:27], s30 offen{pfp}
    s_cmp_ge_u32 s18, {n2}
    s_cbranch_scc1 ka_end
    s_add_u32 s30, s30, {640*128}
    buffer_load_dword v43, v40, s[24:27], s30 offen{pfp}
    """)
    a(f"""
    s_endpgm
ka_extra:
    s_cmp_lg_u32 s2, {NCHUNK}
    s_cbranch_scc1 ka_end
    s_cmp_ge_u32 s18, 6
    s_cbranch_scc1 ka_end
    s_load_dwordx4 s[36:39], s[0:1], 40
    s_lshl_b32 s34, s18, 11
    s_add_u32 s34, s34, {WS_WRF}
    v_lshl_add_u32 v46, v1, 4, s34
    s_cmp_eq_u32 s18, 5
    s_cbranch_scc1 ka_dum
    s_cmp_eq_u32 s18, 4
    s_cbranch_scc1 ka_cg
    v_lshrrev_b32 v44, 5, v1
    v_lshlrev_b32 v44, 12, v44
    v_and_b32 v45, 31, v1
    v_lshl_add_u32 v44, v45, 1, v44
    v_lshl_add_u32 v44, s18, 7, v44
    s_waitcnt lgkmcnt(0)
    """)
    for j in range(16):
        a(f"global_load_ushort v{48+j}, v44, s[38:39] offset:{(j&7)*512+(j>>3)*64}")
    a(f"""
    s_branch ka_pk
ka_cg:
    v_and_b32 v44, 3, v1
    v_lshlrev_b32 v44, 1, v44
    s_waitcnt lgkmcnt(0)
    """)
    for j in range(16):
        a(f"global_load_ushort v{48+j}, v44, s[36:37] offset:{j*8}")
    a("ka_pk:")
    a("s_waitcnt vmcnt(0)")
    for i in range(8):
        a(f"v_lshl_or_b32 v{64+i}, v{49+2*i}, 16, v{48+2*i}")
    a(f"""
    global_store_dwordx4 v46, v[64:67], s[14:15]
    global_store_dwordx4 v46, v[68:71], s[14:15] offset:1024
    s_endpgm
ka_dum:
    v_mov_b32 v46, {WS_DUM}
    v_mov_b32 v48, 0
    v_mov_b32 v49, 0
    v_mov_b32 v50, 0
    v_mov_b32 v51, 0
    v_mov_b32 v52, 0x3fff
    v_mov_b32 v53, {WS_DUM<<4}
    s_mov_b64 exec, 1
    s_waitcnt lgkmcnt(0)
    global_store_dwordx4 v46, v[48:51], s[14:15]
    global_store_dwordx4 v46, v[48:51], s[14:15] offset:16
    global_store_dwordx4 v46, v[50:53], s[14:15] offset:32
ka_end:
    s_endpgm
    """)
    a.end_kernel(name, 88, 40)
    a.launch(name, 256, 640, L_END)
```

```python
from layout8 import *

L_CNT=0; L_MORE=272; L_DONE=276; L_DIFF=288; L_ZERO=320; L_LIST=512
SSTR=576
NR=5; LPR=4

vTR=1; vE=2; vEAa=3; vX=4; vSh=8; vAop=12; vSHa=18; vSl=19; vB=20; vD=28; vRW=44; vEA1=60; vEA2=64
vW1=68; vW2=72; vCG=76; vSa=84; vSd=85; vKc=86; vAW=87; vAcc=88
NV=168
sX=4; sLOW=8; sOUT=12
sWv=16; sQ=17; sG=18; sLeft=19; sLim=20; sMore=21; sTot=23; sDone=24; sTo=25; sA=28; sStart=32; sEnd=33; sRem=34; sOR=35; sM=40; sRet=48; sK=58; sP=59; sC=84
sT=64

def gen_main(a, rld='', stamps=0, exp='', ost=' sc0 sc1', KN=XS, wld='', xld='', prio=3, slp=2, R=6, wd=1, steer=1, soff=2, gprio=0,
             ntouch=0, pfs=2, wa=8, wb=16, w0=0, b2=1, xe=2):
    name="main_kernel"
    PAD=2*R+8
    QSTR=16*SSTR+R*1024; GSTR=4*QSTR; RB=163840-2*GSTR
    CAP=min(1000,(RB-L_LIST-8*PAD-16)//52)
    L_RAW=(L_LIST+4*(CAP+2*PAD)+15)//16*16
    assert L_RAW+48*CAP <= RB and RB % 256 == 0 and CAP >= 512 and 24 % R == 0 and not (steer and stamps == 3)
    a.begin_kernel(name)
    def st(i):
        if stamps == 2 and i in (5,6): return f"s_memrealtime s[{sT+2*i}:{sT+2*i+1}]\ns_memtime s[{sT+2*(i-3)}:{sT+2*(i-3)+1}]"
        return f"s_memrealtime s[{sT+2*i}:{sT+2*i+1}]" if (stamps and (stamps == 1 or i in (0,5,6,7))) else ""
    LO = f"s[{sLOW}:{sLOW+3}]"
    vWd=20; vK=25; vRk=30; vJ=35; vG=36; vRi=41; vN=42; vNs=43; vT2=44; vCb=46; vL4=47; vOne=48; vPadv=49; vDum=50; vLane=51
    vC0=52; vC1=53; vC2=54; u0=55; u1=56; u2=57; vTt_=58; vB2=59
    SCAN6 = ("row_shr:1 row_mask:0xf","row_shr:2 row_mask:0xf","row_shr:4 row_mask:0xf","row_shr:8 row_mask:0xf","row_bcast:15 row_mask:0xa","row_bcast:31 row_mask:0xc")
    BADM = (1<<47)|(1<<55)|(1<<63)
    TOFF = f"""
    v_lshrrev_b32 v{u1}, 6, v0
    v_lshlrev_b32 v{u0}, 1, v0
    v_and_b32 v{u0}, 0x78, v{u0}
    v_or_b32 v{u0}, v{u0}, v{u1}
    v_cmp_gt_u32 vcc, {NCHUNK}, v{u0}
    v_mul_u32_u24 v{vCb}, {CH_STRIDE}, v{u0}
    v_bfrev_b32 v{u1}, 2
    v_lshlrev_b32 v{u0}, 4, v0
    v_and_b32 v{u2}, 0x1fc, v0
    v_cndmask_b32 v{u0}, v{u1}, v{u0}, vcc
    v_cndmask_b32 v{u2}, v{u1}, v{u2}, vcc
    v_and_b32 v{vLane}, 63, v0
    v_lshlrev_b32 v{u1}, 3, v{vLane}
"""
    TLD = f"""
    buffer_load_dword v{vTt_}, v{u2}, {LO}, s{sTo} offen
    buffer_load_dwordx2 v[{vT2}:{vT2+1}], v{u1}, {LO}, s{sTo} offen
"""
    a(f"""
    {st(0)}
    s_cmp_ge_u32 s2, {NBLK}
    s_cbranch_scc1 mn_end
    s_load_dwordx2 s[54:55], s[0:1], 80
    s_load_dwordx2 s[50:51], s[0:1], 0
    v_lshrrev_b32 v{u1}, 6, v0
    s_and_b32 s48, s2, 7
    v_readfirstlane_b32 s{sWv}, v{u1}
    s_lshr_b32 s47, s2, 3
    s_lshl_b32 s{sTo}, s48, 5
    s_add_u32 s{sTo}, s{sTo}, s47
    s_lshl_b32 s49, s{sTo}, 13
    s_add_u32 s49, s49, {WS_C}
    s_lshl_b32 s{sTo}, s{sTo}, 9
    s_add_u32 s{sTo}, s{sTo}, {WS_T}
    s_mov_b32 s{sLOW+2}, {WS_LOW}
    s_mov_b32 s{sLOW+3}, 0x20000
    s_and_b32 s{sQ}, s{sWv}, 3
    s_movk_i32 s{sLim}, {LPR*NR}
    s_mov_b32 s{sDone}, 0
    s_cmp_ge_u32 s{sWv}, 8
    s_cbranch_scc1 gm_main
    {TOFF}
    s_lshl_b32 s52, s{sQ}, 11
    s_add_u32 s52, s52, {WS_WRF}
    s_mov_b32 s53, {WS_CGF}
    v_lshlrev_b32 v{vC0}, 4, v{vLane}
    s_waitcnt lgkmcnt(0)
    s_mov_b32 s{sLOW}, s54
    s_and_b32 s{sLOW+1}, s55, 0xffff
    buffer_load_dwordx4 v[{vWd}:{vWd+3}], v{u0}, {LO}, s49 offen{rld}
    {TLD}
    s_barrier
    buffer_load_dwordx4 v[{vW1}:{vW1+3}], v{vC0}, {LO}, s52 offen
    buffer_load_dwordx4 v[{vW2}:{vW2+3}], v{vC0}, {LO}, s52 offen offset:1024
    buffer_load_dwordx4 v[{vCG}:{vCG+3}], v{vC0}, {LO}, s53 offen
    buffer_load_dwordx4 v[{vCG+4}:{vCG+7}], v{vC0}, {LO}, s53 offen offset:1024
    v_mov_b32 v{vWd+4}, 0
    s_lshr_b32 s{sG}, s{sWv}, 2
    s_lshl_b32 s53, s{sQ}, 7
    s_add_u32 s{sX}, s50, s53
    s_addc_u32 s{sX+1}, s51, 0
    s_and_b32 s{sX+1}, s{sX+1}, 0xffff
    s_or_b32 s{sX+1}, s{sX+1}, 0x08000000
    s_movk_i32 s{sX+2}, {N}
    s_mov_b32 s{sX+3}, 0x20000
    s_mul_i32 s{sM}, s{sWv}, {QSTR}
    s_add_u32 s{sM}, s{sM}, {RB}
    v_lshl_add_u32 v{vAW}, v{vLane}, 3, s{sM}
    s_add_u32 s{sM}, s{sM}, {16*SSTR}
    """)
    for r in range(1, R): a(f"s_add_u32 s{sM+r}, s{sM}, {1024*r}")
    a(f"""
    v_and_b32 v{u0}, 3, v0
    v_bfe_u32 v{u1}, v0, 2, 2
    v_bfe_u32 v{u2}, v0, 4, 1
    v_bfe_u32 v{vC1}, v0, 5, 1
    v_lshlrev_b32 v{vTR}, 3, v{u0}
    v_lshl_add_u32 v{vTR}, v{u2}, 5, v{vTR}
    v_lshl_add_u32 v{vTR}, v{u1}, 6, v{vTR}
    v_lshl_add_u32 v{vTR}, v{vC1}, 8, v{vTR}
    v_add_u32 v{vTR}, s{sM}, v{vTR}
    v_lshlrev_b32 v{vX+1}, 4, v{u0}
    v_lshl_add_u32 v{vX+1}, v{u2}, 6, v{vX+1}
    v_lshl_add_u32 v{vX+1}, v{u1}, 9, v{vX+1}
    v_mov_b32 v{vX+3}, v{vX+1}
    v_bfe_u32 v{u0}, v0, 2, 1
    v_lshlrev_b32 v{vKc}, 4, v{vC1}
    v_lshl_or_b32 v{vKc}, v{u0}, 18, v{vKc}
    """)
    CONST = f"""
    v_mov_b32 v{vOne}, 1
    v_lshlrev_b32 v{vL4}, 2, v{vLane}
    v_bfe_u32 v{vE}, v0, 5, 1
    v_bfe_u32 v{vEAa}, v0, 3, 2
    v_and_b32 v{vJ}, 3, v0
    v_lshl_add_u32 v{vEAa}, v{vEAa}, 2, v{vJ}
    v_mul_u32_u24 v{vPadv}, {PAD}, v{vE}
    v_lshrrev_b32 v{vSHa}, 2, v{vLane}
    v_lshl_add_u32 v{vSHa}, v{vJ}, 4, v{vSHa}
    v_mov_b32 v{vDum}, {((L_ZERO//16)<<16)|0x3fff}
    s_lshl_b32 s52, s{sWv}, 3
    s_bfm_b64 s[36:37], s52, 0
    s_andn2_b32 s39, s37, {BADM>>32}
    s_mov_b32 s38, s36
"""
    a(CONST)
    for i in range(0, 80, 2): a(f"v_mov_b64 v[{vAcc+i}:{vAcc+i+1}], 0")
    a(f"""
    s_mov_b32 s52, 0x110000
    s_waitcnt vmcnt(4)
    {st(1)}
    v_cmp_le_u32 vcc, s52, v{vTt_}
    s_cbranch_vccnz mn_w5
mn_count:
    """)
    def rounds(tag, body):
        for r in range(NR):
            a(f"v_cmpx_gt_i32 vcc, 0, v{vWd+r}")
            a(f"s_cbranch_execz mn_{tag}_done")
            body(r)
        a(f"mn_{tag}_done:")
        a("s_mov_b64 exec, -1")
    def cnt(r):
        a(f"v_lshrrev_b32 v{vK+r}, 23, v{vWd+r}")
        a(f"v_and_b32 v{vK+r}, 0xfc, v{vK+r}")
        a(f"ds_add_rtn_u32 v{vRk+r}, v{vK+r}, v{vOne}")
    rounds("cn", cnt)
    def clampn(dst, src):
        a(f"v_lshrrev_b32 v{dst}, 16, v{src}")
        a(f"v_subrev_u32 v{dst}, s{sDone}, v{dst}")
        a(f"v_med3_i32 v{dst}, v{dst}, 0, s{sLim}")
    clampn(vN, vTt_); clampn(u0, vT2); clampn(u1, vT2+1)
    a(f"""
    v_mov_b32 v{vNs}, v{vN}
    v_cndmask_b32 v{u0}, 0, v{u0}, s[36:37]
    v_cndmask_b32 v{u1}, 0, v{u1}, s[38:39]
    v_add_u32 v{vB2}, v{u0}, v{u1}
    v_mov_b32 v{vC0}, 0
    s_lshl_b32 s52, s{sG}, 5
    s_add_u32 s53, s52, 31
    s_waitcnt lgkmcnt(0)
    s_barrier
    {st(3)}
    ds_read_b32 v{vC1}, v{vL4} offset:{L_CNT}
    ds_read_b32 v{vC0}, v{vC0} offset:{L_MORE}
    """)
    for i, op in enumerate(SCAN6):
        a(f"v_add_u32_dpp v{vB2}, v{vB2}, v{vB2} {op} bank_mask:0xf")
        if i >= 2: a(f"v_add_u32_dpp v{vNs}, v{vNs}, v{vNs} {op} bank_mask:0xf"); a("s_nop 0")
        else: a("s_nop 1")
    a(f"""
    v_readlane_b32 s49, v{vB2}, 63
    v_sub_u32 v{vRi}, v{vNs}, v{vN}
    s_movk_i32 s48, 0x3fff
    s_waitcnt lgkmcnt(1)
    v_mov_b32 v{vC2}, v{vC1}
    v_sub_u32 v{vC1}, v{vPadv}, v{vC1}
    v_add3_u32 v{vRi}, v{vRi}, v{vJ}, s49
    """)
    fill = [f"v_mul_u32_u24 v{vRi}, {3<<16}, v{vRi}", f"v_add_u32 v{vRi}, {(L_RAW//16)<<16}, v{vRi}"]
    for r in range(NR):
        fill += [f"v_and_or_b32 v{vG+r}, v{vWd+r}, s48, v{vRi}"] + ([f"v_add_u32 v{vRi}, {(3*LPR)<<16}, v{vRi}"] if r < NR-1 else [])
    for i, op in enumerate(SCAN6):
        a(f"v_add_u32_dpp v{vC2}, v{vC2}, v{vC2} {op} bank_mask:0xf")
        if i < 5: a(fill.pop(0)); a(fill.pop(0))
    a(f"""
    v_add_u32 v{vC1}, v{vC1}, v{vC2}
    v_add_u32 v{vC2}, v{vC2}, v{vPadv}
    """)
    for r in range(NR):
        a(f"ds_bpermute_b32 v{vK+r}, v{vK+r}, v{vC1}")
    for o in fill: a(o)
    a(f"""
    v_readlane_b32 s{sTot}, v{vC2}, 63
    v_readlane_b32 s{sEnd}, v{vC2}, s53
    v_readlane_b32 s{sStart}, v{vC1}, s52
    s_cmp_gt_u32 s{sTot}, {CAP+PAD}
    s_cbranch_scc1 mn_ovf
    v_add_lshl_u32 v{u0}, s{sEnd}, v{vLane}, 2
    s_mov_b32 exec_lo, {(1<<PAD)-1}
    s_mov_b32 exec_hi, 0
    ds_write_b32 v{u0}, v{vDum} offset:{L_LIST}
    s_mov_b64 exec, -1
    v_add_lshl_u32 v{vE}, s{sStart}, v{vE}, 2
    v_add_lshl_u32 v{vEAa}, s{sStart}, v{vEAa}, 2
    v_add_lshl_u32 v{vSHa}, s{sStart}, v{vSHa}, 2
    s_waitcnt lgkmcnt(1)
    v_readfirstlane_b32 s{sMore}, v{vC0}
    """)
    def w2(r):
        a(f"v_add_lshl_u32 v{vK+r}, v{vK+r}, v{vRk+r}, 2")
        a(f"ds_write_b32 v{vK+r}, v{vG+r} offset:{L_LIST}")
    rounds("w2", w2)
    def ea_adr():
        a(f"v_lshl_add_u32 v{vSa}, v{vSa}, 4, v{vKc}")
        a(f"v_xor_b32 v{vSd}, 0x40000, v{vSa}")
    def ea_rd():
        a(f"ds_read_b128 v[{vEA1}:{vEA1+3}], v{vSa}")
        a(f"ds_read_b128 v[{vEA2}:{vEA2+3}], v{vSd}")
    def sh_adr(): a(f"v_lshlrev_b32 v{vSh}, 4, v{vSh}")
    def sh_rd(): a(f"ds_read_b128 v[{vSh}:{vSh+3}], v{vSh} offset:32")
    def mk_sl():
        a(f"v_and_b32 v{vSh+3}, 0xff, v{vSh+3}")
        a(f"v_or_b32 v{vSh+3}, 0xc000, v{vSh+3}")
        a(f"v_lshlrev_b32 v{vSh+2}, 16, v{vSh+3}")
    def mk_sl2():
        a(f"v_or_b32_dpp v{vSl}, v{vSh+2}, v{vSh+3} row_shl:4 row_mask:0xf bank_mask:0xf bound_ctrl:0")
    def a_mfma():
        for u in range(4):
            a(f"v_mfma_f32_4x4x4_16b_bf16 v[{vD+4*u}:{vD+4*u+3}], v[{vSh}:{vSh+1}], v[{vCG+2*u}:{vCG+2*u+1}], 0")
    def a_cvt():
        for h in range(2):
            for i in range(3):
                a(f"v_cvt_pk_bf16_f32 v{vAop+2*i+h}, v{vD+8*h+i}, v{vD+8*h+4+i}")
    def rw_mfma():
        a(f"v_mfma_f32_32x32x16_bf16 v[{vRW}:{vRW+15}], v[{vEA1}:{vEA1+3}], v[{vW1}:{vW1+3}], 0")
        a(f"v_mfma_f32_32x32x16_bf16 v[{vRW}:{vRW+15}], v[{vEA2}:{vEA2+3}], v[{vW2}:{vW2+3}], v[{vRW}:{vRW+15}]")
    def trreads(slot, h):
        for j in range(2):
            a(f"ds_read_b64_tr_b16 v[{vB+4*h+2*j}:{vB+4*h+2*j+1}], v{vTR} offset:{slot*1024+j*512}")
    vS0 = vB
    def XD(j): return f"buffer_load_dwordx4 v[{vX+2*j}:{vX+2*j+1}], s[{sX}:{sX+3}], 0 idxen offen{xld} lds"
    a(f"""
    s_mov_b32 m0, s{sM}
    s_sub_u32 s{sStart}, s{sStart}, 3
    s_sub_u32 s{sP}, s{sEnd}, s{sStart}
    s_lshr_b32 s{sP}, s{sP}, 2
    s_waitcnt lgkmcnt(0)
    s_barrier
    {st(4)}
    ds_read_u16 v{vX}, v{vE} offset:{L_LIST}
    ds_read_u16 v{vX+2}, v{vE} offset:{L_LIST+8}
    ds_read_u16 v{vSh}, v{vSHa} offset:{L_LIST+2}
    ds_read_u16 v{vSa}, v{vEAa} offset:{L_LIST+2}
    """)
    for r in range(2, R+2): a(f"ds_read_u16 v{vS0+r}, v{vE} offset:{L_LIST+8*r}")
    a(f"""
    s_sub_u32 s53, s53, 4
    v_readlane_b32 s{sC}, v{vC2}, s53
    s_add_u32 s53, s53, 1
    v_readlane_b32 s{sC+1}, v{vC2}, s53
    s_add_u32 s53, s53, 1
    v_readlane_b32 s{sC+2}, v{vC2}, s53
    s_add_u32 s53, s53, 1
    v_readlane_b32 s{sC+3}, v{vC2}, s53
    s_waitcnt lgkmcnt({R+2})
    """)
    a(XD(0)); a(f"s_mov_b32 m0, s{sM+1}"); a(f"s_waitcnt lgkmcnt({R})"); a(XD(1))
    sh_adr(); ea_adr()
    def xrest(r0, r1):
        for r in range(r0, r1):
            a(f"s_mov_b32 m0, s{sM+r}")
            a(f"v_mov_b32 v{vX}, v{vS0+r}")
            a(XD(0))
    if xe > 2: a("s_waitcnt lgkmcnt(0)")
    xrest(2, xe)
    if prio: a(f"s_setprio {prio}")
    a(f"s_waitcnt vmcnt({xe}) lgkmcnt(0)")
    a("s_barrier")
    sh_rd(); ea_rd()
    xrest(xe, R)
    a(f"""
    v_mov_b32 v{vX}, v{vS0+R}
    v_mov_b32 v{vX+2}, v{vS0+R+1}
    s_waitcnt vmcnt({R-2})
    """)
    trreads(0,0); trreads(1,1)
    a("s_waitcnt lgkmcnt(6)")
    a_mfma()
    if steer:
        a(f"""
    v_min_u32 v0, 1, v{vLane}
    v_lshlrev_b32 v0, 18, v0
    v_lshl_add_u32 v0, s{sQ}, 2, v0
    s_lshl_b32 s52, s{sG}, 1
    s_sub_i32 s52, 1, s52
    s_mul_i32 s53, s52, s{sP}
    s_add_i32 s53, s53, {soff}
    v_mov_b32 v{vSl}, s53
    """)
    mk_sl()
    a(f"s_waitcnt lgkmcnt(4)")
    rw_mfma()
    a(f"s_mov_b32 m0, s{sM}")
    a("s_waitcnt lgkmcnt(0)")
    a(XD(0))
    a(f"s_mov_b32 m0, s{sM+1}")
    if steer: a(f"ds_add_u32 v0, v{vSl} offset:{L_DIFF}")
    else: a("s_nop 0")
    a(XD(1))
    mk_sl2()
    a_cvt()
    for k in range(4): a(f"s_sub_u32 s{sC+k}, s{sC+k}, s{sStart}"); a(f"s_lshr_b32 s{sC+k}, s{sC+k}, 2")
    a(f"""
    s_sub_u32 s{sC+4}, s{sP}, s{sC+3}
    s_sub_u32 s{sC+3}, s{sC+3}, s{sC+2}
    s_sub_u32 s{sC+2}, s{sC+2}, s{sC+1}
    s_sub_u32 s{sC+1}, s{sC+1}, s{sC}
    s_cmp_lg_u32 s{sMore}, 0
    s_cselect_b32 s{sLeft}, s{sP}, s{sC}
    s_mov_b32 s{sK}, 0
    s_mov_b32 s{sOR}, 0
    s_sub_i32 s{sRem}, s{sP}, {1+R//2}
    s_max_i32 s{sRem}, s{sRem}, 0
    s_mul_i32 s30, s52, -4
    s_lshl_b32 s26, s{sG}, 31
    s_set_gpr_idx_on s{sM}, gpr_idx(SRC2,DST)
    {st(5)}
    s_sub_u32 s{sLeft}, s{sLeft}, 1
    s_cbranch_scc1 mn_st12
mn_st12_back:
    """)
    if stamps == 3: a(f"s_mov_b32 s{sT+6}, 0")
    a("mn_loop:")
    for d in range(12):
        b = d >> 2; k0 = 4*(d & 3)
        for j in range(4):
            a(f"v_mfma_f32_4x4x4_16b_bf16 v[{vD+4*j}:{vD+4*j+3}], v[{vAop+2*b}:{vAop+2*b+1}], v[{vB+2*j}:{vB+2*j+1}], 0 cbsz:4 abid:{k0+j}")
        s0 = (2*d+2) % R; s1 = (2*d+3) % R
        a(f"ds_read_u16 v{vX}, v{vE} offset:{L_LIST+8*(2*d+2+R)}")
        a(f"ds_read_u16 v{vX+2}, v{vE} offset:{L_LIST+8*(2*d+3+R)}")
        for j in range(2): a(f"v_readlane_b32 s{sA+j}, v{vSl}, {4*(k0+2*j)+b}")
        if steer and (d & 3) == 3:
            a(f"v_mov_b32 v{vSd}, s30")
            a(f"ds_add_rtn_u32 v{vSd}, v0, v{vSd} offset:{L_DIFF}")
        if (d & 3) == 1: a(f"ds_read_u16 v{vSa}, v{vEAa} offset:{L_LIST+2+64*(b+1)}")
        if (d & 3) == 2: ea_adr(); ea_rd()
        if d == 8: a(f"ds_read_u16 v{vSh}, v{vSHa} offset:{L_LIST+2+48*4}")
        if d == 9: sh_adr(); sh_rd()
        a(f"s_waitcnt vmcnt({R-1})"); trreads(s0, 0)
        a(f"s_waitcnt vmcnt({R-2})"); trreads(s1, 1)
        a(f"s_sub_u32 s{sRem}, s{sRem}, 1")
        a(f"s_cmov_b32 s{sOR}, 0x30000")
        for j in range(4):
            a(f"s_mov_b32 m0, s{sA+j//2}" if j%2 == 0 else f"s_lshr_b32 m0, s{sA+j//2}, 16")
            for w in range(4):
                if 'f' not in exp: a(f"v_fmac_f32 v{vAcc+w}, v{vD+4*j+w}, v{vRW+k0+j}")
        a(f"s_or_b32 m0, s{sM+s0}, s{sOR}")
        if d == 11: a_mfma()
        if (d & 3) == 3: rw_mfma()
        a("s_waitcnt lgkmcnt(2)")
        a(XD(0))
        a(f"s_or_b32 m0, s{sM+s1}, s{sOR}")
        a("s_waitcnt lgkmcnt(0)")
        a(XD(1))
        if d == 10: mk_sl()
        if d == 11:
            a_cvt()
            mk_sl2()
            for r in (vE, vEAa, vSHa): a(f"v_add_u32 v{r}, {48*4}, v{r}")
        if steer and (d & 3) == 3:
            a(f"v_readfirstlane_b32 s27, v{vSd}")
            a(f"s_setprio {prio}")
            a(f"s_xor_b32 s27, s27, s26")
            a(f"s_cmp_ge_i32 s27, 0")
            a(f"s_cbranch_scc1 mn_pr{d}")
            a(f"s_setprio {prio-1}")
            a(f"mn_pr{d}:")
        a(f"s_sub_u32 s{sLeft}, s{sLeft}, 1")
        a(f"s_cbranch_scc1 mn_st{d}")
        a(f"mn_st{d}_back:")
    if stamps == 3:
        a(f"s_memrealtime s[{sT+4}:{sT+5}]\ns_waitcnt lgkmcnt(0)\ns_lshl_b64 exec, 1, s{sT+6}\nv_mov_b32 v0, s{sT+4}\ns_mov_b64 exec, -1\ns_add_u32 s{sT+6}, s{sT+6}, 1")
    a("s_branch mn_loop")
    for d in range(13):
        a(f"mn_st{d}:")
        a(f"s_cmp_lg_u32 s{sMore}, 0")
        a(f"s_cbranch_scc1 mn_next")
        a(f"s_call_b64 s[{sRet}:{sRet+1}], mn_flush")
        a(f"s_branch mn_st{d}_back")
    a("mn_flush:")
    for k in (4,3,2,1): a(f"s_cmp_eq_u32 s{sK}, {k}\ns_cbranch_scc1 mn_fl{k}")
    for k in range(5):
        a(f"mn_fl{k}:")
        if stamps == 4 and k < 4: a(f"s_memrealtime s[{sT+2+2*k}:{sT+3+2*k}]")
        if k == 4:
            a(st(6))
            a(f"s_cmp_ge_u32 s{sP}, {R//2+1}\ns_cbranch_scc1 mn_fl4b\ns_waitcnt vmcnt(0)\nmn_fl4b:")
        for j in range(4*k, 4*k+4):
            a(f"v_cvt_pk_bf16_f32 v{vAcc+4*j}, v{vAcc+4*j}, v{vAcc+4*j+1}")
            a(f"v_cvt_pk_bf16_f32 v{vAcc+4*j+1}, v{vAcc+4*j+2}, v{vAcc+4*j+3}")
            a(f"ds_write_b64 v{vAW}, v[{vAcc+4*j}:{vAcc+4*j+1}] offset:{SSTR*j}")
        z = vAcc+16*k+2
        a(f"""
    s_mul_i32 s52, s{sG}, 3
    s_lshl_b32 s52, {1<<(6*k)}, s52
    v_mov_b32 v{z}, s52
    v_mov_b32 v{z+1}, 0
    s_mov_b64 exec, 1
    ds_add_u32 v{z+1}, v{z} offset:{L_DONE}
    s_mov_b64 exec, -1
    """)
        if k < 4:
            a(f"""
    s_add_u32 s{sK}, s{sK}, 1
    s_sub_u32 s{sLeft}, s{sC+k+1}, 1
    s_cbranch_scc1 mn_fl{k+1}
    s_setpc_b64 s[{sRet}:{sRet+1}]
    """)
    a(f"""
    s_waitcnt vmcnt(0) lgkmcnt(0)
    {st(7)}
    {"s_branch mn_fin" if stamps else ""}
mn_end:
    s_endpgm
    """)
    vAa=0; vOut=1; vTt=2; vO=4; vA=12; vC=24; vW=40
    sTodo=36; sO=37; sOb=38; sAb=39; sOp=32; sOn=33; sNx=34; sWo=40; sN0=41
    AH=2; KS=8
    gL=3; gW=2; gT=4; gT2=6; gN=8; gNs=9; gB=10; gA=11; gR=12; gCb=13; gD=14; gM=15; gTa=16; gP=17; gX=18
    def wl(f0, f1, trickle):
        for f in range(f0, f1):
            if 'w' in exp: continue
            if f % 4 == 0 or f == f0: a(f"s_add_u32 s52, s{sWo}, {(f//4)*4096}")
            a(f"buffer_load_dwordx4 v[{vW+4*f}:{vW+4*f+3}], v{gW}, {LO}, s52 offen offset:{(f%4)*1024}{wld}")
            if trickle and f-f0 >= wd: a(f"s_waitcnt vmcnt({wd})")
    a(f"""
gm_main:
    s_load_dwordx2 s[56:57], s[0:1], 64
    v_and_b32 v{gL}, 63, v0
    v_and_b32 v{gA}, 0x7f, v0
    v_lshlrev_b32 v{gA}, 2, v{gA}
    v_mov_b32 v{gB}, 0
    ds_write_b32 v{gA}, v{gB}
    v_bfe_u32 v{gR}, v0, 1, 7
    v_and_b32 v{gA}, 15, v{gR}
    v_lshrrev_b32 v{gB}, 4, v{gR}
    v_lshl_or_b32 v{gA}, v{gA}, 3, v{gB}
    v_cmp_gt_u32 vcc, {NCHUNK}, v{gA}
    v_mul_u32_u24 v{gCb}, {CH_STRIDE}, v{gA}
    v_bfrev_b32 v{gB}, 2
    v_lshlrev_b32 v{gR}, 2, v{gR}
    v_cndmask_b32 v{gR}, v{gB}, v{gR}, vcc
    v_lshlrev_b32 v{gA}, 3, v{gL}
    v_lshlrev_b32 v{gW}, 4, v{gL}
    s_lshl_b32 s{sWo}, s{sQ}, 15
    s_add_u32 s{sWo}, s{sWo}, {WS_WT}
    s_waitcnt lgkmcnt(0)
    s_mov_b32 s{sLOW}, s54
    s_and_b32 s{sLOW+1}, s55, 0xffff
    buffer_load_dword v{gT}, v{gR}, {LO}, s{sTo} offen
    buffer_load_dwordx2 v[{gT2}:{gT2+1}], v{gA}, {LO}, s{sTo} offen
    s_barrier
    """)
    if ntouch:
        a(f"""
    s_lshl2_add_u32 s47, s47, s{sQ}
    s_mul_i32 s47, s47, {CH_STRIDE}
    s_mul_i32 s48, s48, {CH_STRIDE//8}
    s_add_u32 s47, s47, s48
    s_sub_i32 s47, s47, 256
    s_max_i32 s47, s47, 0
    v_lshlrev_b32 v{gA}, 7, v{gL}
    buffer_load_dword v39, v{gA}, {LO}, s47 offen
    """)
    wl(0, w0, False)
    a(f"""
    s_mul_i32 s{sN0}, s2, 625
    s_add_u32 s52, s{sN0}, {625+15}
    s_add_u32 s{sN0}, s{sN0}, 15
    s_lshr_b32 s{sN0}, s{sN0}, 4
    s_lshr_b32 s52, s52, 4
    s_mov_b32 s{sOUT}, s56
    s_and_b32 s{sOUT+1}, s57, 0xffff
    s_lshl_b32 s{sOUT+2}, s52, 11
    s_mov_b32 s{sOUT+3}, 0x20000
    s_mul_i32 s42, s{sQ}, {QSTR}
    s_add_u32 s42, s42, {RB}
    s_lshl_b32 s43, s{sQ}, 4
    s_sub_u32 s43, s43, 1
    s_mov_b32 s44, -1
    s_mov_b32 s45, {(~(BADM>>32)) & 0xffffffff}
    """)
    for i in range(3):
        a(f"v_add_u32 v{gA}, {64*i}, v{gL}")
        a(f"v_mul_u32_u24 v{gB}, 21846, v{gA}")
        a(f"v_lshrrev_b32 v{gB}, 16, v{gB}")
        a(f"v_lshl_add_u32 v{34+i}, v{gB}, 2, s42")
        a(f"v_mad_i32_i24 v{gB}, v{gB}, -3, v{gA}")
        a(f"v_lshlrev_b32 v{30+i}, 4, v{gB}")
    a(f"s_waitcnt vmcnt({(1 if ntouch else 0)+(w0 if 'w' not in exp else 0)})")
    a("gm_pass:")
    clampn(gN, gT); clampn(gA, gT2); clampn(gB, gT2+1)
    a(f"""
    v_mov_b32 v{gNs}, v{gN}
    v_cndmask_b32 v{gB}, 0, v{gB}, s[44:45]
    v_add_u32 v{gB}, v{gA}, v{gB}
    v_and_b32 v{gR}, 1, v0
    v_and_b32 v{gD}, 0xffff, v{gT}
    """)
    fill = [f"v_add3_u32 v{gD}, v{gD}, v{gR}, s{sDone}", f"v_mad_u32_u24 v{gD}, v{gD}, {REC}, v{gCb}", f"v_sub_u32 v{gM}, v{gN}, v{gR}", "s_nop 0", "s_nop 0", "s_nop 0"]
    for i, op in enumerate(SCAN6):
        a(f"v_add_u32_dpp v{gB}, v{gB}, v{gB} {op} bank_mask:0xf")
        if i >= 1: a(f"v_add_u32_dpp v{gNs}, v{gNs}, v{gNs} {op} bank_mask:0xf")
        else: a("s_nop 0")
        a(fill.pop(0))
    a(f"""
    v_readlane_b32 s{sTot}, v{gB}, 63
    v_readlane_b32 s46, v{gB}, s43
    v_readlane_b32 s47, v{gNs}, 63
    v_sub_u32 v{gTa}, v{gNs}, v{gM}
    v_lshl_add_u32 v{gTa}, v{gTa}, 2, s42
    s_cmp_gt_u32 s{sTot}, {CAP}
    s_cbranch_scc1 gm_ovf
    s_cmp_eq_u32 s{sQ}, 0
    s_cmov_b32 s46, 0
    {"s_barrier" if b2 == 2 else ""}
    """)
    for r in range(LPR*NR//2):
        a(f"v_cmpx_lt_i32 vcc, {2*r}, v{gM}")
        a(f"s_cbranch_execz gm_tb_done")
        a(f"ds_write_b32 v{gTa}, v{gD} offset:{8*r}")
        if r < LPR*NR//2-1: a(f"v_add_u32 v{gD}, {2*REC}, v{gD}")
    a(f"""
gm_tb_done:
    s_mov_b64 exec, -1
    s_mul_i32 s46, s46, {REC}
    s_add_u32 m0, s46, {L_RAW}
    s_mul_i32 s47, s47, 3
    v_mov_b32 v{gA}, v34
    v_mov_b32 v{gB}, v35
    v_mov_b32 v{gD}, v36
    {"s_barrier" if b2 == 1 else ""}
gm_raw:
    """)
    tb = (gA, gB, gD)
    for i in range(9): a(f"ds_read_b32 v{gX+i}, v{tb[i%3]} offset:{256*(i//3)}")
    for i in range(9):
        a(f"v_cmpx_gt_i32 vcc, s47, v{gL}")
        a(f"s_cbranch_execz gm_raw_done")
        a(f"s_waitcnt lgkmcnt({8-i})")
        a(f"v_add_u32 v{gX+i}, v{gX+i}, v{30+i%3}")
        a(f"buffer_load_dwordx4 v{gX+i}, {LO}, 0 offen{rld} lds")
        a(f"s_add_u32 m0, m0, 1024")
        a(f"s_sub_i32 s47, s47, 64")
    for r in tb: a(f"v_add_u32 v{r}, 768, v{r}")
    a(f"""
    s_branch gm_raw
gm_raw_done:
    s_mov_b64 exec, -1
    v_mov_b32 v{gA}, 0
    {"s_barrier" if b2 == 0 else ""}
    ds_read_b32 v{gA}, v{gA} offset:{L_MORE}
    """)
    wl(w0, wa, False)
    a("s_barrier")
    wl(wa, wb, False)
    a(f"""
    s_waitcnt vmcnt({(wb-w0) if 'w' not in exp else 0}) lgkmcnt(0)
    v_readfirstlane_b32 s{sMore}, v{gA}
    s_barrier
    s_cmp_lg_u32 s{sMore}, 0
    s_cbranch_scc1 gm_next
    {st(5)}
    {f"s_setprio {gprio}" if gprio else ""}
    """)
    if pfs and KN < XS:
        per = ((XS-KN)*16+127)//128
        per = (per+7)//8*8
        a(f"""
    s_lshr_b32 s52, s2, 3
    s_lshl2_add_u32 s52, s52, s{sQ}
    s_lshl_b32 s52, s52, 3
    s_and_b32 s53, s2, 7
    s_mul_i32 s53, s53, {XS*16}
    s_add_u32 s52, s52, s53
    s_add_u32 s52, s52, {KN*16}
    s_movk_i32 s53, {per//8}
gm_pf:
    s_min_u32 s36, s52, {N*16-8}
    s_lshl_b32 s36, s36, 7
    """)
        for j in range(8):
            for h in range(pfs): a(f"s_load_dword s37, s[50:51], s36 offset:{j*128+h*64}")
        a(f"""
    s_addk_i32 s52, 1024
    s_sub_u32 s53, s53, 1
    s_cmp_lg_u32 s53, 0
    s_cbranch_scc1 gm_pf
    s_waitcnt lgkmcnt(0)
    """)
    wl(wb, 32, True)
    a(f"""
    v_lshrrev_b32 v{vOut}, 4, v{gL}
    v_lshlrev_b32 v{vOut}, 11, v{vOut}
    v_and_b32 v4, 7, v{gL}
    v_lshl_add_u32 v{vOut}, v4, 4, v{vOut}
    v_bfe_u32 v4, v{gL}, 3, 1
    v_lshl_add_u32 v{vOut}, v4, 9, v{vOut}
    v_and_b32 v4, 3, v{gL}
    v_lshrrev_b32 v5, 2, v{gL}
    v_mul_u32_u24 v{vAa}, {SSTR}, v4
    v_lshl_add_u32 v{vAa}, v5, 3, v{vAa}
    v_add_u32 v{vAa}, {RB}, v{vAa}
    s_lshl_b32 s{sOb}, s{sN0}, 11
    s_lshl_b32 s53, s{sQ}, 7
    s_add_u32 s{sOb}, s{sOb}, s53
    s_mov_b32 s{sTodo}, 0x24924924
    s_mov_b32 s{sAb}, 0
    s_waitcnt vmcnt(0)
    {st(6)}
gm_poll:
    v_mov_b32 v{vTt}, 0
    ds_read_b32 v{vTt}, v{vTt} offset:{L_DONE}
    s_waitcnt lgkmcnt(0)
    v_readfirstlane_b32 s52, v{vTt}
    s_and_b32 s52, s52, s{sTodo}
    s_cbranch_scc1 gm_go
    s_sleep {slp}
    s_branch gm_poll
gm_go:
    {st(7) if stamps != 4 else ""}
    """)
    dec = [f"s_ff1_i32_b32 s52, s52", f"s_bitset0_b32 s{sTodo}, s52", f"s_mul_i32 s52, s52, 11", f"s_bfe_u32 s53, s52, 0x10005", f"s_bfe_u32 s52, s52, 0x30006"]
    adr0 = [f"s_mul_i32 s35, s53, {GSTR}", f"s_mul_i32 s31, s52, {4*SSTR}", f"s_add_u32 s31, s31, s35", f"s_sub_u32 s35, s31, s{sAb}", f"v_add_u32 v{vAa}, s35, v{vAa}"]
    out0 = [f"s_mov_b32 s{sAb}, s31", f"s_mul_i32 s{sOn}, s53, 5", f"s_add_u32 s{sOn}, s{sOn}, s52", f"s_lshl_b32 s{sOn}, s{sOn}, 13", f"s_add_u32 s{sOn}, s{sOn}, s{sOb}"]
    def rd(base, s, half):
        bn = vA + 4*((base+s) % 3); s %= KS
        a(f"ds_read_b64_tr_b16 v[{bn+2*half}:{bn+2*half+1}], v{vAa} offset:{(s>>1)*QSTR+(s&1)*256+128*half}")
    for o in dec + adr0: a(o)
    for s in range(AH): rd(0,s,0); rd(0,s,1)
    for o in out0: a(o)
    a(f"s_mov_b32 s{sO}, s{sOn}")
    a(f"s_mov_b32 s{sOp}, 0x7ffffff0")
    cvlo = [f"v_cvt_pk_bf16_f32 v{vO+2*r}, v{vC+r}, v{vC+4+r}" for r in range(4)]
    cvhi = [f"v_cvt_pk_bf16_f32 v{vO+2*r+1}, v{vC+8+r}, v{vC+12+r}" for r in (1,0,3,2)]
    def fin():
        ops = []
        for h in range(2):
            O = vO + 4*h
            ops += [f"v_mov_b32_dpp v{vTt}, v{O+2} row_ror:8 row_mask:0xf bank_mask:0xf",
                    f"v_mov_b32_dpp v{vTt+1}, v{O+3} row_ror:8 row_mask:0xf bank_mask:0xf",
                    f"v_mov_b32_dpp v{O+2}, v{O} row_ror:8 row_mask:0xf bank_mask:0x3",
                    f"v_mov_b32_dpp v{O+3}, v{O+1} row_ror:8 row_mask:0xf bank_mask:0x3",
                    f"v_mov_b32_dpp v{O}, v{vTt} quad_perm:[0,1,2,3] row_mask:0xf bank_mask:0xc",
                    f"v_mov_b32_dpp v{O+1}, v{vTt+1} quad_perm:[0,1,2,3] row_mask:0xf bank_mask:0xc",
                    f"buffer_store_dwordx4 v[{O}:{O+3}], v{vOut}, s[{sOUT}:{sOUT+3}], s{sOp} offen offset:{h*1024}{ost}"]
        if 's' in exp: ops = [o if not o.startswith('buffer_store') else 's_nop 0' for o in ops]
        return ops
    a("gm_loop:")
    for base in (0, 2, 1):
        ops = fin()
        G = {(s_, j): [] for s_ in range(KS) for j in range(4)}
        for s_ in range(KS):
            G[(s_,0)].append(("rd", s_+AH, 0)); G[(s_,1)].append(("rd", s_+AH, 1))
        G[(0,0)] = [cvhi[0], cvhi[1]] + G[(0,0)]; G[(0,1)] = [cvhi[2], cvhi[3]] + G[(0,1)]
        h0, h1 = ops[:7], ops[7:]
        G[(0,2)] += h0[0:2]; G[(0,3)] += h0[2:4]; G[(1,0)] += h0[4:5]; G[(1,1)] += h0[5:6]; G[(1,2)] += h0[6:7] + h1[0:1]
        G[(1,3)] += h1[1:3]; G[(2,0)] += h1[3:4]; G[(2,1)] += h1[4:5]; G[(2,2)] += h1[5:7]
        G[(3,2)] += [f"v_mov_b32 v{vTt}, 0"]; G[(3,3)] += [f"ds_read_b32 v{vTt}, v{vTt} offset:{L_DONE}"]
        G[(4,2)] += ["s_waitcnt lgkmcnt(2)", f"v_readfirstlane_b32 s52, v{vTt}", f"s_and_b32 s52, s52, s{sTodo}"]
        G[(4,3)] += [f"s_cselect_b32 s{sNx}, 1, 0", dec[0]]
        G[(5,0)] += dec[1:3]; G[(5,1)] += dec[3:5]; G[(5,2)] += adr0[:3]; G[(5,3)] += adr0[3:]
        G[(6,2)] += out0[:3]; G[(6,3)] += out0[3:]
        G[(7,1)] += [f"s_mov_b32 s{sOp}, s{sO}", f"s_mov_b32 s{sO}, s{sOn}"]
        G[(7,2)] += [f"s_cmp_eq_u32 s{sNx}, 0", "s_nop 1"]
        for s in range(KS):
            a(f"s_waitcnt lgkmcnt({3 if s == 4 else 2})")
            b = vA + 4*((base+s) % 3)
            for j in range(4):
                w = vW + 4*(s*4+j)
                c = "0" if s == 0 else f"v[{vC+4*j}:{vC+4*j+3}]"
                if 'm' not in exp: a(f"v_mfma_f32_16x16x32_bf16 v[{vC+4*j}:{vC+4*j+3}], v[{b}:{b+3}], v[{w}:{w+3}], {c}")
                for o in G[(s,j)]:
                    if isinstance(o, tuple): rd(base, o[1], o[2])
                    else: a(o)
        if stamps == 4:
            for i in range(9): a(f"s_mov_b32 s{sT+2*i}, s{sT+2*i+2}")
            a(f"s_memrealtime s[{sT+18}:{sT+19}]")
        for o in cvlo: a(o)
        a("s_nop 0")
        a("s_cbranch_scc1 gm_drain" if base != 1 else "s_cbranch_scc0 gm_loop")
    a("gm_drain:")
    a("s_nop 2")
    for o in cvhi: a(o)
    for o in fin(): a(o)
    a(f"""
    s_cmp_lg_u32 s{sTodo}, 0
    s_cbranch_scc1 gm_poll
    {"s_branch mn_fin" if stamps else ""}
    s_endpgm
gm_ovf:
    s_movk_i32 s{sLim}, {LPR}
    s_barrier
    s_barrier
    s_barrier
    s_branch gm_pass
gm_next:
    s_add_u32 s{sDone}, s{sDone}, s{sLim}
    s_barrier
    s_branch gm_pass
    """)
    def gen(r):
        a(f"""
    v_add_u32 v{u0}, {LPR*r}, v{vJ}
    v_add_u32 v{u0}, s{sDone}, v{u0}
    v_lshrrev_b32 v{u1}, 16, v{vTt_}
    v_mov_b32 v{vWd+r}, 0
    v_cmpx_lt_u32 vcc, v{u0}, v{u1}
    s_cbranch_execz mn_g{gen.n}
    v_and_b32 v{u1}, 0xffff, v{vTt_}
    v_add_u32 v{u0}, v{u0}, v{u1}
    v_mad_u32_u24 v{u1}, v{u0}, {REC}, v{vCb}
    buffer_load_dword v{vWd+r}, v{u1}, {LO}, 0 offen offset:40
    s_waitcnt vmcnt(0)
mn_g{gen.n}:
    s_mov_b64 exec, -1
    """)
        gen.n += 1
    gen.n = 0
    a("mn_w5:")
    gen(4)
    a(f"""
mn_more:
    s_add_u32 s52, s{sDone}, s{sLim}
    v_lshrrev_b32 v{u1}, 16, v{vTt_}
    v_cmp_lt_u32 vcc, s52, v{u1}
    s_cbranch_vccz mn_count
    v_mov_b32 v{u0}, {L_MORE}
    ds_write_b32 v{u0}, v{vOne}
    s_branch mn_count
mn_ovf:
    s_movk_i32 s{sLim}, {LPR}
    s_waitcnt vmcnt(0) lgkmcnt(0)
    s_barrier
    s_branch mn_again
mn_next:
    s_set_gpr_idx_off
    s_waitcnt vmcnt(0) lgkmcnt(0)
    s_nop 7
    s_add_u32 s{sDone}, s{sDone}, s{sLim}
    v_mbcnt_lo_u32_b32 v0, -1, 0
    v_mbcnt_hi_u32_b32 v0, -1, v0
    v_lshl_add_u32 v0, s{sWv}, 6, v0
    {TOFF}
    {TLD}
    {CONST}
mn_again:
    v_mov_b32 v{u0}, 0
    ds_write_b32 v{vL4}, v{u0} offset:{L_CNT}
    ds_write_b32 v{vL4}, v{u0} offset:{L_CNT+256}
    s_waitcnt vmcnt(0) lgkmcnt(0)
    s_barrier
    """)
    gen(0)
    for r in range(1, NR): a(f"v_mov_b32 v{vWd+r}, 0")
    a(f"s_cmp_le_u32 s{sLim}, {LPR}\ns_cbranch_scc1 mn_more")
    for r in range(1, NR): gen(r)
    a("s_branch mn_more")
    if stamps:
        a(f"""
mn_fin:
    s_set_gpr_idx_off
    {f"s_memrealtime s[{sT+16}:{sT+17}]" if stamps != 4 else ""}
    s_waitcnt vmcnt(0)
    {f"s_memrealtime s[{sT+18}:{sT+19}]" if stamps != 4 else "s_memrealtime s[88:89]"}
    s_waitcnt lgkmcnt(0)
    s_lshl_b32 s90, s2, 4
    s_add_u32 s90, s90, s{sWv}
    s_lshl_b32 s90, s90, 6
    s_add_u32 s90, s90, 0xF000000
    s_add_u32 s92, s54, s90
    s_addc_u32 s93, s55, 0
    """)
        if stamps == 3: a("v_mbcnt_lo_u32_b32 v2, -1, 0\nv_lshlrev_b32 v2, 2, v2\ns_mov_b64 exec, 0x3f\nglobal_store_dword v2, v0, s[92:93] offset:40\ns_mov_b64 exec, -1")
        a("v_mov_b32 v0, 0")
        if stamps == 2: a(f"s_mov_b32 s{sT+2}, s{sP}")
        for i in range(10):
            a(f"v_mov_b32 v1, s{sT+2*i}")
            a(f"global_store_dword v0, v1, s[92:93] offset:{4*i}")
        if stamps == 4: a("v_mov_b32 v1, s88\nglobal_store_dword v0, v1, s[92:93] offset:40")
        a("s_endpgm")
    a("mn_last:\ns_endpgm")
    a.end_kernel(name, NV, 96)
    a.launch(name, NBLK, 768, 163840)
```

```python
import sys
from common import *
from k_a9 import gen_ka
from k_main17 import gen_main
a = Asm()
opts=dict(x.split('=') for x in sys.argv[2:])
def pol(k, d):
    v = opts.get(k, d)
    return '' if v in ('', '0') else ' ' + v.replace('+', ' ')
I = lambda k, d: int(opts.get(k, d))
gen_ka(a, prefetch=I('pfa',1), ld=pol('kld','0'), rst=pol('rst','sc1'), pfp=pol('pfpa','0'), KN=I('KN',320), R0=I('R0',8500), cst=pol('cst','0'), cpf=I('cpf',1), swap=I('swap',0), dly=I('dly',0), spf=I('spf',1), nb0=I('nb0',3), late=I('late',1), hlp=I('hlp',3), XR=I('XR',0), XP=I('XP',I('KN',320)))
gen_main(a, rld=pol('rld','0'), stamps=I('stamps',0), exp=opts.get('exp',''), ost=pol('ost','sc0+sc1'), KN=I('KNM',1250), wld=pol('wld','0'), xld=pol('xld','0'),
  prio=I('prio',3), slp=I('slp',2), R=I('R',6), wd=I('wd',1), steer=I('steer',1), soff=I('soff',2), gprio=I('gprio',0), ntouch=I('ntouch',1), pfs=I('pfs',2), wa=I('wa',0), wb=I('wb',0), w0=I('w0',0), b2=I('b2',1), xe=I('xe',4), ez=I('ez',0))
open(sys.argv[1],'w').write(a.text())
```

```python
from layout8 import *

L_CNT=0; L_MORE=272; L_DONE=276; L_DIFF=288; L_ZERO=320; L_LIST=512
SSTR=576
NR=5; LPR=4

vTR=1; vE=2; vEAa=3; vX=4; vSh=8; vAop=12; vSHa=18; vSl=19; vB=20; vD=28; vRW=44; vEA1=60; vEA2=64
vW1=68; vW2=72; vCG=76; vSa=84; vSd=85; vKc=86; vAW=87; vAcc=88
NV=168
sX=4; sLOW=8; sOUT=12
sWv=16; sQ=17; sG=18; sLeft=19; sLim=20; sMore=21; sTot=23; sDone=24; sTo=25; sA=28; sStart=32; sEnd=33; sRem=34; sOR=35; sM=40; sRet=48; sK=58; sP=59; sC=84
sT=64

def gen_main(a, rld='', stamps=0, exp='', ost=' sc0 sc1', KN=XS, wld='', xld='', prio=3, slp=2, R=6, wd=1, steer=1, soff=2, gprio=0,
             ntouch=0, pfs=2, wa=8, wb=16, w0=0, b2=1, xe=2, ez=0):
    name="main_kernel"
    PAD=2*R+8
    QSTR=16*SSTR+R*1024; GSTR=4*QSTR; RB=163840-2*GSTR
    CAP=min(1000,(RB-L_LIST-8*PAD-16)//52)
    L_RAW=(L_LIST+4*(CAP+2*PAD)+15)//16*16
    assert L_RAW+48*CAP <= RB and RB % 256 == 0 and CAP >= 512 and 24 % R == 0 and not (steer and stamps == 3)
    a.begin_kernel(name)
    def st(i):
        if stamps == 2 and i in (5,6): return f"s_memrealtime s[{sT+2*i}:{sT+2*i+1}]\ns_memtime s[{sT+2*(i-3)}:{sT+2*(i-3)+1}]"
        return f"s_memrealtime s[{sT+2*i}:{sT+2*i+1}]" if (stamps and (stamps == 1 or i in (0,5,6,7))) else ""
    LO = f"s[{sLOW}:{sLOW+3}]"
    vWd=20; vK=25; vRk=30; vJ=35; vG=36; vRi=41; vN=42; vNs=43; vT2=44; vCb=46; vL4=47; vOne=48; vPadv=49; vDum=50; vLane=51
    vC0=52; vC1=53; vC2=54; u0=55; u1=56; u2=57; vTt_=58; vB2=59
    SCAN6 = ("row_shr:1 row_mask:0xf","row_shr:2 row_mask:0xf","row_shr:4 row_mask:0xf","row_shr:8 row_mask:0xf","row_bcast:15 row_mask:0xa","row_bcast:31 row_mask:0xc")
    BADM = (1<<47)|(1<<55)|(1<<63)
    TOFF = f"""
    v_lshrrev_b32 v{u1}, 6, v0
    v_lshlrev_b32 v{u0}, 1, v0
    v_and_b32 v{u0}, 0x78, v{u0}
    v_or_b32 v{u0}, v{u0}, v{u1}
    v_cmp_gt_u32 vcc, {NCHUNK}, v{u0}
    v_mul_u32_u24 v{vCb}, {CH_STRIDE}, v{u0}
    v_bfrev_b32 v{u1}, 2
    v_lshlrev_b32 v{u0}, 4, v0
    v_and_b32 v{u2}, 0x1fc, v0
    v_cndmask_b32 v{u0}, v{u1}, v{u0}, vcc
    v_cndmask_b32 v{u2}, v{u1}, v{u2}, vcc
    v_and_b32 v{vLane}, 63, v0
    v_lshlrev_b32 v{u1}, 3, v{vLane}
"""
    TLD = f"""
    buffer_load_dword v{vTt_}, v{u2}, {LO}, s{sTo} offen
    buffer_load_dwordx2 v[{vT2}:{vT2+1}], v{u1}, {LO}, s{sTo} offen
"""
    a(f"""
    {st(0)}
    s_cmp_ge_u32 s2, {NBLK}
    s_cbranch_scc1 mn_end
    s_load_dwordx2 s[54:55], s[0:1], 80
    s_load_dwordx2 s[50:51], s[0:1], 0
    v_lshrrev_b32 v{u1}, 6, v0
    s_and_b32 s48, s2, 7
    v_readfirstlane_b32 s{sWv}, v{u1}
    s_lshr_b32 s47, s2, 3
    s_lshl_b32 s{sTo}, s48, 5
    s_add_u32 s{sTo}, s{sTo}, s47
    s_lshl_b32 s49, s{sTo}, 13
    s_add_u32 s49, s49, {WS_C}
    s_lshl_b32 s{sTo}, s{sTo}, 9
    s_add_u32 s{sTo}, s{sTo}, {WS_T}
    s_mov_b32 s{sLOW+2}, {WS_LOW}
    s_mov_b32 s{sLOW+3}, 0x20000
    s_and_b32 s{sQ}, s{sWv}, 3
    s_movk_i32 s{sLim}, {LPR*NR}
    s_mov_b32 s{sDone}, 0
    s_cmp_ge_u32 s{sWv}, 8
    s_cbranch_scc1 gm_main
    {TOFF}
    s_lshl_b32 s52, s{sQ}, 11
    s_add_u32 s52, s52, {WS_WRF}
    s_mov_b32 s53, {WS_CGF}
    v_lshlrev_b32 v{vC0}, 4, v{vLane}
    s_waitcnt lgkmcnt(0)
    s_mov_b32 s{sLOW}, s54
    s_and_b32 s{sLOW+1}, s55, 0xffff
    buffer_load_dwordx4 v[{vWd}:{vWd+3}], v{u0}, {LO}, s49 offen{rld}
    {TLD}
    s_barrier
    buffer_load_dwordx4 v[{vW1}:{vW1+3}], v{vC0}, {LO}, s52 offen
    buffer_load_dwordx4 v[{vW2}:{vW2+3}], v{vC0}, {LO}, s52 offen offset:1024
    buffer_load_dwordx4 v[{vCG}:{vCG+3}], v{vC0}, {LO}, s53 offen
    buffer_load_dwordx4 v[{vCG+4}:{vCG+7}], v{vC0}, {LO}, s53 offen offset:1024
    v_mov_b32 v{vWd+4}, 0
    s_lshr_b32 s{sG}, s{sWv}, 2
    s_lshl_b32 s53, s{sQ}, 7
    s_add_u32 s{sX}, s50, s53
    s_addc_u32 s{sX+1}, s51, 0
    s_and_b32 s{sX+1}, s{sX+1}, 0xffff
    s_or_b32 s{sX+1}, s{sX+1}, 0x08000000
    s_movk_i32 s{sX+2}, {N}
    s_mov_b32 s{sX+3}, 0x20000
    s_mul_i32 s{sM}, s{sWv}, {QSTR}
    s_add_u32 s{sM}, s{sM}, {RB}
    v_lshl_add_u32 v{vAW}, v{vLane}, 3, s{sM}
    s_add_u32 s{sM}, s{sM}, {16*SSTR}
    """)
    for r in range(1, R): a(f"s_add_u32 s{sM+r}, s{sM}, {1024*r}")
    a(f"""
    v_and_b32 v{u0}, 3, v0
    v_bfe_u32 v{u1}, v0, 2, 2
    v_bfe_u32 v{u2}, v0, 4, 1
    v_bfe_u32 v{vC1}, v0, 5, 1
    v_lshlrev_b32 v{vTR}, 3, v{u0}
    v_lshl_add_u32 v{vTR}, v{u2}, 5, v{vTR}
    v_lshl_add_u32 v{vTR}, v{u1}, 6, v{vTR}
    v_lshl_add_u32 v{vTR}, v{vC1}, 8, v{vTR}
    v_add_u32 v{vTR}, s{sM}, v{vTR}
    v_lshlrev_b32 v{vX+1}, 4, v{u0}
    v_lshl_add_u32 v{vX+1}, v{u2}, 6, v{vX+1}
    v_lshl_add_u32 v{vX+1}, v{u1}, 9, v{vX+1}
    v_mov_b32 v{vX+3}, v{vX+1}
    v_bfe_u32 v{u0}, v0, 2, 1
    v_lshlrev_b32 v{vKc}, 4, v{vC1}
    v_lshl_or_b32 v{vKc}, v{u0}, 18, v{vKc}
    """)
    CONST = f"""
    v_mov_b32 v{vOne}, 1
    v_lshlrev_b32 v{vL4}, 2, v{vLane}
    v_bfe_u32 v{vE}, v0, 5, 1
    v_bfe_u32 v{vEAa}, v0, 3, 2
    v_and_b32 v{vJ}, 3, v0
    v_lshl_add_u32 v{vEAa}, v{vEAa}, 2, v{vJ}
    v_mul_u32_u24 v{vPadv}, {PAD}, v{vE}
    v_lshrrev_b32 v{vSHa}, 2, v{vLane}
    v_lshl_add_u32 v{vSHa}, v{vJ}, 4, v{vSHa}
    v_mov_b32 v{vDum}, {((L_ZERO//16)<<16)|0x3fff}
    s_lshl_b32 s52, s{sWv}, 3
    s_bfm_b64 s[36:37], s52, 0
    s_andn2_b32 s39, s37, {BADM>>32}
    s_mov_b32 s38, s36
"""
    a(CONST)
    for i in range(0, 80, 2): a(f"v_mov_b64 v[{vAcc+i}:{vAcc+i+1}], 0")
    a(f"""
    s_mov_b32 s52, 0x110000
    s_waitcnt vmcnt(4)
    {st(1)}
    v_cmp_le_u32 vcc, s52, v{vTt_}
    s_cbranch_vccnz mn_w5
mn_count:
    """)
    def rounds(tag, body):
        for r in range(NR):
            a(f"v_cmpx_gt_i32 vcc, 0, v{vWd+r}")
            a(f"s_cbranch_execz mn_{tag}_done")
            body(r)
        a(f"mn_{tag}_done:")
        a("s_mov_b64 exec, -1")
    def cnt(r):
        a(f"v_lshrrev_b32 v{vK+r}, 23, v{vWd+r}")
        a(f"v_and_b32 v{vK+r}, 0xfc, v{vK+r}")
        a(f"ds_add_rtn_u32 v{vRk+r}, v{vK+r}, v{vOne}")
    rounds("cn", cnt)
    def clampn(dst, src):
        a(f"v_lshrrev_b32 v{dst}, 16, v{src}")
        a(f"v_subrev_u32 v{dst}, s{sDone}, v{dst}")
        a(f"v_med3_i32 v{dst}, v{dst}, 0, s{sLim}")
    clampn(vN, vTt_); clampn(u0, vT2); clampn(u1, vT2+1)
    a(f"""
    v_mov_b32 v{vNs}, v{vN}
    v_cndmask_b32 v{u0}, 0, v{u0}, s[36:37]
    v_cndmask_b32 v{u1}, 0, v{u1}, s[38:39]
    v_add_u32 v{vB2}, v{u0}, v{u1}
    v_mov_b32 v{vC0}, 0
    s_lshl_b32 s52, s{sG}, 5
    s_add_u32 s53, s52, 31
    s_waitcnt lgkmcnt(0)
    s_barrier
    {st(3)}
    ds_read_b32 v{vC1}, v{vL4} offset:{L_CNT}
    ds_read_b32 v{vC0}, v{vC0} offset:{L_MORE}
    """)
    for i, op in enumerate(SCAN6):
        a(f"v_add_u32_dpp v{vB2}, v{vB2}, v{vB2} {op} bank_mask:0xf")
        if i >= 2: a(f"v_add_u32_dpp v{vNs}, v{vNs}, v{vNs} {op} bank_mask:0xf"); a("s_nop 0")
        else: a("s_nop 1")
    a(f"""
    v_readlane_b32 s49, v{vB2}, 63
    v_sub_u32 v{vRi}, v{vNs}, v{vN}
    s_movk_i32 s48, 0x3fff
    s_waitcnt lgkmcnt(1)
    v_mov_b32 v{vC2}, v{vC1}
    v_sub_u32 v{vC1}, v{vPadv}, v{vC1}
    v_add3_u32 v{vRi}, v{vRi}, v{vJ}, s49
    """)
    fill = [f"v_mul_u32_u24 v{vRi}, {3<<16}, v{vRi}", f"v_add_u32 v{vRi}, {(L_RAW//16)<<16}, v{vRi}"]
    for r in range(NR):
        fill += [f"v_and_or_b32 v{vG+r}, v{vWd+r}, s48, v{vRi}"] + ([f"v_add_u32 v{vRi}, {(3*LPR)<<16}, v{vRi}"] if r < NR-1 else [])
    for i, op in enumerate(SCAN6):
        a(f"v_add_u32_dpp v{vC2}, v{vC2}, v{vC2} {op} bank_mask:0xf")
        if i < 5: a(fill.pop(0)); a(fill.pop(0))
    a(f"""
    v_add_u32 v{vC1}, v{vC1}, v{vC2}
    v_add_u32 v{vC2}, v{vC2}, v{vPadv}
    """)
    for r in range(NR):
        a(f"ds_bpermute_b32 v{vK+r}, v{vK+r}, v{vC1}")
    for o in fill: a(o)
    a(f"""
    v_readlane_b32 s{sTot}, v{vC2}, 63
    v_readlane_b32 s{sEnd}, v{vC2}, s53
    v_readlane_b32 s{sStart}, v{vC1}, s52
    s_cmp_gt_u32 s{sTot}, {CAP+PAD}
    s_cbranch_scc1 mn_ovf
    v_add_lshl_u32 v{u0}, s{sEnd}, v{vLane}, 2
    s_mov_b32 exec_lo, {(1<<PAD)-1}
    s_mov_b32 exec_hi, 0
    ds_write_b32 v{u0}, v{vDum} offset:{L_LIST}
    s_mov_b64 exec, -1
    v_add_lshl_u32 v{vE}, s{sStart}, v{vE}, 2
    v_add_lshl_u32 v{vEAa}, s{sStart}, v{vEAa}, 2
    v_add_lshl_u32 v{vSHa}, s{sStart}, v{vSHa}, 2
    s_waitcnt lgkmcnt(1)
    v_readfirstlane_b32 s{sMore}, v{vC0}
    """)
    def w2(r):
        a(f"v_add_lshl_u32 v{vK+r}, v{vK+r}, v{vRk+r}, 2")
        a(f"ds_write_b32 v{vK+r}, v{vG+r} offset:{L_LIST}")
    rounds("w2", w2)
    def ea_adr():
        a(f"v_lshl_add_u32 v{vSa}, v{vSa}, 4, v{vKc}")
        a(f"v_xor_b32 v{vSd}, 0x40000, v{vSa}")
    def ea_rd():
        a(f"ds_read_b128 v[{vEA1}:{vEA1+3}], v{vSa}")
        a(f"ds_read_b128 v[{vEA2}:{vEA2+3}], v{vSd}")
    def sh_adr(): a(f"v_lshlrev_b32 v{vSh}, 4, v{vSh}")
    def sh_rd(): a(f"ds_read_b128 v[{vSh}:{vSh+3}], v{vSh} offset:32")
    def mk_sl():
        a(f"v_and_b32 v{vSh+3}, 0xff, v{vSh+3}")
        a(f"v_or_b32 v{vSh+3}, 0xc000, v{vSh+3}")
        a(f"v_lshlrev_b32 v{vSh+2}, 16, v{vSh+3}")
    def mk_sl2():
        a(f"v_or_b32_dpp v{vSl}, v{vSh+2}, v{vSh+3} row_shl:4 row_mask:0xf bank_mask:0xf bound_ctrl:0")
    def a_mfma():
        for u in range(4):
            a(f"v_mfma_f32_4x4x4_16b_bf16 v[{vD+4*u}:{vD+4*u+3}], v[{vSh}:{vSh+1}], v[{vCG+2*u}:{vCG+2*u+1}], 0")
    def a_cvt():
        for h in range(2):
            for i in range(3):
                a(f"v_cvt_pk_bf16_f32 v{vAop+2*i+h}, v{vD+8*h+i}, v{vD+8*h+4+i}")
    def rw_mfma():
        a(f"v_mfma_f32_32x32x16_bf16 v[{vRW}:{vRW+15}], v[{vEA1}:{vEA1+3}], v[{vW1}:{vW1+3}], 0")
        a(f"v_mfma_f32_32x32x16_bf16 v[{vRW}:{vRW+15}], v[{vEA2}:{vEA2+3}], v[{vW2}:{vW2+3}], v[{vRW}:{vRW+15}]")
    def trreads(slot, h):
        for j in range(2):
            a(f"ds_read_b64_tr_b16 v[{vB+4*h+2*j}:{vB+4*h+2*j+1}], v{vTR} offset:{slot*1024+j*512}")
    vS0 = vB
    def XD(j): return f"buffer_load_dwordx4 v[{vX+2*j}:{vX+2*j+1}], s[{sX}:{sX+3}], 0 idxen offen{xld} lds"
    a(f"""
    s_mov_b32 m0, s{sM}
    s_sub_u32 s{sStart}, s{sStart}, 3
    s_sub_u32 s{sP}, s{sEnd}, s{sStart}
    s_lshr_b32 s{sP}, s{sP}, 2
    s_waitcnt lgkmcnt(0)
    s_barrier
    {st(4)}
    ds_read_u16 v{vX}, v{vE} offset:{L_LIST}
    ds_read_u16 v{vX+2}, v{vE} offset:{L_LIST+8}
    ds_read_u16 v{vSh}, v{vSHa} offset:{L_LIST+2}
    ds_read_u16 v{vSa}, v{vEAa} offset:{L_LIST+2}
    """)
    for r in range(2, R+2): a(f"ds_read_u16 v{vS0+r}, v{vE} offset:{L_LIST+8*r}")
    a(f"""
    s_sub_u32 s53, s53, 4
    v_readlane_b32 s{sC}, v{vC2}, s53
    s_add_u32 s53, s53, 1
    v_readlane_b32 s{sC+1}, v{vC2}, s53
    s_add_u32 s53, s53, 1
    v_readlane_b32 s{sC+2}, v{vC2}, s53
    s_add_u32 s53, s53, 1
    v_readlane_b32 s{sC+3}, v{vC2}, s53
    s_waitcnt lgkmcnt({R+2})
    """)
    a(XD(0)); a(f"s_mov_b32 m0, s{sM+1}"); a(f"s_waitcnt lgkmcnt({R})"); a(XD(1))
    sh_adr(); ea_adr()
    def xrest(r0, r1):
        for r in range(r0, r1):
            a(f"s_mov_b32 m0, s{sM+r}")
            a(f"v_mov_b32 v{vX}, v{vS0+r}")
            a(XD(0))
    if xe > 2: a("s_waitcnt lgkmcnt(0)")
    xrest(2, xe)
    if prio: a(f"s_setprio {prio}")
    a(f"s_waitcnt vmcnt({xe}) lgkmcnt(0)")
    a("s_barrier")
    sh_rd(); ea_rd()
    xrest(xe, R)
    a(f"""
    v_mov_b32 v{vX}, v{vS0+R}
    v_mov_b32 v{vX+2}, v{vS0+R+1}
    s_waitcnt vmcnt({R-2})
    """)
    trreads(0,0); trreads(1,1)
    a("s_waitcnt lgkmcnt(6)")
    a_mfma()
    if steer:
        a(f"""
    v_min_u32 v0, 1, v{vLane}
    v_lshlrev_b32 v0, 18, v0
    v_lshl_add_u32 v0, s{sQ}, 2, v0
    s_lshl_b32 s52, s{sG}, 1
    s_sub_i32 s52, 1, s52
    s_mul_i32 s53, s52, s{sP}
    s_add_i32 s53, s53, {soff}
    v_mov_b32 v{vSl}, s53
    """)
    mk_sl()
    a(f"s_waitcnt lgkmcnt(4)")
    rw_mfma()
    a(f"s_mov_b32 m0, s{sM}")
    a("s_waitcnt lgkmcnt(0)")
    a(XD(0))
    a(f"s_mov_b32 m0, s{sM+1}")
    if steer: a(f"ds_add_u32 v0, v{vSl} offset:{L_DIFF}")
    else: a("s_nop 0")
    a(XD(1))
    mk_sl2()
    a_cvt()
    for k in range(4): a(f"s_sub_u32 s{sC+k}, s{sC+k}, s{sStart}"); a(f"s_lshr_b32 s{sC+k}, s{sC+k}, 2")
    a(f"""
    s_sub_u32 s{sC+4}, s{sP}, s{sC+3}
    s_sub_u32 s{sC+3}, s{sC+3}, s{sC+2}
    s_sub_u32 s{sC+2}, s{sC+2}, s{sC+1}
    s_sub_u32 s{sC+1}, s{sC+1}, s{sC}
    s_cmp_lg_u32 s{sMore}, 0
    s_cselect_b32 s{sLeft}, s{sP}, s{sC}
    s_mov_b32 s{sK}, 0
    s_mov_b32 s{sOR}, 0
    s_mov_b64 s[46:47], -1
    s_sub_i32 s{sRem}, s{sP}, {1+R//2}
    s_max_i32 s{sRem}, s{sRem}, 0
    s_mul_i32 s30, s52, -4
    s_lshl_b32 s26, s{sG}, 31
    s_set_gpr_idx_on s{sM}, gpr_idx(SRC2,DST)
    {st(5)}
    s_sub_u32 s{sLeft}, s{sLeft}, 1
    s_cbranch_scc1 mn_st12
mn_st12_back:
    """)
    if stamps == 3: a(f"s_mov_b32 s{sT+6}, 0")
    a("mn_loop:")
    for d in range(12):
        b = d >> 2; k0 = 4*(d & 3)
        for j in range(4):
            a(f"v_mfma_f32_4x4x4_16b_bf16 v[{vD+4*j}:{vD+4*j+3}], v[{vAop+2*b}:{vAop+2*b+1}], v[{vB+2*j}:{vB+2*j+1}], 0 cbsz:4 abid:{k0+j}")
        s0 = (2*d+2) % R; s1 = (2*d+3) % R
        a(f"ds_read_u16 v{vX}, v{vE} offset:{L_LIST+8*(2*d+2+R)}")
        a(f"ds_read_u16 v{vX+2}, v{vE} offset:{L_LIST+8*(2*d+3+R)}")
        for j in range(2): a(f"v_readlane_b32 s{sA+j}, v{vSl}, {4*(k0+2*j)+b}")
        if steer and (d & 3) == 3:
            a(f"v_mov_b32 v{vSd}, s30")
            a(f"ds_add_rtn_u32 v{vSd}, v0, v{vSd} offset:{L_DIFF}")
        if (d & 3) == 1: a(f"ds_read_u16 v{vSa}, v{vEAa} offset:{L_LIST+2+64*(b+1)}")
        if (d & 3) == 2: ea_adr(); ea_rd()
        if d == 8: a(f"ds_read_u16 v{vSh}, v{vSHa} offset:{L_LIST+2+48*4}")
        if d == 9: sh_adr(); sh_rd()
        a(f"s_waitcnt vmcnt({R-1})"); trreads(s0, 0)
        a(f"s_waitcnt vmcnt({R-2})"); trreads(s1, 1)
        a(f"s_sub_u32 s{sRem}, s{sRem}, 1")
        a(f"s_cmov_b32 s{sOR}, 0x30000" if not ez else "s_cmov_b64 s[46:47], 0")
        for j in range(4):
            a(f"s_mov_b32 m0, s{sA+j//2}" if j%2 == 0 else f"s_lshr_b32 m0, s{sA+j//2}, 16")
            for w in range(4):
                if 'f' not in exp: a(f"v_fmac_f32 v{vAcc+w}, v{vD+4*j+w}, v{vRW+k0+j}")
        a(f"s_or_b32 m0, s{sM+s0}, s{sOR}")
        if d == 11: a_mfma()
        if (d & 3) == 3: rw_mfma()
        if ez: a("s_mov_b64 exec, s[46:47]")
        a("s_waitcnt lgkmcnt(2)")
        a(XD(0))
        a(f"s_or_b32 m0, s{sM+s1}, s{sOR}")
        a("s_waitcnt lgkmcnt(0)")
        a(XD(1))
        if ez: a("s_mov_b64 exec, -1")
        if d == 10: mk_sl()
        if d == 11:
            a_cvt()
            mk_sl2()
            for r in (vE, vEAa, vSHa): a(f"v_add_u32 v{r}, {48*4}, v{r}")
        if steer and (d & 3) == 3:
            a(f"v_readfirstlane_b32 s27, v{vSd}")
            a(f"s_setprio {prio}")
            a(f"s_xor_b32 s27, s27, s26")
            a(f"s_cmp_ge_i32 s27, 0")
            a(f"s_cbranch_scc1 mn_pr{d}")
            a(f"s_setprio {prio-1}")
            a(f"mn_pr{d}:")
        a(f"s_sub_u32 s{sLeft}, s{sLeft}, 1")
        a(f"s_cbranch_scc1 mn_st{d}")
        a(f"mn_st{d}_back:")
    if stamps == 3:
        a(f"s_memrealtime s[{sT+4}:{sT+5}]\ns_waitcnt lgkmcnt(0)\ns_lshl_b64 exec, 1, s{sT+6}\nv_mov_b32 v0, s{sT+4}\ns_mov_b64 exec, -1\ns_add_u32 s{sT+6}, s{sT+6}, 1")
    a("s_branch mn_loop")
    for d in range(13):
        a(f"mn_st{d}:")
        a(f"s_cmp_lg_u32 s{sMore}, 0")
        a(f"s_cbranch_scc1 mn_next")
        a(f"s_call_b64 s[{sRet}:{sRet+1}], mn_flush")
        a(f"s_branch mn_st{d}_back")
    a("mn_flush:")
    for k in (4,3,2,1): a(f"s_cmp_eq_u32 s{sK}, {k}\ns_cbranch_scc1 mn_fl{k}")
    for k in range(5):
        a(f"mn_fl{k}:")
        if stamps == 4 and k < 4: a(f"s_memrealtime s[{sT+2+2*k}:{sT+3+2*k}]")
        if k == 4:
            a(st(6))
            a(f"s_cmp_ge_u32 s{sP}, {R//2+1}\ns_cbranch_scc1 mn_fl4b\ns_waitcnt vmcnt(0)\nmn_fl4b:")
        for j in range(4*k, 4*k+4):
            a(f"v_cvt_pk_bf16_f32 v{vAcc+4*j}, v{vAcc+4*j}, v{vAcc+4*j+1}")
            a(f"v_cvt_pk_bf16_f32 v{vAcc+4*j+1}, v{vAcc+4*j+2}, v{vAcc+4*j+3}")
            a(f"ds_write_b64 v{vAW}, v[{vAcc+4*j}:{vAcc+4*j+1}] offset:{SSTR*j}")
        z = vAcc+16*k+2
        a(f"""
    s_mul_i32 s52, s{sG}, 3
    s_lshl_b32 s52, {1<<(6*k)}, s52
    v_mov_b32 v{z}, s52
    v_mov_b32 v{z+1}, 0
    s_mov_b64 exec, 1
    ds_add_u32 v{z+1}, v{z} offset:{L_DONE}
    s_mov_b64 exec, -1
    """)
        if k < 4:
            a(f"""
    s_add_u32 s{sK}, s{sK}, 1
    s_sub_u32 s{sLeft}, s{sC+k+1}, 1
    s_cbranch_scc1 mn_fl{k+1}
    s_setpc_b64 s[{sRet}:{sRet+1}]
    """)
    a(f"""
    s_waitcnt vmcnt(0) lgkmcnt(0)
    {st(7)}
    {"s_branch mn_fin" if stamps else ""}
mn_end:
    s_endpgm
    """)
    vAa=0; vOut=1; vTt=2; vO=4; vA=12; vC=24; vW=40
    sTodo=36; sO=37; sOb=38; sAb=39; sOp=32; sOn=33; sNx=34; sWo=40; sN0=41
    AH=2; KS=8
    gL=3; gW=2; gT=4; gT2=6; gN=8; gNs=9; gB=10; gA=11; gR=12; gCb=13; gD=14; gM=15; gTa=16; gP=17; gX=18
    def wl(f0, f1, trickle):
        for f in range(f0, f1):
            if 'w' in exp: continue
            if f % 4 == 0 or f == f0: a(f"s_add_u32 s52, s{sWo}, {(f//4)*4096}")
            a(f"buffer_load_dwordx4 v[{vW+4*f}:{vW+4*f+3}], v{gW}, {LO}, s52 offen offset:{(f%4)*1024}{wld}")
            if trickle and f-f0 >= wd: a(f"s_waitcnt vmcnt({wd})")
    a(f"""
gm_main:
    s_load_dwordx2 s[56:57], s[0:1], 64
    v_and_b32 v{gL}, 63, v0
    v_and_b32 v{gA}, 0x7f, v0
    v_lshlrev_b32 v{gA}, 2, v{gA}
    v_mov_b32 v{gB}, 0
    ds_write_b32 v{gA}, v{gB}
    v_bfe_u32 v{gR}, v0, 1, 7
    v_and_b32 v{gA}, 15, v{gR}
    v_lshrrev_b32 v{gB}, 4, v{gR}
    v_lshl_or_b32 v{gA}, v{gA}, 3, v{gB}
    v_cmp_gt_u32 vcc, {NCHUNK}, v{gA}
    v_mul_u32_u24 v{gCb}, {CH_STRIDE}, v{gA}
    v_bfrev_b32 v{gB}, 2
    v_lshlrev_b32 v{gR}, 2, v{gR}
    v_cndmask_b32 v{gR}, v{gB}, v{gR}, vcc
    v_lshlrev_b32 v{gA}, 3, v{gL}
    v_lshlrev_b32 v{gW}, 4, v{gL}
    s_lshl_b32 s{sWo}, s{sQ}, 15
    s_add_u32 s{sWo}, s{sWo}, {WS_WT}
    s_waitcnt lgkmcnt(0)
    s_mov_b32 s{sLOW}, s54
    s_and_b32 s{sLOW+1}, s55, 0xffff
    buffer_load_dword v{gT}, v{gR}, {LO}, s{sTo} offen
    buffer_load_dwordx2 v[{gT2}:{gT2+1}], v{gA}, {LO}, s{sTo} offen
    s_barrier
    """)
    if ntouch:
        a(f"""
    s_lshl2_add_u32 s47, s47, s{sQ}
    s_mul_i32 s47, s47, {CH_STRIDE}
    s_mul_i32 s48, s48, {CH_STRIDE//8}
    s_add_u32 s47, s47, s48
    s_sub_i32 s47, s47, 256
    s_max_i32 s47, s47, 0
    v_lshlrev_b32 v{gA}, 7, v{gL}
    buffer_load_dword v39, v{gA}, {LO}, s47 offen
    """)
    wl(0, w0, False)
    a(f"""
    s_mul_i32 s{sN0}, s2, 625
    s_add_u32 s52, s{sN0}, {625+15}
    s_add_u32 s{sN0}, s{sN0}, 15
    s_lshr_b32 s{sN0}, s{sN0}, 4
    s_lshr_b32 s52, s52, 4
    s_mov_b32 s{sOUT}, s56
    s_and_b32 s{sOUT+1}, s57, 0xffff
    s_lshl_b32 s{sOUT+2}, s52, 11
    s_mov_b32 s{sOUT+3}, 0x20000
    s_mul_i32 s42, s{sQ}, {QSTR}
    s_add_u32 s42, s42, {RB}
    s_lshl_b32 s43, s{sQ}, 4
    s_sub_u32 s43, s43, 1
    s_mov_b32 s44, -1
    s_mov_b32 s45, {(~(BADM>>32)) & 0xffffffff}
    """)
    for i in range(3):
        a(f"v_add_u32 v{gA}, {64*i}, v{gL}")
        a(f"v_mul_u32_u24 v{gB}, 21846, v{gA}")
        a(f"v_lshrrev_b32 v{gB}, 16, v{gB}")
        a(f"v_lshl_add_u32 v{34+i}, v{gB}, 2, s42")
        a(f"v_mad_i32_i24 v{gB}, v{gB}, -3, v{gA}")
        a(f"v_lshlrev_b32 v{30+i}, 4, v{gB}")
    a(f"s_waitcnt vmcnt({(1 if ntouch else 0)+(w0 if 'w' not in exp else 0)})")
    a("gm_pass:")
    clampn(gN, gT); clampn(gA, gT2); clampn(gB, gT2+1)
    a(f"""
    v_mov_b32 v{gNs}, v{gN}
    v_cndmask_b32 v{gB}, 0, v{gB}, s[44:45]
    v_add_u32 v{gB}, v{gA}, v{gB}
    v_and_b32 v{gR}, 1, v0
    v_and_b32 v{gD}, 0xffff, v{gT}
    """)
    fill = [f"v_add3_u32 v{gD}, v{gD}, v{gR}, s{sDone}", f"v_mad_u32_u24 v{gD}, v{gD}, {REC}, v{gCb}", f"v_sub_u32 v{gM}, v{gN}, v{gR}", "s_nop 0", "s_nop 0", "s_nop 0"]
    for i, op in enumerate(SCAN6):
        a(f"v_add_u32_dpp v{gB}, v{gB}, v{gB} {op} bank_mask:0xf")
        if i >= 1: a(f"v_add_u32_dpp v{gNs}, v{gNs}, v{gNs} {op} bank_mask:0xf")
        else: a("s_nop 0")
        a(fill.pop(0))
    a(f"""
    v_readlane_b32 s{sTot}, v{gB}, 63
    v_readlane_b32 s46, v{gB}, s43
    v_readlane_b32 s47, v{gNs}, 63
    v_sub_u32 v{gTa}, v{gNs}, v{gM}
    v_lshl_add_u32 v{gTa}, v{gTa}, 2, s42
    s_cmp_gt_u32 s{sTot}, {CAP}
    s_cbranch_scc1 gm_ovf
    s_cmp_eq_u32 s{sQ}, 0
    s_cmov_b32 s46, 0
    {"s_barrier" if b2 == 2 else ""}
    """)
    for r in range(LPR*NR//2):
        a(f"v_cmpx_lt_i32 vcc, {2*r}, v{gM}")
        a(f"s_cbranch_execz gm_tb_done")
        a(f"ds_write_b32 v{gTa}, v{gD} offset:{8*r}")
        if r < LPR*NR//2-1: a(f"v_add_u32 v{gD}, {2*REC}, v{gD}")
    a(f"""
gm_tb_done:
    s_mov_b64 exec, -1
    s_mul_i32 s46, s46, {REC}
    s_add_u32 m0, s46, {L_RAW}
    s_mul_i32 s47, s47, 3
    v_mov_b32 v{gA}, v34
    v_mov_b32 v{gB}, v35
    v_mov_b32 v{gD}, v36
    {"s_barrier" if b2 == 1 else ""}
gm_raw:
    """)
    tb = (gA, gB, gD)
    for i in range(9): a(f"ds_read_b32 v{gX+i}, v{tb[i%3]} offset:{256*(i//3)}")
    for i in range(9):
        a(f"v_cmpx_gt_i32 vcc, s47, v{gL}")
        a(f"s_cbranch_execz gm_raw_done")
        a(f"s_waitcnt lgkmcnt({8-i})")
        a(f"v_add_u32 v{gX+i}, v{gX+i}, v{30+i%3}")
        a(f"buffer_load_dwordx4 v{gX+i}, {LO}, 0 offen{rld} lds")
        a(f"s_add_u32 m0, m0, 1024")
        a(f"s_sub_i32 s47, s47, 64")
    for r in tb: a(f"v_add_u32 v{r}, 768, v{r}")
    a(f"""
    s_branch gm_raw
gm_raw_done:
    s_mov_b64 exec, -1
    v_mov_b32 v{gA}, 0
    {"s_barrier" if b2 == 0 else ""}
    ds_read_b32 v{gA}, v{gA} offset:{L_MORE}
    """)
    wl(w0, wa, False)
    a("s_barrier")
    wl(wa, wb, False)
    a(f"""
    s_waitcnt vmcnt({(wb-w0) if 'w' not in exp else 0}) lgkmcnt(0)
    v_readfirstlane_b32 s{sMore}, v{gA}
    s_barrier
    s_cmp_lg_u32 s{sMore}, 0
    s_cbranch_scc1 gm_next
    {st(5)}
    {f"s_setprio {gprio}" if gprio else ""}
    """)
    if pfs and KN < XS:
        per = ((XS-KN)*16+127)//128
        per = (per+7)//8*8
        a(f"""
    s_lshr_b32 s52, s2, 3
    s_lshl2_add_u32 s52, s52, s{sQ}
    s_lshl_b32 s52, s52, 3
    s_and_b32 s53, s2, 7
    s_mul_i32 s53, s53, {XS*16}
    s_add_u32 s52, s52, s53
    s_add_u32 s52, s52, {KN*16}
    s_movk_i32 s53, {per//8}
gm_pf:
    s_min_u32 s36, s52, {N*16-8}
    s_lshl_b32 s36, s36, 7
    """)
        for j in range(8):
            for h in range(pfs): a(f"s_load_dword s37, s[50:51], s36 offset:{j*128+h*64}")
        a(f"""
    s_addk_i32 s52, 1024
    s_sub_u32 s53, s53, 1
    s_cmp_lg_u32 s53, 0
    s_cbranch_scc1 gm_pf
    s_waitcnt lgkmcnt(0)
    """)
    wl(wb, 32, True)
    a(f"""
    v_lshrrev_b32 v{vOut}, 4, v{gL}
    v_lshlrev_b32 v{vOut}, 11, v{vOut}
    v_and_b32 v4, 7, v{gL}
    v_lshl_add_u32 v{vOut}, v4, 4, v{vOut}
    v_bfe_u32 v4, v{gL}, 3, 1
    v_lshl_add_u32 v{vOut}, v4, 9, v{vOut}
    v_and_b32 v4, 3, v{gL}
    v_lshrrev_b32 v5, 2, v{gL}
    v_mul_u32_u24 v{vAa}, {SSTR}, v4
    v_lshl_add_u32 v{vAa}, v5, 3, v{vAa}
    v_add_u32 v{vAa}, {RB}, v{vAa}
    s_lshl_b32 s{sOb}, s{sN0}, 11
    s_lshl_b32 s53, s{sQ}, 7
    s_add_u32 s{sOb}, s{sOb}, s53
    s_mov_b32 s{sTodo}, 0x24924924
    s_mov_b32 s{sAb}, 0
    s_waitcnt vmcnt(0)
    {st(6)}
gm_poll:
    v_mov_b32 v{vTt}, 0
    ds_read_b32 v{vTt}, v{vTt} offset:{L_DONE}
    s_waitcnt lgkmcnt(0)
    v_readfirstlane_b32 s52, v{vTt}
    s_and_b32 s52, s52, s{sTodo}
    s_cbranch_scc1 gm_go
    s_sleep {slp}
    s_branch gm_poll
gm_go:
    {st(7) if stamps != 4 else ""}
    """)
    dec = [f"s_ff1_i32_b32 s52, s52", f"s_bitset0_b32 s{sTodo}, s52", f"s_mul_i32 s52, s52, 11", f"s_bfe_u32 s53, s52, 0x10005", f"s_bfe_u32 s52, s52, 0x30006"]
    adr0 = [f"s_mul_i32 s35, s53, {GSTR}", f"s_mul_i32 s31, s52, {4*SSTR}", f"s_add_u32 s31, s31, s35", f"s_sub_u32 s35, s31, s{sAb}", f"v_add_u32 v{vAa}, s35, v{vAa}"]
    out0 = [f"s_mov_b32 s{sAb}, s31", f"s_mul_i32 s{sOn}, s53, 5", f"s_add_u32 s{sOn}, s{sOn}, s52", f"s_lshl_b32 s{sOn}, s{sOn}, 13", f"s_add_u32 s{sOn}, s{sOn}, s{sOb}"]
    def rd(base, s, half):
        bn = vA + 4*((base+s) % 3); s %= KS
        a(f"ds_read_b64_tr_b16 v[{bn+2*half}:{bn+2*half+1}], v{vAa} offset:{(s>>1)*QSTR+(s&1)*256+128*half}")
    for o in dec + adr0: a(o)
    for s in range(AH): rd(0,s,0); rd(0,s,1)
    for o in out0: a(o)
    a(f"s_mov_b32 s{sO}, s{sOn}")
    a(f"s_mov_b32 s{sOp}, 0x7ffffff0")
    cvlo = [f"v_cvt_pk_bf16_f32 v{vO+2*r}, v{vC+r}, v{vC+4+r}" for r in range(4)]
    cvhi = [f"v_cvt_pk_bf16_f32 v{vO+2*r+1}, v{vC+8+r}, v{vC+12+r}" for r in (1,0,3,2)]
    def fin():
        ops = []
        for h in range(2):
            O = vO + 4*h
            ops += [f"v_mov_b32_dpp v{vTt}, v{O+2} row_ror:8 row_mask:0xf bank_mask:0xf",
                    f"v_mov_b32_dpp v{vTt+1}, v{O+3} row_ror:8 row_mask:0xf bank_mask:0xf",
                    f"v_mov_b32_dpp v{O+2}, v{O} row_ror:8 row_mask:0xf bank_mask:0x3",
                    f"v_mov_b32_dpp v{O+3}, v{O+1} row_ror:8 row_mask:0xf bank_mask:0x3",
                    f"v_mov_b32_dpp v{O}, v{vTt} quad_perm:[0,1,2,3] row_mask:0xf bank_mask:0xc",
                    f"v_mov_b32_dpp v{O+1}, v{vTt+1} quad_perm:[0,1,2,3] row_mask:0xf bank_mask:0xc",
                    f"buffer_store_dwordx4 v[{O}:{O+3}], v{vOut}, s[{sOUT}:{sOUT+3}], s{sOp} offen offset:{h*1024}{ost}"]
        if 's' in exp: ops = [o if not o.startswith('buffer_store') else 's_nop 0' for o in ops]
        return ops
    a("gm_loop:")
    for base in (0, 2, 1):
        ops = fin()
        G = {(s_, j): [] for s_ in range(KS) for j in range(4)}
        for s_ in range(KS):
            G[(s_,0)].append(("rd", s_+AH, 0)); G[(s_,1)].append(("rd", s_+AH, 1))
        G[(0,0)] = [cvhi[0], cvhi[1]] + G[(0,0)]; G[(0,1)] = [cvhi[2], cvhi[3]] + G[(0,1)]
        h0, h1 = ops[:7], ops[7:]
        G[(0,2)] += h0[0:2]; G[(0,3)] += h0[2:4]; G[(1,0)] += h0[4:5]; G[(1,1)] += h0[5:6]; G[(1,2)] += h0[6:7] + h1[0:1]
        G[(1,3)] += h1[1:3]; G[(2,0)] += h1[3:4]; G[(2,1)] += h1[4:5]; G[(2,2)] += h1[5:7]
        G[(3,2)] += [f"v_mov_b32 v{vTt}, 0"]; G[(3,3)] += [f"ds_read_b32 v{vTt}, v{vTt} offset:{L_DONE}"]
        G[(4,2)] += ["s_waitcnt lgkmcnt(2)", f"v_readfirstlane_b32 s52, v{vTt}", f"s_and_b32 s52, s52, s{sTodo}"]
        G[(4,3)] += [f"s_cselect_b32 s{sNx}, 1, 0", dec[0]]
        G[(5,0)] += dec[1:3]; G[(5,1)] += dec[3:5]; G[(5,2)] += adr0[:3]; G[(5,3)] += adr0[3:]
        G[(6,2)] += out0[:3]; G[(6,3)] += out0[3:]
        G[(7,1)] += [f"s_mov_b32 s{sOp}, s{sO}", f"s_mov_b32 s{sO}, s{sOn}"]
        G[(7,2)] += [f"s_cmp_eq_u32 s{sNx}, 0", "s_nop 1"]
        for s in range(KS):
            a(f"s_waitcnt lgkmcnt({3 if s == 4 else 2})")
            b = vA + 4*((base+s) % 3)
            for j in range(4):
                w = vW + 4*(s*4+j)
                c = "0" if s == 0 else f"v[{vC+4*j}:{vC+4*j+3}]"
                if 'm' not in exp: a(f"v_mfma_f32_16x16x32_bf16 v[{vC+4*j}:{vC+4*j+3}], v[{b}:{b+3}], v[{w}:{w+3}], {c}")
                for o in G[(s,j)]:
                    if isinstance(o, tuple): rd(base, o[1], o[2])
                    else: a(o)
        if stamps == 4:
            for i in range(9): a(f"s_mov_b32 s{sT+2*i}, s{sT+2*i+2}")
            a(f"s_memrealtime s[{sT+18}:{sT+19}]")
        for o in cvlo: a(o)
        a("s_nop 0")
        a("s_cbranch_scc1 gm_drain" if base != 1 else "s_cbranch_scc0 gm_loop")
    a("gm_drain:")
    a("s_nop 2")
    for o in cvhi: a(o)
    for o in fin(): a(o)
    a(f"""
    s_cmp_lg_u32 s{sTodo}, 0
    s_cbranch_scc1 gm_poll
    {"s_branch mn_fin" if stamps else ""}
    s_endpgm
gm_ovf:
    s_movk_i32 s{sLim}, {LPR}
    s_barrier
    s_barrier
    s_barrier
    s_branch gm_pass
gm_next:
    s_add_u32 s{sDone}, s{sDone}, s{sLim}
    s_barrier
    s_branch gm_pass
    """)
    def gen(r):
        a(f"""
    v_add_u32 v{u0}, {LPR*r}, v{vJ}
    v_add_u32 v{u0}, s{sDone}, v{u0}
    v_lshrrev_b32 v{u1}, 16, v{vTt_}
    v_mov_b32 v{vWd+r}, 0
    v_cmpx_lt_u32 vcc, v{u0}, v{u1}
    s_cbranch_execz mn_g{gen.n}
    v_and_b32 v{u1}, 0xffff, v{vTt_}
    v_add_u32 v{u0}, v{u0}, v{u1}
    v_mad_u32_u24 v{u1}, v{u0}, {REC}, v{vCb}
    buffer_load_dword v{vWd+r}, v{u1}, {LO}, 0 offen offset:40
    s_waitcnt vmcnt(0)
mn_g{gen.n}:
    s_mov_b64 exec, -1
    """)
        gen.n += 1
    gen.n = 0
    a("mn_w5:")
    gen(4)
    a(f"""
mn_more:
    s_add_u32 s52, s{sDone}, s{sLim}
    v_lshrrev_b32 v{u1}, 16, v{vTt_}
    v_cmp_lt_u32 vcc, s52, v{u1}
    s_cbranch_vccz mn_count
    v_mov_b32 v{u0}, {L_MORE}
    ds_write_b32 v{u0}, v{vOne}
    s_branch mn_count
mn_ovf:
    s_movk_i32 s{sLim}, {LPR}
    s_waitcnt vmcnt(0) lgkmcnt(0)
    s_barrier
    s_branch mn_again
mn_next:
    s_set_gpr_idx_off
    s_waitcnt vmcnt(0) lgkmcnt(0)
    s_nop 7
    s_add_u32 s{sDone}, s{sDone}, s{sLim}
    v_mbcnt_lo_u32_b32 v0, -1, 0
    v_mbcnt_hi_u32_b32 v0, -1, v0
    v_lshl_add_u32 v0, s{sWv}, 6, v0
    {TOFF}
    {TLD}
    {CONST}
mn_again:
    v_mov_b32 v{u0}, 0
    ds_write_b32 v{vL4}, v{u0} offset:{L_CNT}
    ds_write_b32 v{vL4}, v{u0} offset:{L_CNT+256}
    s_waitcnt vmcnt(0) lgkmcnt(0)
    s_barrier
    """)
    gen(0)
    for r in range(1, NR): a(f"v_mov_b32 v{vWd+r}, 0")
    a(f"s_cmp_le_u32 s{sLim}, {LPR}\ns_cbranch_scc1 mn_more")
    for r in range(1, NR): gen(r)
    a("s_branch mn_more")
    if stamps:
        a(f"""
mn_fin:
    s_set_gpr_idx_off
    {f"s_memrealtime s[{sT+16}:{sT+17}]" if stamps != 4 else ""}
    s_waitcnt vmcnt(0)
    {f"s_memrealtime s[{sT+18}:{sT+19}]" if stamps != 4 else "s_memrealtime s[88:89]"}
    s_waitcnt lgkmcnt(0)
    s_lshl_b32 s90, s2, 4
    s_add_u32 s90, s90, s{sWv}
    s_lshl_b32 s90, s90, 6
    s_add_u32 s90, s90, 0xF000000
    s_add_u32 s92, s54, s90
    s_addc_u32 s93, s55, 0
    """)
        if stamps == 3: a("v_mbcnt_lo_u32_b32 v2, -1, 0\nv_lshlrev_b32 v2, 2, v2\ns_mov_b64 exec, 0x3f\nglobal_store_dword v2, v0, s[92:93] offset:40\ns_mov_b64 exec, -1")
        a("v_mov_b32 v0, 0")
        if stamps == 2: a(f"s_mov_b32 s{sT+2}, s{sP}")
        for i in range(10):
            a(f"v_mov_b32 v1, s{sT+2*i}")
            a(f"global_store_dword v0, v1, s[92:93] offset:{4*i}")
        if stamps == 4: a("v_mov_b32 v1, s88\nglobal_store_dword v0, v1, s[92:93] offset:40")
        a("s_endpgm")
    a("mn_last:\ns_endpgm")
    a.end_kernel(name, NV, 96)
    a.launch(name, NBLK, 768, 163840)
```

```python
from layout13 import *

def gen_ka(a, ld='', rst='', pfp='', prefetch=True, KN=XS, R0=8500, cst='', cpf=1, swap=0, XR=XS, XP=XS, dly=0, spf=1, nb0=6, late=0, hlp=0, cearly=1, tst='', wb=0):
    name="ka_kernel"
    L_TAB=1024; L_CELL=L_TAB+10*1024; L_PERM=L_CELL+16384; L_EA=L_PERM+5120; L_SH=L_EA+40960; L_END=L_SH+10240
    def unit(k, vi, vs, va):
        return f"""v_lshl_add_u32 v{va}, v0, 1, {k}
    v_mul_u32_u24 v{vi}, 13108, v{va}
    v_lshrrev_b32 v{vi}, 16, v{vi}
    v_mad_i32_i24 v{va}, v{vi}, -5, v{va}
    v_lshlrev_b32 v{vi}, 2, v{vi}
    v_cmp_eq_u32 vcc, 4, v{va}
    v_lshlrev_b32 v{va}, 3, v{va}
    v_add_u32 v{va}, {L_EA}, v{va}
    v_cndmask_b32 v{vs}, 5, 3, vcc
    v_cndmask_b32 v{va}, v{va}, v19, vcc
"""
    assert all((u*13108)>>16 == u//5 for u in range(1280))
    COPYC = f"""v_mov_b32 v19, {L_SH}
    {unit(0,16,17,18)}
    {unit(1,12,13,14)}
    s_mul_i32 s31, s2, {CH_STRIDE}"""
    assert cearly
    WB = f"""s_cmp_lg_u32 s18, {wb-1}
    s_cbranch_scc1 ka_nowb
    s_cmp_ge_u32 s2, 136
    s_cbranch_scc1 ka_nowb
    s_waitcnt vmcnt(0)
    buffer_wbl2 sc1
ka_nowb:""" if wb else ""
    NL=KN*16
    HL=(NL+16*64-1)//(16*64)*64
    assert HL <= 1280
    a.begin_kernel(name)
    HLP = f"""s_sub_u32 s34, s2, 127
    s_mul_i32 s34, s34, {CHUNK*32}
    s_sub_u32 s34, s34, {hlp*8192}
    v_lshl_add_u32 v44, v0, 7, s34
    v_min_u32 v44, {E*32-4}, v44""" if hlp else ""
    HLP2 = f"""s_cmp_ge_u32 s18, {hlp}
    s_cbranch_scc1 ka_nohlp
    global_load_dword v45, v44, s[10:11]
ka_nohlp:""" if hlp else ""
    SPF = """s_cmp_lt_u32 s2, 128
    s_cbranch_scc1 ka_nospf
    s_getpc_b64 s[36:37]
ka_pc0:
    v_lshlrev_b32 v41, 7, v0
    v_min_u32 v41, mn_last-ka_pc0, v41
    global_load_dword v41, v41, s[36:37]
ka_nospf:""" if spf else ""
    if spf: cpf = 0
    CPF = """s_cmp_lg_u32 s18, 0
    s_cbranch_scc1 ka_nocpf
    s_cmp_ge_u32 s2, 144
    s_cbranch_scc1 ka_nocpf
    s_getpc_b64 s[36:37]
ka_pc:
    s_add_u32 s36, s36, main_kernel-ka_pc
    s_addc_u32 s37, s37, 0
    s_bfe_u32 s38, s2, 0x10003
    s_lshl_b32 s38, s38, 13
    v_lshl_add_u32 v41, v1, 7, s38
    v_min_u32 v41, mn_last-main_kernel, v41
    global_load_dword v41, v41, s[36:37]
ka_nocpf:""" if cpf else ""
    a(f"""
    s_cmp_ge_u32 s2, 256
    s_cbranch_scc1 ka_end
    {SPF}
    s_load_dwordx8 s[4:11], s[0:1], 8
    s_load_dwordx2 s[16:17], s[0:1], 0
    s_load_dwordx2 s[14:15], s[0:1], 80
    s_load_dwordx2 s[32:33], s[0:1], 56
    v_lshrrev_b32 v9, 6, v0
    v_and_b32 v1, 63, v0
    v_readfirstlane_b32 s18, v9
    s_cmp_ge_u32 s2, 128
    s_cbranch_scc1 ka_pf
    s_cmp_ge_u32 s2, {NCHUNK}
    s_cbranch_scc1 ka_extra
    s_mul_i32 s3, s2, {CHUNK}
    v_add_u32 v4, s3, v0
    v_lshlrev_b32 v5, 2, v4
    s_mov_b32 s22, {WS_LOW}
    s_mov_b32 s23, 0x20000
    s_and_b32 s28, s2, 7
    s_lshl_b32 s28, s28, 4
    s_lshr_b32 s29, s2, 3
    s_add_u32 s28, s28, s29
    s_cmp_ge_u32 s18, 10
    s_waitcnt lgkmcnt(0)
    s_mov_b32 s20, s14
    s_cbranch_scc1 ka_dma
    global_load_dword v10, v5, s[6:7]{ld}
    global_load_dword v60, v5, s[6:7] offset:{640*4}{ld}
    global_load_dword v11, v5, s[4:5]{ld}
    global_load_dword v61, v5, s[4:5] offset:{640*4}{ld}
    v_lshlrev_b32 v2, 2, v0
    v_and_b32 v2, 0x3fc, v2
    v_lshlrev_b32 v5, 4, v0
    v_mov_b32 v44, 0
    v_mov_b32 v45, 0
    v_mov_b32 v46, 0
    v_mov_b32 v47, 0
    ds_write_b32 v2, v44
    ds_write_b128 v5, v[44:47] offset:{L_CELL}
    ds_write_b128 v5, v[44:47] offset:{L_CELL+16384-10240}
    s_and_b32 s21, s15, 0xffff
    s_lshl_b32 s28, s28, 2
    s_add_u32 s28, s28, {WS_T}
    v_mov_b32 v3, 1
    v_lshlrev_b32 v26, 4, v1
    s_lshl_b32 s19, s18, 10
    v_add_u32 v27, s19, v26
    v_mov_b32 v4, 0x40000
    s_movk_i32 s29, 625
    s_movk_i32 s38, 0x3fff
    s_waitcnt lgkmcnt(0)
    s_barrier
    {COPYC}
    """)
    sets = [dict(d=10,s=11,L=32,T=33,A=35,R=36,U=39,sh=20,B=43,C=40,W=34),
            dict(d=60,s=61,L=62,T=63,A=66,R=67,U=68,sh=72,B=69,C=70,W=71)]
    for i,z in enumerate(sets):
        a(f"""
    s_waitcnt vmcnt({3-i})
    v_mul_u32_u24 v{z['L']}, {MAGICB}, v{z['d']}
    v_lshrrev_b32 v{z['L']}, 23, v{z['L']}
    v_min_u32 v{z['L']}, {NBLK-1}, v{z['L']}
    v_and_b32 v{z['A']}, 7, v{z['L']}
    v_lshrrev_b32 v{z['T']}, 3, v{z['L']}
    v_lshl_add_u32 v{z['A']}, v{z['A']}, 5, v{z['T']}
    v_lshlrev_b32 v{z['A']}, 2, v{z['A']}
    ds_add_rtn_u32 v{z['R']}, v{z['A']}, v3
    """)
    MB = (27<<20)//R0
    assert XR == 0 and not swap
    pre = []; post = []
    for z in sets:
        w10 = z['sh']+2; w11 = z['sh']+3; t = z['W']
        pre += [f"v_mad_u32_u24 v{z['T']}, v{z['L']}, s29, 15",
                f"v_lshrrev_b32 v{z['T']}, 4, v{z['T']}",
                f"v_sub_u32 v{z['T']}, v{z['d']}, v{z['T']}",
                f"v_subrev_u32 v{z['L']}, 20, v{z['T']}",
                f"v_min_u32 v{z['L']}, v{z['L']}, v{z['T']}",
                f"v_min_u32 v{z['L']}, 19, v{z['L']}",
                f"v_lshlrev_b32 v{z['C']}, 4, v{z['A']}",
                f"v_add_u32 v{z['A']}, s19, v{z['A']}"]
        post += [f"v_mul_u32_u24 v{z['U']}, {MB}, v{z['s']}",
                 f"v_lshrrev_b32 v{z['U']}, 20, v{z['U']}",
                 f"v_lshrrev_b32 v{t}, 2, v{z['L']}",
                 f"v_cmp_gt_u32 vcc, 27, v{z['U']}",
                 f"v_add_u32 v{t}, 27, v{t}",
                 f"v_lshlrev_b32 v{w11}, 14, v{z['L']}",
                 f"v_cndmask_b32 v{z['U']}, v{t}, v{z['U']}, vcc",
                 f"v_cmp_le_u32 vcc, 20, v{z['T']}",
                 f"v_and_or_b32 v{w10}, v{z['s']}, s38, v{w11}",
                 f"v_or_b32 v{z['U']}, 64, v{z['U']}",
                 f"v_add_u32 v{t}, 32, v{z['U']}",
                 f"v_cndmask_b32 v{z['U']}, v{z['U']}, v{t}, vcc",
                 f"v_lshl_or_b32 v{w10}, v{z['U']}, 25, v{w10}",
                 f"v_cmp_lt_u32 vcc, 15, v{z['R']}",
                 f"v_and_b32 v{t}, 3, v{z['R']}",
                 f"v_lshl_add_u32 v{z['C']}, v{t}, 4, v{z['C']}",
                 f"v_and_or_b32 v{z['C']}, v{z['R']}, 12, v{z['C']}",
                 f"v_cndmask_b32 v{z['C']}, v{z['C']}, v4, vcc",
                 f"ds_write_b32 v{z['C']}, v{w10} offset:{L_CELL}"]
    for o in pre: a(o)
    if cearly:
        a("s_waitcnt vmcnt(0) lgkmcnt(0)")
        for o in post: a(o)
        post = []
    a(f"""
    s_waitcnt lgkmcnt(0)
    s_barrier
    ds_read_b128 v[44:47], v26
    ds_read_b32 v37, v2
    v_add_u32 v28, s19, v2
    v_lshlrev_b32 v29, 9, v0
    v_add_u32 v9, 640, v0
    v_max_u32 v8, v36, v67
    v_cmp_lt_u32 vcc, 15, v8
    """)
    P = lambda: a(post.pop(0) if post else "s_nop 0")
    if post:
        for _ in range(8): P()
    a(f"""
    s_waitcnt lgkmcnt(1)
    v_add_u32 v53, v44, v45
    v_add_u32 v54, v53, v46
    v_add_u32 v38, v54, v47
    v_mov_b32 v55, v38
    """)
    P()
    for i, op in enumerate(("row_shr:1 row_mask:0xf","row_shr:2 row_mask:0xf","row_shr:4 row_mask:0xf","row_shr:8 row_mask:0xf","row_bcast:15 row_mask:0xa","row_bcast:31 row_mask:0xc")):
        a(f"v_add_u32_dpp v38, v38, v38 {op} bank_mask:0xf")
        if i < 5: P(); P()
    a(f"""
    v_sub_u32 v56, v38, v55
    v_add_u32 v57, v56, v44
    v_add_u32 v58, v56, v53
    v_add_u32 v59, v56, v54
    ds_write_b128 v27, v[56:59] offset:{L_TAB}
    ds_read_b32 v{sets[0]['B']}, v{sets[0]['A']} offset:{L_TAB}
    ds_read_b32 v{sets[1]['B']}, v{sets[1]['A']} offset:{L_TAB}
    ds_read_b32 v30, v28 offset:{L_TAB}
    """)
    for o in post: a(o)
    a(f"""
    s_cmp_ge_u32 s18, 4
    s_waitcnt lgkmcnt(1)
    v_add_lshl_u32 v{sets[0]['B']}, v{sets[0]['B']}, v{sets[0]['R']}, 2
    v_add_lshl_u32 v{sets[1]['B']}, v{sets[1]['B']}, v{sets[1]['R']}, 2
    ds_write_b32 v{sets[0]['B']}, v0 offset:{L_PERM}
    ds_write_b32 v{sets[1]['B']}, v9 offset:{L_PERM}
    s_cbranch_scc1 ka_nohdr
    s_waitcnt lgkmcnt(2)
    v_lshl_or_b32 v30, v37, 16, v30
    buffer_store_dword v30, v29, s[20:23], s28 offen{tst}
ka_nohdr:
    s_cbranch_vccnz ka_ov
ka_ov_back:
    s_waitcnt lgkmcnt(0)
ka_copy:
    s_barrier
    """)
    for r in range(5):
        a(f"ds_read_b32 v{20+2*r}, v16 offset:{L_PERM+1024*r}")
        a(f"ds_read_b32 v{21+2*r}, v12 offset:{L_PERM+1024*r}")
    for r in range(5):
        a(f"s_waitcnt lgkmcnt(8)")
        a(f"v_lshl_add_u32 v{20+2*r}, v{20+2*r}, v17, v18")
        a(f"v_lshl_add_u32 v{21+2*r}, v{21+2*r}, v13, v14")
        a(f"ds_read_b64 v[{44+4*r}:{45+4*r}], v{20+2*r}")
        a(f"ds_read_b64 v[{46+4*r}:{47+4*r}], v{21+2*r}")
    for r in range(5):
        a(f"s_waitcnt lgkmcnt({8-2*r})")
        a(f"buffer_store_dwordx4 v[{44+4*r}:{47+4*r}], v5, s[20:23], s31 offen{rst}")
        if r < 4: a("s_addk_i32 s31, 10240")
    a(f"""
    s_endpgm
ka_ov:
    s_mul_i32 s33, s2, {CHUNK*4}
    s_add_u32 s33, s33, {WS_OV}
    buffer_store_dword v{sets[0]['sh']+2}, v{sets[0]['B']}, s[20:23], s33 offen
    buffer_store_dword v{sets[1]['sh']+2}, v{sets[1]['B']}, s[20:23], s33 offen
    s_branch ka_ov_back
ka_dma:
    s_and_b32 s21, s15, 0xffff
    s_sub_u32 s33, s18, 10
    s_lshl_b32 s34, s33, 10
    s_mul_i32 s35, s2, {CHUNK*32}
    s_add_u32 s35, s35, s34
    v_lshl_add_u32 v7, v1, 4, s35
    s_add_u32 m0, s34, {L_EA}
    s_lshl_b32 s30, s28, 6
    s_add_u32 s30, s30, {WS_C}
    s_barrier
    """)
    def dma(n0, n1):
        for i in range(n0, n1):
            a(f"global_load_lds_dwordx4 v7, s[10:11]{ld}")
            a(f"s_add_u32 m0, m0, 2048")
            a(f"v_add_u32 v7, 2048, v7")
    a(f"""
    s_mul_i32 s35, s2, {CHUNK*8}
    s_add_u32 s35, s35, s34
    v_lshl_add_u32 v8, v1, 4, s35
    s_add_u32 m0, s34, {L_SH}
    """)
    for i in range(5):
        a(f"s_nop 0\nglobal_load_lds_dwordx4 v8, s[8:9]{ld}")
        a(f"s_add_u32 m0, m0, 2048")
        a(f"v_add_u32 v8, 2048, v8")
    a(f"s_add_u32 m0, s34, {L_EA}\ns_nop 0")
    dma(0, nb0)
    a("s_barrier")
    dma(nb0, 20)
    if cearly:
        a(f"""
    v_and_b32 v2, 0x7f, v0
    v_lshlrev_b32 v5, 4, v2
    v_lshrrev_b32 v6, 2, v2
    v_lshlrev_b32 v6, 13, v6
    v_and_or_b32 v6, v5, 0x30, v6
    """)
        for r in range(8): a(f"ds_read_b128 v[{44+4*r}:{47+4*r}], v5 offset:{L_CELL+2048*r}")
        for r in range(8):
            a(f"s_waitcnt lgkmcnt({7-r})")
            a(f"buffer_store_dwordx4 v[{44+4*r}:{47+4*r}], v6, s[20:23], s30 offen{cst}")
            if r < 7: a(f"s_add_u32 s30, s30, {32*8192}")
    a(f"""
    s_waitcnt vmcnt({8 if cearly else 0})
    s_barrier
    s_endpgm
ka_pf:
    {HLP}
    s_waitcnt lgkmcnt(0)
    {HLP2}
    s_and_b32 s34, s2, 7
    s_mul_i32 s34, s34, {XP*2048}
    s_add_u32 s24, s16, s34
    s_addc_u32 s25, s17, 0
    s_and_b32 s25, s25, 0xffff
    s_mov_b32 s26, {KN*2048}
    s_mov_b32 s27, 0x20000
    s_bfe_u32 s30, s2, 0x40003
    v_lshlrev_b32 v40, 7, v0
    s_mul_i32 s30, s30, {HL*128}
    {CPF}
    s_cmp_lg_u32 s18, 9
    s_cbranch_scc1 ka_pf1
    s_bitcmp1_b32 s2, 3
    s_cbranch_scc1 ka_pf1
    s_and_b32 s35, s2, 7
    s_bfe_u32 s36, s2, 0x30004
    s_lshl_b32 s37, s35, 14
    s_lshr_b32 s38, s36, 1
    s_lshl_b32 s38, s38, 7
    s_add_u32 s37, s37, s38
    s_and_b32 s38, s36, 1
    s_lshl2_add_u32 s37, s38, s37
    v_lshrrev_b32 v44, 4, v1
    v_lshlrev_b32 v44, 11, v44
    v_and_b32 v45, 7, v1
    v_lshl_add_u32 v44, v45, 4, v44
    v_and_b32 v45, 8, v1
    v_add3_u32 v44, v44, v45, s37
    v_add_u32 v45, 0x2000, v44
    """)
    for j in range(8):
        a(f"global_load_dword v{48+j}, v{44+(j>>2)}, s[32:33] offset:{(j&3)*512}")
    a(f"""
    s_lshr_b32 s36, s36, 1
    s_lshl3_add_u32 s36, s36, s35
    s_lshl1_add_u32 s36, s36, s38
    s_lshl_b32 s36, s36, 11
    s_add_u32 s36, s36, {WS_WT}
    v_lshl_add_u32 v46, v1, 4, s36
    s_mov_b32 s38, 0x05040100
    s_mov_b32 s39, 0x07060302
    s_waitcnt vmcnt(0)
    """)
    for i in range(4):
        a(f"v_perm_b32 v{56+i}, v{49+2*i}, v{48+2*i}, s38")
        a(f"v_perm_b32 v{60+i}, v{49+2*i}, v{48+2*i}, s39")
    a(f"""
    global_store_dwordx4 v46, v[56:59], s[14:15]
    global_store_dwordx4 v46, v[60:63], s[14:15] offset:1024
ka_pf1:
    """)
    if prefetch:
        n1 = min(10, HL//64); n2 = max(0, HL//64-10)
        a(f"""
    s_cmp_ge_u32 s18, {n1}
    s_cbranch_scc1 ka_end
    {"s_waitcnt vmcnt(0)" if dly == 1 else (f"s_sleep {dly}" if dly else "")}
    buffer_load_dword v42, v40, s[24:27], s30 offen{pfp}
    {WB}
    s_cmp_ge_u32 s18, {n2}
    s_cbranch_scc1 ka_end
    s_add_u32 s30, s30, {640*128}
    buffer_load_dword v43, v40, s[24:27], s30 offen{pfp}
    """)
    a(f"""
    s_endpgm
ka_extra:
    s_cmp_lg_u32 s2, {NCHUNK}
    s_cbranch_scc1 ka_end
    s_cmp_ge_u32 s18, 5
    s_cbranch_scc1 ka_end
    s_load_dwordx4 s[36:39], s[0:1], 40
    s_lshl_b32 s34, s18, 11
    s_add_u32 s34, s34, {WS_WRF}
    v_lshl_add_u32 v46, v1, 4, s34
    s_cmp_eq_u32 s18, 5
    s_cbranch_scc1 ka_dum
    s_cmp_eq_u32 s18, 4
    s_cbranch_scc1 ka_cg
    v_lshrrev_b32 v44, 5, v1
    v_lshlrev_b32 v44, 12, v44
    v_and_b32 v45, 31, v1
    v_lshl_add_u32 v44, v45, 1, v44
    v_lshl_add_u32 v44, s18, 7, v44
    s_waitcnt lgkmcnt(0)
    """)
    for j in range(16):
        a(f"global_load_ushort v{48+j}, v44, s[38:39] offset:{(j&7)*512+(j>>3)*64}")
    a(f"""
    s_branch ka_pk
ka_cg:
    v_and_b32 v44, 3, v1
    v_lshlrev_b32 v44, 1, v44
    s_waitcnt lgkmcnt(0)
    """)
    for j in range(16):
        a(f"global_load_ushort v{48+j}, v44, s[36:37] offset:{j*8}")
    a("ka_pk:")
    a("s_waitcnt vmcnt(0)")
    for i in range(8):
        a(f"v_lshl_or_b32 v{64+i}, v{49+2*i}, 16, v{48+2*i}")
    a(f"""
    global_store_dwordx4 v46, v[64:67], s[14:15]
    global_store_dwordx4 v46, v[68:71], s[14:15] offset:1024
    s_endpgm
ka_dum:
    v_mov_b32 v46, {WS_DUM}
    v_mov_b32 v48, 0
    v_mov_b32 v49, 0
    v_mov_b32 v50, 0
    v_mov_b32 v51, 0
    v_mov_b32 v52, 0x3fff
    v_mov_b32 v53, {WS_DUM<<4}
    s_mov_b64 exec, 1
    s_waitcnt lgkmcnt(0)
    global_store_dwordx4 v46, v[48:51], s[14:15]
    global_store_dwordx4 v46, v[48:51], s[14:15] offset:16
    global_store_dwordx4 v46, v[50:53], s[14:15] offset:32
ka_end:
    s_endpgm
    """)
    a.end_kernel(name, 88, 40)
    a.launch(name, 256, 768, L_END)
```

```python
from layout13 import *

L_CNT=0; L_MORE=272; L_DONE=276; L_DIFF=288; L_ZERO=320; L_LIST=512
SSTR=576
NR=5; LPR=4

vTR=1; vE=2; vEAa=3; vX=4; vSh=8; vAop=12; vSHa=18; vSl=19; vB=20; vD=28; vRW=44; vEA1=60; vEA2=64
vW1=68; vW2=72; vCG=76; vSa=84; vSd=85; vKc=86; vAW=87; vAcc=88
NV=168
sX=4; sLOW=8; sOUT=12
sWv=16; sQ=17; sG=18; sLeft=19; sLim=20; sMore=21; sTot=23; sDone=24; sTo=25; sA=28; sStart=32; sEnd=33; sRem=34; sOR=35; sM=40; sRet=48; sK=58; sP=59; sC=84
sT=64

def gen_main(a, rld='', stamps=0, exp='', ost=' sc0 sc1', KN=XS, wld='', xld='', prio=3, slp=2, R=6, wd=1, steer=1, soff=2, gprio=0,
             ntouch=0, pfs=2, wa=8, wb=16, w0=0, b2=1, xe=2, ez=0, b3=99, gfirst=0, gt=0, fl=0, wn=0):
    name="main_kernel"
    PAD=2*R+8
    QSTR=16*SSTR+R*1024; GSTR=4*QSTR; RB=163840-2*GSTR
    CAP=min(900,(RB-L_LIST-8*PAD-48)//52)
    L_RAW=L_ZERO+((L_LIST+4*(CAP+2*PAD)-L_ZERO+47)//48)*48
    RI0=(L_RAW-L_ZERO)//48
    assert RI0+CAP < 1024
    assert L_RAW+48*CAP <= RB and RB % 256 == 0 and CAP >= 512 and 24 % R == 0
    a.begin_kernel(name)
    def st(i):
        if stamps == 2 and i in (5,6): return f"s_memrealtime s[{sT+2*i}:{sT+2*i+1}]\ns_memtime s[{sT+2*(i-3)}:{sT+2*(i-3)+1}]"
        return f"s_memrealtime s[{sT+2*i}:{sT+2*i+1}]" if (stamps and (stamps == 1 or i in (0,5,6,7))) else ""
    LO = f"s[{sLOW}:{sLOW+3}]"
    vWd=20; vK=25; vRk=30; vJ=35; vG=36; vRi=41; vN=42; vNs=43; vT2=44; vCb=46; vL4=47; vOne=48; vPadv=49; vDum=50; vLane=51
    vC0=52; vC1=53; vC2=54; u0=55; u1=56; u2=57; vTt_=58; vB2=59
    SCAN6 = ("row_shr:1 row_mask:0xf","row_shr:2 row_mask:0xf","row_shr:4 row_mask:0xf","row_shr:8 row_mask:0xf","row_bcast:15 row_mask:0xa","row_bcast:31 row_mask:0xc")
    BADM = (1<<47)|(1<<55)|(1<<63)
    TOFF = f"""
    v_lshrrev_b32 v{u1}, 6, v0
    v_lshlrev_b32 v{u0}, 1, v0
    v_and_b32 v{u0}, 0x78, v{u0}
    v_or_b32 v{u0}, v{u0}, v{u1}
    v_cmp_gt_u32 vcc, {NCHUNK}, v{u0}
    v_mul_u32_u24 v{vCb}, {CHUNK*4}, v{u0}
    v_add_u32 v{vCb}, {WS_OV}, v{vCb}
    v_bfrev_b32 v{u1}, 2
    v_lshlrev_b32 v{u0}, 4, v0
    v_and_b32 v{u2}, 0x1fc, v0
    v_cndmask_b32 v{u0}, v{u1}, v{u0}, vcc
    v_cndmask_b32 v{u2}, v{u1}, v{u2}, vcc
    v_and_b32 v{vLane}, 63, v0
    v_lshlrev_b32 v{u1}, 3, v{vLane}
"""
    GF = f"""v_subrev_u32 v0, 0x100, v0
    v_add_u32 v{u1}, 0x300, v0
    v_min_u32 v0, v0, v{u1}""" if gfirst else ""
    TLD = f"""
    buffer_load_dword v{vTt_}, v{u2}, {LO}, s{sTo} offen
    buffer_load_dwordx2 v[{vT2}:{vT2+1}], v{u1}, {LO}, s{sTo} offen
"""
    a(f"""
    {st(0)}
    s_cmp_ge_u32 s2, {NBLK}
    s_cbranch_scc1 mn_end
    s_load_dwordx2 s[54:55], s[0:1], 80
    s_load_dwordx2 s[50:51], s[0:1], 0
    {GF}
    v_lshrrev_b32 v{u1}, 6, v0
    s_and_b32 s48, s2, 7
    v_readfirstlane_b32 s{sWv}, v{u1}
    s_lshr_b32 s47, s2, 3
    s_lshl_b32 s{sTo}, s48, 5
    s_add_u32 s{sTo}, s{sTo}, s47
    s_lshl_b32 s49, s{sTo}, 13
    s_add_u32 s49, s49, {WS_C}
    s_mov_b32 s22, s49
    s_lshl_b32 s{sTo}, s{sTo}, 9
    s_add_u32 s{sTo}, s{sTo}, {WS_T}
    s_mov_b32 s{sLOW+2}, {WS_LOW}
    s_mov_b32 s{sLOW+3}, 0x20000
    s_and_b32 s{sQ}, s{sWv}, 3
    s_movk_i32 s{sLim}, {LPR*NR}
    s_mov_b32 s{sDone}, 0
    s_cmp_ge_u32 s{sWv}, 8
    s_cbranch_scc1 gm_main
    {TOFF}
    s_lshl_b32 s52, s{sQ}, 11
    s_add_u32 s52, s52, {WS_WRF}
    s_mov_b32 s53, {WS_CGF}
    v_lshlrev_b32 v{vC0}, 4, v{vLane}
    s_waitcnt lgkmcnt(0)
    s_mov_b32 s{sLOW}, s54
    s_and_b32 s{sLOW+1}, s55, 0xffff
    buffer_load_dwordx4 v[{vWd}:{vWd+3}], v{u0}, {LO}, s49 offen{rld}
    {TLD}
    s_barrier
    buffer_load_dwordx4 v[{vW1}:{vW1+3}], v{vC0}, {LO}, s52 offen
    buffer_load_dwordx4 v[{vW2}:{vW2+3}], v{vC0}, {LO}, s52 offen offset:1024
    buffer_load_dwordx4 v[{vCG}:{vCG+3}], v{vC0}, {LO}, s53 offen
    buffer_load_dwordx4 v[{vCG+4}:{vCG+7}], v{vC0}, {LO}, s53 offen offset:1024
    v_mov_b32 v{vWd+4}, 0
    s_lshr_b32 s{sG}, s{sWv}, 2
    s_lshl_b32 s53, s{sQ}, 7
    s_add_u32 s{sX}, s50, s53
    s_addc_u32 s{sX+1}, s51, 0
    s_and_b32 s{sX+1}, s{sX+1}, 0xffff
    s_or_b32 s{sX+1}, s{sX+1}, 0x08000000
    s_movk_i32 s{sX+2}, {N}
    s_mov_b32 s{sX+3}, 0x20000
    s_mul_i32 s{sM}, s{sWv}, {QSTR}
    s_add_u32 s{sM}, s{sM}, {RB}
    v_lshl_add_u32 v{vAW}, v{vLane}, 3, s{sM}
    s_add_u32 s{sM}, s{sM}, {16*SSTR}
    """)
    for r in range(1, R): a(f"s_add_u32 s{sM+r}, s{sM}, {1024*r}")
    a(f"""
    v_and_b32 v{u0}, 3, v0
    v_bfe_u32 v{u1}, v0, 2, 2
    v_bfe_u32 v{u2}, v0, 4, 1
    v_bfe_u32 v{vC1}, v0, 5, 1
    v_lshlrev_b32 v{vTR}, 3, v{u0}
    v_lshl_add_u32 v{vTR}, v{u2}, 5, v{vTR}
    v_lshl_add_u32 v{vTR}, v{u1}, 6, v{vTR}
    v_lshl_add_u32 v{vTR}, v{vC1}, 8, v{vTR}
    v_add_u32 v{vTR}, s{sM}, v{vTR}
    v_lshlrev_b32 v{vX+1}, 4, v{u0}
    v_lshl_add_u32 v{vX+1}, v{u2}, 6, v{vX+1}
    v_lshl_add_u32 v{vX+1}, v{u1}, 9, v{vX+1}
    v_mov_b32 v{vX+3}, v{vX+1}
    v_bfe_u32 v{u0}, v0, 2, 1
    v_lshlrev_b32 v{vKc}, 4, v{vC1}
    v_lshl_or_b32 v{vKc}, v{u0}, 18, v{vKc}
    """)
    CONST = f"""
    v_mov_b32 v{vOne}, 1
    v_lshlrev_b32 v{vL4}, 2, v{vLane}
    v_bfe_u32 v{vE}, v0, 5, 1
    v_bfe_u32 v{vEAa}, v0, 3, 2
    v_and_b32 v{vJ}, 3, v0
    v_lshl_add_u32 v{vEAa}, v{vEAa}, 2, v{vJ}
    v_mul_u32_u24 v{vPadv}, {PAD}, v{vE}
    v_lshrrev_b32 v{vSHa}, 2, v{vLane}
    v_lshl_add_u32 v{vSHa}, v{vJ}, 4, v{vSHa}
    v_mov_b32 v{vDum}, 0x3fff
    s_lshl_b32 s52, s{sWv}, 3
    s_bfm_b64 s[36:37], s52, 0
    s_andn2_b32 s39, s37, {BADM>>32}
    s_mov_b32 s38, s36
"""
    a(CONST)
    for i in range(0, 80, 2): a(f"v_mov_b64 v[{vAcc+i}:{vAcc+i+1}], 0")
    a(f"""
    s_mov_b32 s52, 0x110000
    s_waitcnt vmcnt(4)
    {st(1)}
    v_cmp_le_u32 vcc, s52, v{vTt_}
    s_cbranch_vccnz mn_w5
mn_count:
    """)
    def rounds(tag, body):
        for r in range(NR):
            a(f"v_cmpx_gt_i32 vcc, 0, v{vWd+r}")
            a(f"s_cbranch_execz mn_{tag}_done")
            body(r)
        a(f"mn_{tag}_done:")
        a("s_mov_b64 exec, -1")
    def cnt(r):
        a(f"v_lshrrev_b32 v{vK+r}, 23, v{vWd+r}")
        a(f"v_and_b32 v{vK+r}, 0xfc, v{vK+r}")
        a(f"ds_add_rtn_u32 v{vRk+r}, v{vK+r}, v{vOne}")
    rounds("cn", cnt)
    def clampn(dst, src):
        a(f"v_lshrrev_b32 v{dst}, 16, v{src}")
        a(f"v_subrev_u32 v{dst}, s{sDone}, v{dst}")
        a(f"v_med3_i32 v{dst}, v{dst}, 0, s{sLim}")
    clampn(vN, vTt_); clampn(u0, vT2); clampn(u1, vT2+1)
    a(f"""
    v_mov_b32 v{vNs}, v{vN}
    v_cndmask_b32 v{u0}, 0, v{u0}, s[36:37]
    v_cndmask_b32 v{u1}, 0, v{u1}, s[38:39]
    v_add_u32 v{vB2}, v{u0}, v{u1}
    v_mov_b32 v{vC0}, 0
    s_lshl_b32 s52, s{sG}, 5
    s_add_u32 s53, s52, 31
    s_waitcnt lgkmcnt(0)
    s_barrier
    {st(3)}
    ds_read_b32 v{vC1}, v{vL4} offset:{L_CNT}
    ds_read_b32 v{vC0}, v{vC0} offset:{L_MORE}
    """)
    for i, op in enumerate(SCAN6):
        a(f"v_add_u32_dpp v{vB2}, v{vB2}, v{vB2} {op} bank_mask:0xf")
        if i >= 2: a(f"v_add_u32_dpp v{vNs}, v{vNs}, v{vNs} {op} bank_mask:0xf"); a("s_nop 0")
        else: a("s_nop 1")
    a(f"""
    v_readlane_b32 s49, v{vB2}, 63
    v_sub_u32 v{vRi}, v{vNs}, v{vN}
    s_movk_i32 s48, 0x3fff
    s_waitcnt lgkmcnt(1)
    v_mov_b32 v{vC2}, v{vC1}
    v_sub_u32 v{vC1}, v{vPadv}, v{vC1}
    v_add3_u32 v{vRi}, v{vRi}, v{vJ}, s49
    """)
    fill = [f"v_add_u32 v{vRi}, {RI0}, v{vRi}", f"v_lshlrev_b32 v{vRi}, 16, v{vRi}"]
    for r in range(NR):
        fill += [f"v_and_or_b32 v{vG+r}, v{vWd+r}, s48, v{vRi}"] + ([f"v_add_u32 v{vRi}, {LPR<<16}, v{vRi}"] if r < NR-1 else [])
    for i, op in enumerate(SCAN6):
        a(f"v_add_u32_dpp v{vC2}, v{vC2}, v{vC2} {op} bank_mask:0xf")
        if i < 5: a(fill.pop(0)); a(fill.pop(0))
    a(f"""
    v_add_u32 v{vC1}, v{vC1}, v{vC2}
    v_add_u32 v{vC2}, v{vC2}, v{vPadv}
    """)
    for r in range(NR):
        a(f"ds_bpermute_b32 v{vK+r}, v{vK+r}, v{vC1}")
    for o in fill: a(o)
    for r in range(NR):
        a(f"v_bfe_u32 v{u1}, v{vWd+r}, 14, 5")
        a(f"v_lshl_or_b32 v{vG+r}, v{u1}, 26, v{vG+r}")
    a(f"""
    v_readlane_b32 s{sTot}, v{vC2}, 63
    v_readlane_b32 s{sEnd}, v{vC2}, s53
    v_readlane_b32 s{sStart}, v{vC1}, s52
    s_cmp_gt_u32 s{sTot}, {CAP+PAD}
    s_cbranch_scc1 mn_ovf
    v_add_lshl_u32 v{u0}, s{sEnd}, v{vLane}, 2
    s_mov_b32 exec_lo, {(1<<PAD)-1}
    s_mov_b32 exec_hi, 0
    ds_write_b32 v{u0}, v{vDum} offset:{L_LIST}
    s_mov_b64 exec, -1
    v_add_lshl_u32 v{vE}, s{sStart}, v{vE}, 2
    v_add_lshl_u32 v{vEAa}, s{sStart}, v{vEAa}, 2
    v_add_lshl_u32 v{vSHa}, s{sStart}, v{vSHa}, 2
    s_waitcnt lgkmcnt(1)
    v_readfirstlane_b32 s{sMore}, v{vC0}
    """)
    def w2(r):
        a(f"v_add_lshl_u32 v{vK+r}, v{vK+r}, v{vRk+r}, 2")
        a(f"ds_write_b32 v{vK+r}, v{vG+r} offset:{L_LIST}")
    rounds("w2", w2)
    def ea_adr():
        a(f"v_and_b32 v{vSa}, 0x3ff, v{vSa}")
        a(f"v_mad_u32_u24 v{vSa}, v{vSa}, 48, v{vKc}")
        a(f"v_xor_b32 v{vSd}, 0x40000, v{vSa}")
    def ea_rd():
        a(f"ds_read_b128 v[{vEA1}:{vEA1+3}], v{vSa} offset:{L_ZERO}")
        a(f"ds_read_b128 v[{vEA2}:{vEA2+3}], v{vSd} offset:{L_ZERO}")
    def sh_adr():
        a(f"v_lshrrev_b32 v{vSh+3}, 8, v{vSh}")
        a(f"v_and_b32 v{vSh}, 0x3ff, v{vSh}")
        a(f"v_mul_u32_u24 v{vSh}, 48, v{vSh}")
    def sh_rd(): a(f"ds_read_b64 v[{vSh}:{vSh+1}], v{vSh} offset:{L_ZERO+32}")
    def mk_sl():
        a(f"v_and_b32 v{vSh+3}, 0x7c, v{vSh+3}")
        a(f"v_or_b32 v{vSh+3}, 0xc000, v{vSh+3}")
        a(f"v_lshlrev_b32 v{vSh+2}, 16, v{vSh+3}")
    def mk_sl2():
        a(f"v_or_b32_dpp v{vSl}, v{vSh+2}, v{vSh+3} row_shl:4 row_mask:0xf bank_mask:0xf bound_ctrl:0")
    def a_mfma():
        for u in range(4):
            a(f"v_mfma_f32_4x4x4_16b_bf16 v[{vD+4*u}:{vD+4*u+3}], v[{vSh}:{vSh+1}], v[{vCG+2*u}:{vCG+2*u+1}], 0")
    def a_cvt():
        for h in range(2):
            for i in range(3):
                a(f"v_cvt_pk_bf16_f32 v{vAop+2*i+h}, v{vD+8*h+i}, v{vD+8*h+4+i}")
    def rw_mfma():
        a(f"v_mfma_f32_32x32x16_bf16 v[{vRW}:{vRW+15}], v[{vEA1}:{vEA1+3}], v[{vW1}:{vW1+3}], 0")
        a(f"v_mfma_f32_32x32x16_bf16 v[{vRW}:{vRW+15}], v[{vEA2}:{vEA2+3}], v[{vW2}:{vW2+3}], v[{vRW}:{vRW+15}]")
    def trreads(slot, h):
        for j in range(2):
            a(f"ds_read_b64_tr_b16 v[{vB+4*h+2*j}:{vB+4*h+2*j+1}], v{vTR} offset:{slot*1024+j*512}")
    FLI = f"""s_cselect_b64 vcc, -1, 0
    s_getpc_b64 s[60:61]
mn_pc:
    s_add_u32 s60, s60, mn_fl0-mn_pc
    s_addc_u32 s61, s61, 0
    s_mul_i32 s62, s{sG}, 7
    s_add_u32 s62, s62, 1""" if fl else ""
    assert steer or not fl
    vS0 = vB
    def XD(j): return f"buffer_load_dwordx4 v[{vX+2*j}:{vX+2*j+1}], s[{sX}:{sX+3}], 0 idxen offen{xld} lds"
    a(f"""
    s_mov_b32 m0, s{sM}
    s_sub_u32 s{sStart}, s{sStart}, 3
    s_sub_u32 s{sP}, s{sEnd}, s{sStart}
    s_lshr_b32 s{sP}, s{sP}, 2
    s_waitcnt lgkmcnt(0)
    s_barrier
    {st(4)}
    ds_read_u16 v{vX}, v{vE} offset:{L_LIST}
    ds_read_u16 v{vX+2}, v{vE} offset:{L_LIST+8}
    ds_read_u16 v{vSh}, v{vSHa} offset:{L_LIST+2}
    ds_read_u16 v{vSa}, v{vEAa} offset:{L_LIST+2}
    """)
    for r in range(2, R+2): a(f"ds_read_u16 v{vS0+r}, v{vE} offset:{L_LIST+8*r}")
    a(f"""
    s_sub_u32 s53, s53, 4
    v_readlane_b32 s{sC}, v{vC2}, s53
    s_add_u32 s53, s53, 1
    v_readlane_b32 s{sC+1}, v{vC2}, s53
    s_add_u32 s53, s53, 1
    v_readlane_b32 s{sC+2}, v{vC2}, s53
    s_add_u32 s53, s53, 1
    v_readlane_b32 s{sC+3}, v{vC2}, s53
    s_waitcnt lgkmcnt({R+2})
    """)
    a(XD(0)); a(f"s_mov_b32 m0, s{sM+1}"); a(f"s_waitcnt lgkmcnt({R})"); a(XD(1))
    sh_adr(); ea_adr()
    def xrest(r0, r1):
        for r in range(r0, r1):
            a(f"s_mov_b32 m0, s{sM+r}")
            a(f"v_mov_b32 v{vX}, v{vS0+r}")
            a(XD(0))
    if xe > 2: a("s_waitcnt lgkmcnt(0)")
    xrest(2, xe)
    if prio: a(f"s_setprio {prio}")
    a(f"s_waitcnt vmcnt({xe}) lgkmcnt(0)")
    a("s_barrier")
    a(st(2))
    sh_rd(); ea_rd()
    xrest(xe, R)
    a(f"""
    v_mov_b32 v{vX}, v{vS0+R}
    v_mov_b32 v{vX+2}, v{vS0+R+1}
    s_waitcnt vmcnt({R-2})
    """)
    trreads(0,0); trreads(1,1)
    a("s_waitcnt lgkmcnt(6)")
    a_mfma()
    if steer:
        a(f"""
    v_min_u32 v0, 1, v{vLane}
    v_lshlrev_b32 v0, 18, v0
    v_lshl_add_u32 v0, s{sQ}, 2, v0
    s_lshl_b32 s52, s{sG}, 1
    s_sub_i32 s52, 1, s52
    s_mul_i32 s53, s52, s{sP}
    s_add_i32 s53, s53, {soff}
    v_mov_b32 v{vSl}, s53
    """)
    mk_sl()
    a(f"s_waitcnt lgkmcnt(4)")
    rw_mfma()
    a(f"s_mov_b32 m0, s{sM}")
    a("s_waitcnt lgkmcnt(0)")
    a(XD(0))
    a(f"s_mov_b32 m0, s{sM+1}")
    if steer: a(f"ds_add_u32 v0, v{vSl} offset:{L_DIFF}")
    else: a("s_nop 0")
    a(XD(1))
    mk_sl2()
    a_cvt()
    for k in range(4): a(f"s_sub_u32 s{sC+k}, s{sC+k}, s{sStart}"); a(f"s_lshr_b32 s{sC+k}, s{sC+k}, 2")
    a(f"""
    s_sub_u32 s{sC+4}, s{sP}, s{sC+3}
    s_sub_u32 s{sC+3}, s{sC+3}, s{sC+2}
    s_sub_u32 s{sC+2}, s{sC+2}, s{sC+1}
    s_sub_u32 s{sC+1}, s{sC+1}, s{sC}
    s_cmp_lg_u32 s{sMore}, 0
    s_cselect_b32 s{sLeft}, s{sP}, s{sC}
    {FLI}
    s_mov_b32 s{sK}, 0
    s_mov_b32 s{sOR}, 0
    s_mov_b64 s[46:47], -1
    s_sub_i32 s{sRem}, s{sP}, {1+R//2}
    s_max_i32 s{sRem}, s{sRem}, 0
    s_mul_i32 s30, s52, -4
    s_lshl_b32 s26, s{sG}, 31
    s_set_gpr_idx_on s{sM}, gpr_idx(SRC2,DST)
    {st(5)}
    s_sub_u32 s{sLeft}, s{sLeft}, 1
    s_cbranch_scc1 mn_st12
mn_st12_back:
    """)
    if stamps == 3: a(f"s_mov_b32 s{sT+6}, 0")
    a("mn_loop:")
    for d in range(12):
        b = d >> 2; k0 = 4*(d & 3)
        for j in range(4):
            a(f"v_mfma_f32_4x4x4_16b_bf16 v[{vD+4*j}:{vD+4*j+3}], v[{vAop+2*b}:{vAop+2*b+1}], v[{vB+2*j}:{vB+2*j+1}], 0 cbsz:4 abid:{k0+j}")
        s0 = (2*d+2) % R; s1 = (2*d+3) % R
        a(f"ds_read_u16 v{vX}, v{vE} offset:{L_LIST+8*(2*d+2+R)}")
        a(f"ds_read_u16 v{vX+2}, v{vE} offset:{L_LIST+8*(2*d+3+R)}")
        for j in range(2): a(f"v_readlane_b32 s{sA+j}, v{vSl}, {4*(k0+2*j)+b}")
        if steer and (d & 3) == 3:
            a(f"v_mov_b32 v{vSd}, s30")
            a(f"ds_add_rtn_u32 v{vSd}, v0, v{vSd} offset:{L_DIFF}")
        if (d & 3) == 1: a(f"ds_read_u16 v{vSa}, v{vEAa} offset:{L_LIST+2+64*(b+1)}")
        if (d & 3) == 2: ea_adr(); ea_rd()
        if d == 8: a(f"ds_read_u16 v{vSh}, v{vSHa} offset:{L_LIST+2+48*4}")
        if d == 9: sh_adr(); sh_rd()
        a(f"s_waitcnt vmcnt({R-1})"); trreads(s0, 0)
        a(f"s_waitcnt vmcnt({R-2})"); trreads(s1, 1)
        a(f"s_sub_u32 s{sRem}, s{sRem}, 1")
        a(f"s_cmov_b32 s{sOR}, 0x30000" if not ez else "s_cmov_b64 s[46:47], 0")
        for j in range(4):
            a(f"s_mov_b32 m0, s{sA+j//2}" if j%2 == 0 else f"s_lshr_b32 m0, s{sA+j//2}, 16")
            for w in range(4):
                if 'f' not in exp: a(f"v_fmac_f32 v{vAcc+w}, v{vD+4*j+w}, v{vRW+k0+j}")
        a(f"s_or_b32 m0, s{sM+s0}, s{sOR}")
        if d == 11: a_mfma()
        if (d & 3) == 3: rw_mfma()
        if ez: a("s_mov_b64 exec, s[46:47]")
        a("s_waitcnt lgkmcnt(2)")
        a(XD(0))
        a(f"s_or_b32 m0, s{sM+s1}, s{sOR}")
        a("s_waitcnt lgkmcnt(0)")
        a(XD(1))
        if ez: a("s_mov_b64 exec, -1")
        if d == 10: mk_sl()
        if d == 11:
            a_cvt()
            mk_sl2()
            for r in (vE, vEAa, vSHa): a(f"v_add_u32 v{r}, {48*4}, v{r}")
        if steer and (d & 3) == 3:
            a(f"v_readfirstlane_b32 s27, v{vSd}")
            a(f"s_setprio {prio}")
            a(f"s_xor_b32 s27, s27, s26")
            a(f"s_cmp_ge_i32 s27, 0")
            a(f"s_cbranch_scc1 mn_pr{d}")
            a(f"s_setprio {prio-1}")
            a(f"mn_pr{d}:")
        a(f"s_sub_u32 s{sLeft}, s{sLeft}, 1")
        a(f"s_cbranch_scc1 mn_st{d}")
        a(f"mn_st{d}_back:")
    if stamps == 3:
        a(f"s_memrealtime s[62:63]\ns_waitcnt lgkmcnt(0)")
        for i in range(6): a(f"s_cmp_eq_u32 s{sT+6}, {i}\ns_cmov_b32 s{90+i}, s62")
        a(f"s_add_u32 s{sT+6}, s{sT+6}, 1")
    a("s_branch mn_loop")
    if fl:
        for d in range(13):
            a(f"mn_st{d}:")
            a(f"s_cbranch_vccnz mn_next")
            a(f"s_swappc_b64 s[{sRet}:{sRet+1}], s[60:61]")
            a(f"s_branch mn_st{d}_back")
        for k in range(5):
            a(f"mn_fl{k}:")
            if stamps == 4 and k < 4: a(f"s_memrealtime s[{sT+2+2*k}:{sT+3+2*k}]")
            if k == 4:
                a(st(6))
                a(f"s_cmp_ge_u32 s{sP}, {R//2+1}\ns_cbranch_scc1 mn_fl4b\ns_waitcnt vmcnt(0)\nmn_fl4b:")
            for j in range(4*k, 4*k+4):
                a(f"v_cvt_pk_bf16_f32 v{vAcc+4*j}, v{vAcc+4*j}, v{vAcc+4*j+1}")
                a(f"v_cvt_pk_bf16_f32 v{vAcc+4*j+1}, v{vAcc+4*j+2}, v{vAcc+4*j+3}")
                if j % 2: a(f"ds_write2_b64 v{vAW}, v[{vAcc+4*j-4}:{vAcc+4*j-3}], v[{vAcc+4*j}:{vAcc+4*j+1}] offset0:{(j%4-1)*SSTR//8} offset1:{(j%4)*SSTR//8}")
            z = vAcc+16*k+2
            a(f"""
    v_mov_b32 v{z}, s62
    v_and_b32 v{z+1}, 0x40000, v0
    ds_add_u32 v{z+1}, v{z} offset:{L_DONE}
    """)
            if k < 4:
                a(f"""
    v_add_u32 v{vAW}, {4*SSTR}, v{vAW}
    s_lshl_b32 s62, s62, 6
    s_add_u32 s60, s60, mn_fl{k+1}-mn_fl{k}
    s_addc_u32 s61, s61, 0
    s_sub_u32 s{sLeft}, s{sC+k+1}, 1
    s_cbranch_scc1 mn_fl{k+1}
    s_setpc_b64 s[{sRet}:{sRet+1}]
    """)
    else:
        for d in range(13):
            a(f"mn_st{d}:")
            a(f"s_cmp_lg_u32 s{sMore}, 0")
            a(f"s_cbranch_scc1 mn_next")
            a(f"s_call_b64 s[{sRet}:{sRet+1}], mn_flush")
            a(f"s_branch mn_st{d}_back")
        a("mn_flush:")
        for k in (4,3,2,1): a(f"s_cmp_eq_u32 s{sK}, {k}\ns_cbranch_scc1 mn_fl{k}")
        for k in range(5):
            a(f"mn_fl{k}:")
            if stamps == 4 and k < 4: a(f"s_memrealtime s[{sT+2+2*k}:{sT+3+2*k}]")
            if k == 4:
                a(st(6))
                a(f"s_cmp_ge_u32 s{sP}, {R//2+1}\ns_cbranch_scc1 mn_fl4b\ns_waitcnt vmcnt(0)\nmn_fl4b:")
            for j in range(4*k, 4*k+4):
                a(f"v_cvt_pk_bf16_f32 v{vAcc+4*j}, v{vAcc+4*j}, v{vAcc+4*j+1}")
                a(f"v_cvt_pk_bf16_f32 v{vAcc+4*j+1}, v{vAcc+4*j+2}, v{vAcc+4*j+3}")
                a(f"ds_write_b64 v{vAW}, v[{vAcc+4*j}:{vAcc+4*j+1}] offset:{SSTR*j}")
            z = vAcc+16*k+2
            a(f"""
    s_mul_i32 s52, s{sG}, 3
    s_lshl_b32 s52, {1<<(6*k)}, s52
    v_mov_b32 v{z}, s52
    v_mov_b32 v{z+1}, 0
    s_mov_b64 exec, 1
    ds_add_u32 v{z+1}, v{z} offset:{L_DONE}
    s_mov_b64 exec, -1
    """)
            if k < 4:
                a(f"""
    s_add_u32 s{sK}, s{sK}, 1
    s_sub_u32 s{sLeft}, s{sC+k+1}, 1
    s_cbranch_scc1 mn_fl{k+1}
    s_setpc_b64 s[{sRet}:{sRet+1}]
    """)
    a(f"""
    s_waitcnt vmcnt(0) lgkmcnt(0)
    {st(7)}
    {"s_branch mn_fin" if stamps else ""}
mn_end:
    s_endpgm
    """)
    vAa=0; vOut=1; vTt=2; vO=4; vA=12; vC=24; vW=40
    sTodo=36; sO=37; sOb=38; sAb=39; sOp=32; sOn=33; sNx=34; sWo=40; sN0=41
    AH=2; KS=8
    gL=3; gW=2; gT=4; gT2=6; gN=8; gNs=9; gB=10; gA=11; gR=12; gCb=13; gD=14; gM=15; gTa=16; gP=17; gX=18
    def wl(f0, f1, trickle):
        for f in range(f0, f1):
            if 'w' in exp: continue
            if f % 4 == 0 or f == f0: a(f"s_add_u32 s52, s{sWo}, {(f//4)*4096}")
            a(f"buffer_load_dwordx4 v[{vW+4*f}:{vW+4*f+3}], v{gW}, {LO}, s52 offen offset:{(f%4)*1024}{wld}")
            if trickle and f-f0 >= wd: a(f"s_waitcnt vmcnt({wd if f >= wn else wd+1})")
    a(f"""
gm_main:
    s_load_dwordx2 s[56:57], s[0:1], 64
    v_and_b32 v{gL}, 63, v0
    v_and_b32 v{gA}, 0x7f, v0
    v_lshlrev_b32 v{gA}, 2, v{gA}
    v_mov_b32 v{gB}, 0
    ds_write_b32 v{gA}, v{gB}
    v_bfe_u32 v{gR}, v0, 1, 7
    v_and_b32 v{gA}, 15, v{gR}
    v_lshrrev_b32 v{gB}, 4, v{gR}
    v_lshl_or_b32 v{gA}, v{gA}, 3, v{gB}
    v_cmp_gt_u32 vcc, {NCHUNK}, v{gA}
    v_mul_u32_u24 v{gCb}, {CH_STRIDE}, v{gA}
    v_bfrev_b32 v{gB}, 2
    v_lshlrev_b32 v{gR}, 2, v{gR}
    v_cndmask_b32 v{gR}, v{gB}, v{gR}, vcc
    v_lshlrev_b32 v{gA}, 3, v{gL}
    v_lshlrev_b32 v{gW}, 4, v{gL}
    s_lshl_b32 s{sWo}, s{sQ}, 15
    s_add_u32 s{sWo}, s{sWo}, {WS_WT}
    s_waitcnt lgkmcnt(0)
    s_mov_b32 s{sLOW}, s54
    s_and_b32 s{sLOW+1}, s55, 0xffff
    buffer_load_dword v{gT}, v{gR}, {LO}, s{sTo} offen
    buffer_load_dwordx2 v[{gT2}:{gT2+1}], v{gA}, {LO}, s{sTo} offen
    s_barrier
    """)
    if ntouch:
        a(f"""
    s_lshl2_add_u32 s47, s47, s{sQ}
    s_mul_i32 s47, s47, {CH_STRIDE}
    s_mul_i32 s48, s48, {CH_STRIDE//8}
    s_add_u32 s47, s47, s48
    s_sub_i32 s47, s47, 896
    s_max_i32 s47, s47, 0
    v_lshlrev_b32 v{gA}, 7, v{gL}
    buffer_load_dword v39, v{gA}, {LO}, s47 offen
    """)
    wl(0, w0, False)
    a(f"""
    s_mul_i32 s{sN0}, s2, 625
    s_add_u32 s52, s{sN0}, {625+15}
    s_add_u32 s{sN0}, s{sN0}, 15
    s_lshr_b32 s{sN0}, s{sN0}, 4
    s_lshr_b32 s52, s52, 4
    s_mov_b32 s{sOUT}, s56
    s_and_b32 s{sOUT+1}, s57, 0xffff
    s_lshl_b32 s{sOUT+2}, s52, 11
    s_mov_b32 s{sOUT+3}, 0x20000
    s_mul_i32 s42, s{sQ}, {QSTR}
    s_add_u32 s42, s42, {RB}
    s_lshl_b32 s43, s{sQ}, 4
    s_sub_u32 s43, s43, 1
    s_mov_b32 s44, -1
    s_mov_b32 s45, {(~(BADM>>32)) & 0xffffffff}
    """)
    for i in range(3):
        a(f"v_add_u32 v{gA}, {64*i}, v{gL}")
        a(f"v_mul_u32_u24 v{gB}, 21846, v{gA}")
        a(f"v_lshrrev_b32 v{gB}, 16, v{gB}")
        a(f"v_lshl_add_u32 v{34+i}, v{gB}, 2, s42")
        a(f"v_mad_i32_i24 v{gB}, v{gB}, -3, v{gA}")
        a(f"v_lshlrev_b32 v{30+i}, 4, v{gB}")
    a(f"s_waitcnt vmcnt({(1 if ntouch else 0)+(w0 if 'w' not in exp else 0)})")
    a(st(1))
    a("gm_pass:")
    clampn(gN, gT); clampn(gA, gT2); clampn(gB, gT2+1)
    a(f"""
    v_mov_b32 v{gNs}, v{gN}
    v_cndmask_b32 v{gB}, 0, v{gB}, s[44:45]
    v_add_u32 v{gB}, v{gA}, v{gB}
    v_and_b32 v{gR}, 1, v0
    v_and_b32 v{gD}, 0xffff, v{gT}
    """)
    fill = [f"v_add3_u32 v{gD}, v{gD}, v{gR}, s{sDone}", f"v_mad_u32_u24 v{gD}, v{gD}, {REC}, v{gCb}", f"v_sub_u32 v{gM}, v{gN}, v{gR}", "s_nop 0", "s_nop 0", "s_nop 0"]
    for i, op in enumerate(SCAN6):
        a(f"v_add_u32_dpp v{gB}, v{gB}, v{gB} {op} bank_mask:0xf")
        if i >= 1: a(f"v_add_u32_dpp v{gNs}, v{gNs}, v{gNs} {op} bank_mask:0xf")
        else: a("s_nop 0")
        a(fill.pop(0))
    a(f"""
    v_readlane_b32 s{sTot}, v{gB}, 63
    v_readlane_b32 s46, v{gB}, s43
    v_readlane_b32 s47, v{gNs}, 63
    v_sub_u32 v{gTa}, v{gNs}, v{gM}
    v_lshl_add_u32 v{gTa}, v{gTa}, 2, s42
    s_cmp_gt_u32 s{sTot}, {CAP}
    s_cbranch_scc1 gm_ovf
    s_cmp_eq_u32 s{sQ}, 0
    s_cmov_b32 s46, 0
    {"s_barrier" if b2 == 2 else ""}
    """)
    for r in range(LPR*NR//2):
        a(f"v_cmpx_lt_i32 vcc, {2*r}, v{gM}")
        a(f"s_cbranch_execz gm_tb_done")
        a(f"ds_write_b32 v{gTa}, v{gD} offset:{8*r}")
        if r < LPR*NR//2-1: a(f"v_add_u32 v{gD}, {2*REC}, v{gD}")
    a(f"""
gm_tb_done:
    s_mov_b64 exec, -1
    s_mul_i32 s46, s46, 48
    s_add_u32 m0, s46, {L_RAW}
    s_mul_i32 s47, s47, 3
    s_mov_b32 s48, 1
    v_mov_b32 v{gA}, v34
    v_mov_b32 v{gB}, v35
    v_mov_b32 v{gD}, v36
    {st(4)}
    {"s_barrier" if b2 == 1 else ""}
gm_raw:
    """)
    tb = (gA, gB, gD)
    for i in range(9): a(f"ds_read_b32 v{gX+i}, v{tb[i%3]} offset:{256*(i//3)}")
    for i in range(9):
        a(f"v_cmpx_gt_i32 vcc, s47, v{gL}")
        a(f"s_cbranch_execz gm_raw_done")
        a(f"s_waitcnt lgkmcnt({8-i})")
        a(f"v_add_u32 v{gX+i}, v{gX+i}, v{30+i%3}")
        a(f"buffer_load_dwordx4 v{gX+i}, {LO}, 0 offen{rld} lds")
        a(f"s_add_u32 m0, m0, 1024")
        a(f"s_sub_i32 s47, s47, 64")
        if i == b3-1: a("s_cmp_eq_u32 s48, 0\ns_cbranch_scc1 gm_b3a\ns_barrier\ns_sub_u32 s48, s48, 1\ngm_b3a:")
    for r in tb: a(f"v_add_u32 v{r}, 768, v{r}")
    a(f"""
    s_branch gm_raw
gm_raw_done:
    {st(2)}
    s_mov_b64 exec, -1
    v_mov_b32 v{gA}, 0
    {"s_barrier" if b2 == 0 else ""}
    ds_read_b32 v{gA}, v{gA} offset:{L_MORE}
    """)
    wl(w0, wa, False)
    if b3 < 99: a("s_cmp_eq_u32 s48, 0\ns_cbranch_scc1 gm_b3b\ns_barrier\ngm_b3b:")
    else: a("s_barrier")
    wl(wa, wb, False)
    a(f"""
    s_waitcnt vmcnt({(wb-w0) if 'w' not in exp else 0}) lgkmcnt(0)
    {st(3)}
    v_readfirstlane_b32 s{sMore}, v{gA}
    s_barrier
    s_cmp_lg_u32 s{sMore}, 0
    s_cbranch_scc1 gm_next
    {st(5)}
    {f"s_setprio {gprio}" if gprio else ""}
    """)
    if pfs and KN < XS:
        per = ((XS-KN)*16+127)//128
        per = (per+7)//8*8
        a(f"""
    s_lshr_b32 s52, s2, 3
    s_lshl2_add_u32 s52, s52, s{sQ}
    s_lshl_b32 s52, s52, 3
    s_and_b32 s53, s2, 7
    s_mul_i32 s53, s53, {XS*16}
    s_add_u32 s52, s52, s53
    s_add_u32 s52, s52, {KN*16}
    s_movk_i32 s53, {per//8}
gm_pf:
    s_min_u32 s36, s52, {N*16-8}
    s_lshl_b32 s36, s36, 7
    """)
        for j in range(8):
            for h in range(pfs): a(f"s_load_dword s37, s[50:51], s36 offset:{j*128+h*64}")
        a(f"""
    s_addk_i32 s52, 1024
    s_sub_u32 s53, s53, 1
    s_cmp_lg_u32 s53, 0
    s_cbranch_scc1 gm_pf
    s_waitcnt lgkmcnt(0)
    """)
    wl(wb, 32, True)
    a(f"""
    v_lshrrev_b32 v{vOut}, 4, v{gL}
    v_lshlrev_b32 v{vOut}, 11, v{vOut}
    v_and_b32 v4, 7, v{gL}
    v_lshl_add_u32 v{vOut}, v4, 4, v{vOut}
    v_bfe_u32 v4, v{gL}, 3, 1
    v_lshl_add_u32 v{vOut}, v4, 9, v{vOut}
    v_and_b32 v4, 3, v{gL}
    v_lshrrev_b32 v5, 2, v{gL}
    v_mul_u32_u24 v{vAa}, {SSTR}, v4
    v_lshl_add_u32 v{vAa}, v5, 3, v{vAa}
    v_add_u32 v{vAa}, {RB}, v{vAa}
    s_lshl_b32 s{sOb}, s{sN0}, 11
    s_lshl_b32 s53, s{sQ}, 7
    s_add_u32 s{sOb}, s{sOb}, s53
    s_mov_b32 s{sTodo}, 0x24924924
    s_mov_b32 s{sAb}, 0
    s_waitcnt vmcnt(0)
    {st(6)}
gm_poll:
    v_mov_b32 v{vTt}, 0
    ds_read_b32 v{vTt}, v{vTt} offset:{L_DONE}
    s_waitcnt lgkmcnt(0)
    v_readfirstlane_b32 s52, v{vTt}
    s_and_b32 s52, s52, s{sTodo}
    s_cbranch_scc1 gm_go
    s_sleep {slp}
    s_branch gm_poll
gm_go:
    {st(7) if stamps != 4 else ""}
    """)
    dec = [f"s_ff1_i32_b32 s52, s52", f"s_bitset0_b32 s{sTodo}, s52", f"s_mul_i32 s52, s52, 11", f"s_bfe_u32 s53, s52, 0x10005", f"s_bfe_u32 s52, s52, 0x30006"]
    adr0 = [f"s_mul_i32 s35, s53, {GSTR}", f"s_mul_i32 s31, s52, {4*SSTR}", f"s_add_u32 s31, s31, s35", f"s_sub_u32 s35, s31, s{sAb}", f"v_add_u32 v{vAa}, s35, v{vAa}"]
    out0 = [f"s_mov_b32 s{sAb}, s31", f"s_mul_i32 s{sOn}, s53, 5", f"s_add_u32 s{sOn}, s{sOn}, s52", f"s_lshl_b32 s{sOn}, s{sOn}, 13", f"s_add_u32 s{sOn}, s{sOn}, s{sOb}"]
    def rd(base, s, half):
        bn = vA + 4*((base+s) % 3); s %= KS
        a(f"ds_read_b64_tr_b16 v[{bn+2*half}:{bn+2*half+1}], v{vAa} offset:{(s>>1)*QSTR+(s&1)*256+128*half}")
    for o in dec + adr0: a(o)
    for s in range(AH): rd(0,s,0); rd(0,s,1)
    for o in out0: a(o)
    a(f"s_mov_b32 s{sO}, s{sOn}")
    a(f"s_mov_b32 s{sOp}, 0x7ffffff0")
    cvlo = [f"v_cvt_pk_bf16_f32 v{vO+2*r}, v{vC+r}, v{vC+4+r}" for r in range(4)]
    cvhi = [f"v_cvt_pk_bf16_f32 v{vO+2*r+1}, v{vC+8+r}, v{vC+12+r}" for r in (1,0,3,2)]
    def fin():
        ops = []
        for h in range(2):
            O = vO + 4*h
            ops += [f"v_mov_b32_dpp v{vTt}, v{O+2} row_ror:8 row_mask:0xf bank_mask:0xf",
                    f"v_mov_b32_dpp v{vTt+1}, v{O+3} row_ror:8 row_mask:0xf bank_mask:0xf",
                    f"v_mov_b32_dpp v{O+2}, v{O} row_ror:8 row_mask:0xf bank_mask:0x3",
                    f"v_mov_b32_dpp v{O+3}, v{O+1} row_ror:8 row_mask:0xf bank_mask:0x3",
                    f"v_mov_b32_dpp v{O}, v{vTt} quad_perm:[0,1,2,3] row_mask:0xf bank_mask:0xc",
                    f"v_mov_b32_dpp v{O+1}, v{vTt+1} quad_perm:[0,1,2,3] row_mask:0xf bank_mask:0xc",
                    f"buffer_store_dwordx4 v[{O}:{O+3}], v{vOut}, s[{sOUT}:{sOUT+3}], s{sOp} offen offset:{h*1024}{ost}"]
        if 's' in exp: ops = [o if not o.startswith('buffer_store') else 's_nop 0' for o in ops]
        return ops
    a("gm_loop:")
    for base in (0, 2, 1):
        ops = fin()
        G = {(s_, j): [] for s_ in range(KS) for j in range(4)}
        for s_ in range(KS):
            G[(s_,0)].append(("rd", s_+AH, 0)); G[(s_,1)].append(("rd", s_+AH, 1))
        G[(0,0)] = [cvhi[0], cvhi[1]] + G[(0,0)]; G[(0,1)] = [cvhi[2], cvhi[3]] + G[(0,1)]
        h0, h1 = ops[:7], ops[7:]
        G[(0,2)] += h0[0:2]; G[(0,3)] += h0[2:4]; G[(1,0)] += h0[4:5]; G[(1,1)] += h0[5:6]; G[(1,2)] += h0[6:7] + h1[0:1]
        G[(1,3)] += h1[1:3]; G[(2,0)] += h1[3:4]; G[(2,1)] += h1[4:5]; G[(2,2)] += h1[5:7]
        G[(3,2)] += [f"v_mov_b32 v{vTt}, 0"]; G[(3,3)] += [f"ds_read_b32 v{vTt}, v{vTt} offset:{L_DONE}"]
        G[(4,2)] += ["s_waitcnt lgkmcnt(2)", f"v_readfirstlane_b32 s52, v{vTt}", f"s_and_b32 s52, s52, s{sTodo}"]
        G[(4,3)] += [f"s_cselect_b32 s{sNx}, 1, 0", dec[0]]
        G[(5,0)] += dec[1:3]; G[(5,1)] += dec[3:5]; G[(5,2)] += adr0[:3]; G[(5,3)] += adr0[3:]
        G[(6,2)] += out0[:3]; G[(6,3)] += out0[3:]
        G[(7,1)] += [f"s_mov_b32 s{sOp}, s{sO}", f"s_mov_b32 s{sO}, s{sOn}"]
        G[(7,2)] += [f"s_cmp_eq_u32 s{sNx}, 0", "s_nop 1"]
        if gt == 1:
            G[(7,3)] += ["s_setprio 3"]; G[(2,2)] += ["s_setprio 0"]
        if gt == 2:
            for key in list(G):
                if any(isinstance(o, str) and o.startswith("v_") for o in G[key]):
                    G[key] = ["s_setprio 3"] + G[key] + ["s_setprio 0"]
            G[(7,3)] += ["s_setprio 3"]
        for s in range(KS):
            a(f"s_waitcnt lgkmcnt({3 if s == 4 else 2})")
            b = vA + 4*((base+s) % 3)
            for j in range(4):
                w = vW + 4*(s*4+j)
                c = "0" if s == 0 else f"v[{vC+4*j}:{vC+4*j+3}]"
                if 'm' not in exp: a(f"v_mfma_f32_16x16x32_bf16 v[{vC+4*j}:{vC+4*j+3}], v[{b}:{b+3}], v[{w}:{w+3}], {c}")
                for o in G[(s,j)]:
                    if isinstance(o, tuple): rd(base, o[1], o[2])
                    else: a(o)
        if stamps == 4:
            for i in range(9): a(f"s_mov_b32 s{sT+2*i}, s{sT+2*i+2}")
            a(f"s_memrealtime s[{sT+18}:{sT+19}]")
        for o in cvlo: a(o)
        a("s_nop 0" if gt != 2 else "s_setprio 0")
        a("s_cbranch_scc1 gm_drain" if base != 1 else "s_cbranch_scc0 gm_loop")
    a("gm_drain:")
    a("s_nop 2")
    if gt: a("s_setprio 3")
    for o in cvhi: a(o)
    for o in fin(): a(o)
    a(f"""
    {"s_setprio 0" if gt else ""}
    s_cmp_lg_u32 s{sTodo}, 0
    s_cbranch_scc1 gm_poll
    {"s_branch mn_fin" if stamps else ""}
    s_endpgm
gm_ovf:
    s_movk_i32 s{sLim}, {LPR}
    s_barrier
    s_barrier
    s_barrier
    s_branch gm_pass
gm_next:
    s_add_u32 s{sDone}, s{sDone}, s{sLim}
    s_barrier
    s_branch gm_pass
    """)
    def gen(r):
        a(f"""
    v_add_u32 v{u0}, {LPR*r}, v{vJ}
    v_add_u32 v{u0}, s{sDone}, v{u0}
    v_lshrrev_b32 v{u1}, 16, v{vTt_}
    v_mov_b32 v{vWd+r}, 0
    v_cmpx_lt_u32 vcc, v{u0}, v{u1}
    s_cbranch_execz mn_g{gen.n}
    v_cmp_gt_u32 vcc, 16, v{u0}
    v_and_b32 v{u1}, 0xffff, v{vTt_}
    v_add_lshl_u32 v{u1}, v{u0}, v{u1}, 2
    v_add_u32 v{u1}, v{u1}, v{vCb}
    v_lshl_add_u32 v{u2}, v0, 4, s22
    v_and_or_b32 v{u2}, v{u0}, 12, v{u2}
    v_cndmask_b32 v{u1}, v{u1}, v{u2}, vcc
    buffer_load_dword v{vWd+r}, v{u1}, {LO}, 0 offen
    s_waitcnt vmcnt(0)
mn_g{gen.n}:
    s_mov_b64 exec, -1
    """)
        gen.n += 1
    gen.n = 0
    a("mn_w5:")
    gen(4)
    a(f"""
mn_more:
    s_add_u32 s52, s{sDone}, s{sLim}
    v_lshrrev_b32 v{u1}, 16, v{vTt_}
    v_cmp_lt_u32 vcc, s52, v{u1}
    s_cbranch_vccz mn_count
    v_mov_b32 v{u0}, {L_MORE}
    ds_write_b32 v{u0}, v{vOne}
    s_branch mn_count
mn_ovf:
    s_movk_i32 s{sLim}, {LPR}
    s_waitcnt vmcnt(0) lgkmcnt(0)
    s_barrier
    s_branch mn_again
mn_next:
    s_set_gpr_idx_off
    s_waitcnt vmcnt(0) lgkmcnt(0)
    s_nop 7
    s_add_u32 s{sDone}, s{sDone}, s{sLim}
    v_mbcnt_lo_u32_b32 v0, -1, 0
    v_mbcnt_hi_u32_b32 v0, -1, v0
    v_lshl_add_u32 v0, s{sWv}, 6, v0
    {TOFF}
    {TLD}
    {CONST}
mn_again:
    v_mov_b32 v{u0}, 0
    ds_write_b32 v{vL4}, v{u0} offset:{L_CNT}
    ds_write_b32 v{vL4}, v{u0} offset:{L_CNT+256}
    s_waitcnt vmcnt(0) lgkmcnt(0)
    s_barrier
    """)
    gen(0)
    for r in range(1, NR): a(f"v_mov_b32 v{vWd+r}, 0")
    a(f"s_cmp_le_u32 s{sLim}, {LPR}\ns_cbranch_scc1 mn_more")
    for r in range(1, NR): gen(r)
    a("s_branch mn_more")
    if stamps:
        a(f"""
mn_fin:
    s_set_gpr_idx_off
    {f"s_memrealtime s[{sT+16}:{sT+17}]" if stamps != 4 else ""}
    s_waitcnt vmcnt(0)
    {f"s_memrealtime s[{sT+18}:{sT+19}]" if stamps != 4 else "s_memrealtime s[88:89]"}
    s_waitcnt lgkmcnt(0)
    s_lshl_b32 s96, s2, 4
    s_add_u32 s96, s96, s{sWv}
    s_lshl_b32 s96, s96, 6
    s_add_u32 s96, s96, 0xF000000
    s_add_u32 s98, s54, s96
    s_addc_u32 s99, s55, 0
    """)
        a("v_mov_b32 v0, 0")
        if stamps == 3:
            for i in range(6): a(f"v_mov_b32 v1, s{90+i}\nglobal_store_dword v0, v1, s[98:99] offset:{40+4*i}")
        if stamps == 2: a(f"s_mov_b32 s{sT+2}, s{sP}")
        for i in range(10):
            a(f"v_mov_b32 v1, s{sT+2*i}")
            a(f"global_store_dword v0, v1, s[98:99] offset:{4*i}")
        if stamps == 4: a("v_mov_b32 v1, s88\nglobal_store_dword v0, v1, s[98:99] offset:40")
        a("s_endpgm")
    a("mn_last:\ns_endpgm")
    a.end_kernel(name, NV, 100 if stamps else 96)
    a.launch(name, NBLK, 768, 163840)
```

```python
import sys
from common import *
from k_a13 import gen_ka
from k_main20 import gen_main
a = Asm()
opts=dict(x.split('=') for x in sys.argv[2:])
def pol(k, d):
    v = opts.get(k, d)
    return '' if v in ('', '0') else ' ' + v.replace('+', ' ')
I = lambda k, d: int(opts.get(k, d))
gen_ka(a, prefetch=I('pfa',1), ld=pol('kld','0'), rst=pol('rst','sc1'), pfp=pol('pfpa','0'), KN=I('KN',448), R0=I('R0',8500), cst=pol('cst','0'), cpf=I('cpf',1), swap=I('swap',0), dly=I('dly',1), tst=pol('tst','0'), wb=I('kwb',0), spf=I('spf',1), nb0=I('nb0',3), late=I('late',1), hlp=I('hlp',5), XR=I('XR',0), XP=I('XP',I('KN',448)))
gen_main(a, rld=pol('rld','0'), stamps=I('stamps',0), exp=opts.get('exp',''), ost=pol('ost','sc0+sc1'), KN=I('KNM',1250), wld=pol('wld','0'), xld=pol('xld','0'),
  prio=I('prio',2), slp=I('slp',2), R=I('R',6), wd=I('wd',1), steer=I('steer',1), soff=I('soff',0), gprio=I('gprio',0), ntouch=I('ntouch',1), pfs=I('pfs',2), wa=I('wa',0), wb=I('wb',0), w0=I('w0',0), b2=I('b2',1), xe=I('xe',4), ez=I('ez',0), b3=I('b3',99), gfirst=I('gf',0), gt=I('gt',2), fl=I('fl',0), wn=I('wn',0))
open(sys.argv[1],'w').write(a.text())
```

```python
from layout13 import *
KNAME='standalone__tensor_product_equiv_mace__graph_kernel'

def gen_ka(a, ld='', rst='', pfp='', prefetch=True, KN=XS, R0=8500, cst='', cpf=1, swap=0, XR=XS, XP=XS, dly=0, spf=1, nb0=6, late=0, hlp=0, cearly=1, tst='', wb=0, fused=0, cfirst=1, stamps=0, sat=0, split=0, one=0, mbox=0, nsh=0, own=0, smb=0, pfb=0):
    name="ka_kernel"
    H=1024; L_ARR=448
    L_TAB=H+1024; L_CELL=L_TAB+10*1024; L_PERM=L_CELL+16384; L_EA=L_PERM+5120; L_SH=L_EA+40960; L_END=L_SH+10240
    def unit(k, vi, vs, va):
        return f"""v_lshl_add_u32 v{va}, v0, 1, {k}
    v_mul_u32_u24 v{vi}, 13108, v{va}
    v_lshrrev_b32 v{vi}, 16, v{vi}
    v_mad_i32_i24 v{va}, v{vi}, -5, v{va}
    v_lshlrev_b32 v{vi}, 2, v{vi}
    v_cmp_eq_u32 vcc, 4, v{va}
    v_lshlrev_b32 v{va}, 3, v{va}
    v_add_u32 v{va}, {L_EA}, v{va}
    v_cndmask_b32 v{vs}, 5, 3, vcc
    v_cndmask_b32 v{va}, v{va}, v19, vcc
"""
    assert all((u*13108)>>16 == u//5 for u in range(1280))
    COPYC = f"""v_mov_b32 v19, {L_SH}
    {unit(0,16,17,18)}
    {unit(1,12,13,14)}
    s_mul_i32 s31, s2, {CH_STRIDE}"""
    assert cearly
    MB0 = f"""s_cmp_lg_u32 s18, 11
    s_cbranch_scc1 ka_nomb
    s_and_b32 s3, s2, {(smb if smb else 64*mbox)-1}
    s_lshl_b32 s3, s3, 7
    s_add_u32 s3, s3, {WS_MB}
    v_mov_b32 v86, s3
    s_waitcnt lgkmcnt(0)
    global_load_dword v87, v86, s[14:15] sc1
ka_nomb:""" if nsh else ""
    BC = f"""ka_bcast:
    s_mov_b64 exec, -1
    v_lshlrev_b32 v2, 7, v1
    v_add_u32 v2, {WS_MB}, v2
    v_mov_b32 v3, 1
    global_atomic_add v2, v3, s[14:15] sc1
    {"".join(f"v_add_u32 v2, 8192, v2{chr(10)}global_atomic_add v2, v3, s[14:15] sc1{chr(10)}" for _ in range(mbox-1))}
    {'' if nsh else 's_atomic_add s33, s[12:13], 128'}
    s_branch mn_start""" if mbox else ""
    NMB = smb if smb else 64*mbox
    if smb:
        BC = f"ka_bcast:\ns_mov_b64 exec, -1\ns_mov_b32 s33, 1\ns_add_u32 s34, s14, {WS_MB}\ns_addc_u32 s35, s15, 0\n" + "".join(f"s_atomic_add s33, s[34:35], {128*i}\n" for i in range(smb)) + "s_branch mn_start"
    WB = f"""s_cmp_lg_u32 s18, {wb-1}
    s_cbranch_scc1 ka_nowb
    s_cmp_ge_u32 s2, 136
    s_cbranch_scc1 ka_nowb
    s_waitcnt vmcnt(0)
    buffer_wbl2 sc1
ka_nowb:""" if wb else ""
    NL=KN*16
    HL=(NL+16*64-1)//(16*64)*64
    assert HL <= 1280
    if fused: name=KNAME
    END = 's_branch mn_start' if fused else 's_endpgm'
    XE = 'mn_start' if fused else 'ka_end'
    pst = ' sc1' if fused else ''
    if fused: cst = ' sc1'; rst = ' sc1'
    a.begin_kernel(name)
    HLP = f"""s_sub_u32 s34, s2, 127
    s_mul_i32 s34, s34, {CHUNK*32}
    s_sub_u32 s34, s34, {hlp*8192}
    v_lshl_add_u32 v44, v0, 7, s34
    v_min_u32 v44, {E*32-4}, v44""" if hlp else ""
    HLP2 = f"""s_cmp_ge_u32 s18, {hlp}
    s_cbranch_scc1 ka_nohlp
    global_load_dword v45, v44, s[10:11]
ka_nohlp:""" if hlp else ""
    SPF = """s_cmp_lt_u32 s2, 128
    s_cbranch_scc1 ka_nospf
    s_getpc_b64 s[36:37]
ka_pc0:
    v_lshlrev_b32 v41, 7, v0
    v_min_u32 v41, mn_last-ka_pc0, v41
    global_load_dword v41, v41, s[36:37]
ka_nospf:""" if spf else ""
    if spf: cpf = 0
    CPF = """s_cmp_lg_u32 s18, 0
    s_cbranch_scc1 ka_nocpf
    s_cmp_ge_u32 s2, 144
    s_cbranch_scc1 ka_nocpf
    s_getpc_b64 s[36:37]
ka_pc:
    s_add_u32 s36, s36, main_kernel-ka_pc
    s_addc_u32 s37, s37, 0
    s_bfe_u32 s38, s2, 0x10003
    s_lshl_b32 s38, s38, 13
    v_lshl_add_u32 v41, v1, 7, s38
    v_min_u32 v41, mn_last-main_kernel, v41
    global_load_dword v41, v41, s[36:37]
ka_nocpf:""" if cpf else ""
    if fused and stamps: a("s_memrealtime s[64:65]")
    S5 = lambda i: f"s_memrealtime s[{64+2*i}:{65+2*i}]\ns_waitcnt lgkmcnt(0)" if stamps == 5 else ""
    a(f"""
    s_cmp_ge_u32 s2, 256
    s_cbranch_scc1 ka_end
    {SPF}
    s_load_dwordx8 s[4:11], s[0:1], 8
    s_load_dwordx2 s[16:17], s[0:1], 0
    s_load_dwordx4 s[12:15], s[0:1], 72
    {'' if own else 's_load_dwordx2 s[32:33], s[0:1], 56'}
    v_lshrrev_b32 v9, 6, v0
    v_and_b32 v1, 63, v0
    v_readfirstlane_b32 s18, v9
    {MB0}
    s_and_b32 s3, s2, 127
    s_cmp_ge_u32 s3, {NCHUNK}
    s_cbranch_scc1 {"mn_start" if own else "ka_extra"}
    s_cmp_ge_u32 s2, 128
    s_cbranch_scc1 ka_pf
    s_mul_i32 s3, s2, {CHUNK}
    v_add_u32 v4, s3, v0
    v_lshlrev_b32 v5, 2, v4
    s_mov_b32 s22, {WS_LOW}
    s_mov_b32 s23, 0x20000
    s_and_b32 s28, s2, 7
    s_lshl_b32 s28, s28, 4
    s_lshr_b32 s29, s2, 3
    s_add_u32 s28, s28, s29
    s_cmp_ge_u32 s18, 10
    s_waitcnt lgkmcnt(0)
    s_mov_b32 s20, s14
    s_cbranch_scc1 ka_dma
    global_load_dword v10, v5, s[6:7]{ld}
    global_load_dword v60, v5, s[6:7] offset:{640*4}{ld}
    global_load_dword v11, v5, s[4:5]{ld}
    global_load_dword v61, v5, s[4:5] offset:{640*4}{ld}
    v_lshlrev_b32 v2, 2, v0
    v_and_b32 v2, 0x3fc, v2
    v_lshlrev_b32 v5, 4, v0
    v_mov_b32 v44, 0
    v_mov_b32 v45, 0
    v_mov_b32 v46, 0
    v_mov_b32 v47, 0
    ds_write_b32 v2, v44 offset:{H}
    ds_write_b128 v5, v[44:47] offset:{L_CELL}
    ds_write_b128 v5, v[44:47] offset:{L_CELL+16384-10240}
    s_and_b32 s21, s15, 0xffff
    v_mov_b32 v3, 1
    v_lshlrev_b32 v26, 4, v1
    s_lshl_b32 s19, s18, 10
    v_add_u32 v27, s19, v26
    v_mov_b32 v4, 0x40000
    s_movk_i32 s29, 625
    s_movk_i32 s38, 0x3fff
    s_waitcnt lgkmcnt(0)
    s_barrier
    {COPYC}
    """)
    sets = [dict(d=10,s=11,L=32,T=33,A=35,R=36,U=39,sh=20,B=43,C=40,W=34),
            dict(d=60,s=61,L=62,T=63,A=66,R=67,U=68,sh=72,B=69,C=70,W=71)]
    for i,z in enumerate(sets):
        a(f"""
    s_waitcnt vmcnt({3-i})
    v_mul_u32_u24 v{z['L']}, {MAGICB}, v{z['d']}
    v_lshrrev_b32 v{z['L']}, 23, v{z['L']}
    v_min_u32 v{z['L']}, {NBLK-1}, v{z['L']}
    v_and_b32 v{z['A']}, 7, v{z['L']}
    v_lshrrev_b32 v{z['T']}, 3, v{z['L']}
    v_lshl_add_u32 v{z['A']}, v{z['A']}, 5, v{z['T']}
    v_lshlrev_b32 v{z['A']}, 2, v{z['A']}
    ds_add_rtn_u32 v{z['R']}, v{z['A']}, v3 offset:{H}
    """)
    MB = (27<<20)//R0
    assert XR == 0 and not swap
    pre = []; post = []
    for z in sets:
        w10 = z['sh']+2; w11 = z['sh']+3; t = z['W']
        pre += [f"v_mad_u32_u24 v{z['T']}, v{z['L']}, s29, 15",
                f"v_lshrrev_b32 v{z['T']}, 4, v{z['T']}",
                f"v_sub_u32 v{z['T']}, v{z['d']}, v{z['T']}",
                f"v_subrev_u32 v{z['L']}, 20, v{z['T']}",
                f"v_min_u32 v{z['L']}, v{z['L']}, v{z['T']}",
                f"v_min_u32 v{z['L']}, 19, v{z['L']}",
                f"v_lshlrev_b32 v{z['C']}, 4, v{z['A']}",
                f"v_add_u32 v{z['A']}, s19, v{z['A']}"]
        post += [f"v_mul_u32_u24 v{z['U']}, {MB}, v{z['s']}",
                 f"v_lshrrev_b32 v{z['U']}, 20, v{z['U']}",
                 f"v_lshrrev_b32 v{t}, 2, v{z['L']}",
                 f"v_cmp_gt_u32 vcc, 27, v{z['U']}",
                 f"v_add_u32 v{t}, 27, v{t}",
                 f"v_lshlrev_b32 v{w11}, 14, v{z['L']}",
                 f"v_cndmask_b32 v{z['U']}, v{t}, v{z['U']}, vcc",
                 f"v_cmp_le_u32 vcc, 20, v{z['T']}",
                 f"v_and_or_b32 v{w10}, v{z['s']}, s38, v{w11}",
                 f"v_or_b32 v{z['U']}, 64, v{z['U']}",
                 f"v_add_u32 v{t}, 32, v{z['U']}",
                 f"v_cndmask_b32 v{z['U']}, v{z['U']}, v{t}, vcc",
                 f"v_lshl_or_b32 v{w10}, v{z['U']}, 25, v{w10}",
                 f"v_cmp_lt_u32 vcc, 14, v{z['R']}",
                 f"v_and_b32 v{t}, 3, v{z['R']}",
                 f"v_lshl_add_u32 v{z['C']}, v{t}, 4, v{z['C']}",
                 f"v_and_or_b32 v{z['C']}, v{z['R']}, 12, v{z['C']}",
                 f"v_cndmask_b32 v{z['C']}, v{z['C']}, v4, vcc",
                 f"ds_write_b32 v{z['C']}, v{w10} offset:{L_CELL}"]
    for o in pre: a(o)
    if cearly:
        a("s_waitcnt vmcnt(0) lgkmcnt(0)")
        for o in post: a(o)
        post = []
    a(f"""
    s_waitcnt lgkmcnt(0)
    s_barrier
    ds_read_b128 v[44:47], v26 offset:{H}
    v_add_u32 v9, 640, v0
    v_max_u32 v8, v36, v67
    v_cmp_lt_u32 vcc, 14, v8
    """)
    P = lambda: a(post.pop(0) if post else "s_nop 0")
    if post:
        for _ in range(8): P()
    a(f"""
    s_waitcnt lgkmcnt(0)
    v_add_u32 v53, v44, v45
    v_add_u32 v54, v53, v46
    v_add_u32 v38, v54, v47
    v_mov_b32 v55, v38
    """)
    P()
    for i, op in enumerate(("row_shr:1 row_mask:0xf","row_shr:2 row_mask:0xf","row_shr:4 row_mask:0xf","row_shr:8 row_mask:0xf","row_bcast:15 row_mask:0xa","row_bcast:31 row_mask:0xc")):
        a(f"v_add_u32_dpp v38, v38, v38 {op} bank_mask:0xf")
        if i < 5: P(); P()
    a(f"""
    v_sub_u32 v56, v38, v55
    v_add_u32 v57, v56, v44
    v_add_u32 v58, v56, v53
    v_add_u32 v59, v56, v54
    ds_write_b128 v27, v[56:59] offset:{L_TAB}
    ds_read_b32 v{sets[0]['B']}, v{sets[0]['A']} offset:{L_TAB}
    ds_read_b32 v{sets[1]['B']}, v{sets[1]['A']} offset:{L_TAB}
    """)
    for o in post: a(o)
    a(f"""
    s_waitcnt lgkmcnt(0)
    v_add_lshl_u32 v{sets[0]['B']}, v{sets[0]['B']}, v{sets[0]['R']}, 2
    v_add_lshl_u32 v{sets[1]['B']}, v{sets[1]['B']}, v{sets[1]['R']}, 2
    ds_write_b32 v{sets[0]['B']}, v0 offset:{L_PERM}
    ds_write_b32 v{sets[1]['B']}, v9 offset:{L_PERM}
    s_cbranch_vccnz ka_ov
ka_ov_back:
    s_waitcnt lgkmcnt(0)
ka_copy:
    s_barrier
    {S5(1)}
    """)
    for r in range(5):
        a(f"ds_read_b32 v{20+2*r}, v16 offset:{L_PERM+1024*r}")
        a(f"ds_read_b32 v{21+2*r}, v12 offset:{L_PERM+1024*r}")
    for r in range(5):
        a(f"s_waitcnt lgkmcnt(8)")
        a(f"v_lshl_add_u32 v{20+2*r}, v{20+2*r}, v17, v18")
        a(f"v_lshl_add_u32 v{21+2*r}, v{21+2*r}, v13, v14")
        a(f"ds_read_b64 v[{44+4*r}:{45+4*r}], v{20+2*r}")
        a(f"ds_read_b64 v[{46+4*r}:{47+4*r}], v{21+2*r}")
    for r in range(5):
        a(f"s_waitcnt lgkmcnt({8-2*r})")
        a(f"buffer_store_dwordx4 v[{44+4*r}:{47+4*r}], v5, s[20:23], s31 offen{rst}")
        if r < 4: a("s_addk_i32 s31, 10240")
    def arrive(tag, nloc, loc, cnt, total):
        if not fused: return
        a("s_waitcnt vmcnt(0)"); a(S5(2))
        a("s_mov_b64 exec, 1\nv_mov_b32 v2, 0\nv_mov_b32 v3, 1")
        if nloc > 1:
            a(f"""
    ds_add_rtn_u32 v4, v2, v3 offset:{loc}
    s_waitcnt lgkmcnt(0)
    v_readfirstlane_b32 s33, v4
    s_cmp_lg_u32 s33, {nloc-1}
    s_cbranch_scc1 ka_ar{tag}
    """)
        if total == 0:
            a(f"s_mov_b32 s33, 1\ns_atomic_add s33, s[12:13], {cnt}" if sat == 2 else f"global_atomic_add v2, v3, s[12:13] offset:{cnt} sc1")
        elif nsh:
            prod = list(range(128)) + [253,254,255] if not own else list(range(NCHUNK))
            cnts = [sum(1 for p in prod if p % nsh == k)-1 for k in range(nsh)]
            pk = sum(c << (8*k) for k, c in enumerate(cnts))
            a(f"""
    s_and_b32 s34, s2, {nsh-1}
    s_lshl_b32 s35, s34, {8-(nsh.bit_length()-1)}
    s_mov_b32 s33, 1
    s_atomic_add s33, s[12:13], s35 glc
    s_lshl_b32 s34, s34, 3
    s_lshr_b32 s34, {pk}, s34
    s_and_b32 s34, s34, 0xff
    s_waitcnt lgkmcnt(0)
    s_cmp_eq_u32 s33, s34
    s_cbranch_scc1 ka_bcast
    """)
        elif sat:
            a(f"""
    s_mov_b32 s33, 1
    s_atomic_add s33, s[12:13], {cnt} glc
    s_waitcnt lgkmcnt(0)
    s_cmp_lg_u32 s33, {total-1}
    s_cbranch_scc1 ka_ar{tag}
    {"s_branch ka_bcast" if mbox else f"s_atomic_add s33, s[12:13], {cnt+128}"}
    """)
        else:
            a(f"""
    global_atomic_add v4, v2, v3, s[12:13] offset:{cnt} sc0 sc1
    s_waitcnt vmcnt(0)
    v_readfirstlane_b32 s33, v4
    s_cmp_lg_u32 s33, {total-1}
    s_cbranch_scc1 ka_ar{tag}
    global_store_dword v2, v3, s[12:13] offset:{cnt+128} sc1
    """)
        a(f"""
ka_ar{tag}:
    s_mov_b64 exec, -1
    {S5(3)}
    """)
    N1 = NCHUNK+6
    arrive("r", 10, L_ARR, 64, 0) if not one else arrive("r", 11, L_ARR, 0, N1)
    a(f"""
    {END+"2" if fused else END}
ka_ov:
    s_mul_i32 s33, s2, {CHUNK*4}
    s_add_u32 s33, s33, {WS_OV}
    buffer_store_dword v{sets[0]['sh']+2}, v{sets[0]['B']}, s[20:23], s33 offen{pst}
    buffer_store_dword v{sets[1]['sh']+2}, v{sets[1]['B']}, s[20:23], s33 offen{pst}
    s_branch ka_ov_back
ka_dma:
    s_and_b32 s21, s15, 0xffff
    s_cmp_eq_u32 s18, 11
    s_cbranch_scc1 ka_cell
    s_mul_i32 s35, s2, {CHUNK*32}
    v_lshl_add_u32 v7, v1, 4, s35
    s_mul_i32 s35, s2, {CHUNK*8}
    v_lshl_add_u32 v8, v1, 4, s35
    s_mov_b32 m0, {L_SH}
    s_barrier
    """)
    def dma(v, sb, n0, n1):
        for i in range(n0, n1):
            a(f"global_load_lds_dwordx4 v{v}, {sb} offset:{(i%4)*1024-2048 if False else (i%2)*1024}{ld}")
            if i % 2 == 1:
                a(f"s_add_u32 m0, m0, 2048")
                a(f"v_add_u32 v{v}, 2048, v{v}")
    dma(8, "s[8:9]", 0, 10)
    a(f"s_mov_b32 m0, {L_EA}\ns_nop 0")
    dma(7, "s[10:11]", 0, 2*nb0)
    a("s_barrier")
    dma(7, "s[10:11]", 2*nb0, 40)
    a(S5(1))
    a(f"""
    s_waitcnt vmcnt(0)
    s_barrier
    {END}
ka_cell:
    s_lshl_b32 s30, s28, 6
    s_add_u32 s30, s30, {WS_C}
    v_lshlrev_b32 v3, 3, v1
    v_mov_b32 v4, 0
    v_mov_b32 v5, 0
    ds_write_b64 v3, v[4:5]
    v_lshlrev_b32 v26, 4, v1
    v_lshrrev_b32 v6, 2, v1
    v_lshlrev_b32 v6, 13, v6
    v_and_or_b32 v6, v26, 0x30, v6
    v_lshlrev_b32 v27, 8, v1
    s_waitcnt lgkmcnt(0)
    s_barrier
    s_barrier
    ds_read_b128 v[12:15], v26 offset:{H}
    s_waitcnt lgkmcnt(0)
    v_add_u32 v17, v12, v13
    v_add_u32 v18, v17, v14
    v_add_u32 v16, v18, v15
    v_mov_b32 v19, v16
    v_lshlrev_b32 v20, 16, v12
    """)
    fl = [f"v_lshl_add_u32 v21, v13, 16, v12", f"v_lshl_add_u32 v22, v14, 16, v17", f"v_lshl_add_u32 v23, v15, 16, v18"]
    for i, op in enumerate(("row_shr:1 row_mask:0xf","row_shr:2 row_mask:0xf","row_shr:4 row_mask:0xf","row_shr:8 row_mask:0xf","row_bcast:15 row_mask:0xa","row_bcast:31 row_mask:0xc")):
        a(f"v_add_u32_dpp v16, v16, v16 {op} bank_mask:0xf")
        if i < 5:
            if fl: a(fl.pop(0)); a("s_nop 0")
            else: a("s_nop 1")
    a("v_sub_u32 v16, v16, v19")
    for k in range(4):
        a(f"v_add_u32 v{20+k}, v{20+k}, v16")
        a(f"ds_write_b32 v27, v{20+k} offset:{L_CELL+64*k+60}")
    reg = lambda r: 28+4*(r % 14)
    for r in range(8): a(f"ds_read_b128 v[{reg(r)}:{reg(r)+3}], v26 offset:{L_CELL+1024*r}")
    for r in range(16):
        a(f"s_waitcnt lgkmcnt({min(7, 15-r)})")
        a(f"buffer_store_dwordx4 v[{reg(r)}:{reg(r)+3}], v6, s[20:23], s30 offen{cst}")
        if r+8 < 16: a(f"ds_read_b128 v[{reg(r+8)}:{reg(r+8)+3}], v26 offset:{L_CELL+1024*(r+8)}")
        if r < 15: a(f"s_add_u32 s30, s30, {16*8192}")
    a(S5(1))
    a("s_barrier")
    arrive("c", 1, 0, 0, N1) if not one else arrive("c", 11, L_ARR, 0, N1)
    a(f"""
    {END}
ka_pf:
    {HLP}
    s_waitcnt lgkmcnt(0)
    {HLP2}
    s_and_b32 s34, s2, 7
    s_mul_i32 s34, s34, {XP*2048}
    s_add_u32 s24, s16, s34
    s_addc_u32 s25, s17, 0
    s_and_b32 s25, s25, 0xffff
    s_mov_b32 s26, {KN*2048}
    s_mov_b32 s27, 0x20000
    s_bfe_u32 s30, s2, 0x40003
    v_lshlrev_b32 v40, 7, v0
    s_mul_i32 s30, s30, {HL*128}
    {CPF}
    """)
    a("ka_pf1:")
    if prefetch:
        n1 = min(10, HL//64); n2 = max(0, HL//64-10)
        a(f"""
    s_cmp_ge_u32 s18, {n1}
    s_cbranch_scc1 {'ka_pfe' if pfb else XE}
    {"s_waitcnt vmcnt(0)" if dly == 1 else (f"s_sleep {dly}" if dly else "")}
    buffer_load_dword v42, v40, s[24:27], s30 offen{pfp}
    {WB}
    s_cmp_ge_u32 s18, {n2}
    s_cbranch_scc1 {'ka_pfe' if pfb else XE}
    s_add_u32 s30, s30, {640*128}
    buffer_load_dword v43, v40, s[24:27], s30 offen{pfp}
    """)
    if pfb: a("ka_pfe:\n" + ("s_waitcnt vmcnt(0)\n" if pfb == 2 else "") + "s_barrier")
    a(f"""
    {END}
    """)
    real = a
    if own:
        class _N:
            def __call__(self, x): pass
        a = _N()
    a(f"""
ka_extra:
    s_sub_u32 s31, s3, {NCHUNK}
    s_lshr_b32 s34, s2, 7
    s_lshl1_add_u32 s31, s31, s34
    s_mul_i32 s34, s18, 6
    s_add_u32 s31, s31, s34
    s_cmp_ge_u32 s31, 64
    s_cbranch_scc1 ka_wr
    s_and_b32 s35, s31, 7
    s_lshr_b32 s36, s31, 3
    s_lshl_b32 s37, s35, 14
    s_lshr_b32 s38, s36, 1
    s_lshl_b32 s38, s38, 7
    s_add_u32 s37, s37, s38
    s_and_b32 s38, s36, 1
    s_lshl2_add_u32 s37, s38, s37
    v_lshrrev_b32 v44, 4, v1
    v_lshlrev_b32 v44, 11, v44
    v_and_b32 v45, 7, v1
    v_lshl_add_u32 v44, v45, 4, v44
    v_and_b32 v45, 8, v1
    v_add3_u32 v44, v44, v45, s37
    v_add_u32 v45, 0x2000, v44
    s_waitcnt lgkmcnt(0)
    """)
    for j in range(8):
        a(f"global_load_dword v{48+j}, v{44+(j>>2)}, s[32:33] offset:{(j&3)*512}")
    a(f"""
    s_lshr_b32 s36, s36, 1
    s_lshl3_add_u32 s36, s36, s35
    s_lshl1_add_u32 s36, s36, s38
    s_lshl_b32 s36, s36, 11
    s_add_u32 s36, s36, {WS_WT}
    v_lshl_add_u32 v46, v1, 4, s36
    s_mov_b32 s38, 0x05040100
    s_mov_b32 s39, 0x07060302
    s_waitcnt vmcnt(0)
    """)
    for i in range(4):
        a(f"v_perm_b32 v{56+i}, v{49+2*i}, v{48+2*i}, s38")
        a(f"v_perm_b32 v{60+i}, v{49+2*i}, v{48+2*i}, s39")
    a(f"""
    global_store_dwordx4 v46, v[56:59], s[14:15]{pst}
    global_store_dwordx4 v46, v[60:63], s[14:15] offset:1024{pst}
    """)
    a(f"""
    {"s_branch ka_xend" if fused else "s_endpgm"}
ka_wr:
    s_sub_u32 s31, s31, 64
    s_cmp_ge_u32 s31, 5
    s_cbranch_scc1 {"ka_xend" if fused else XE}
    s_load_dwordx4 s[36:39], s[0:1], 40
    s_lshl_b32 s34, s31, 11
    s_add_u32 s34, s34, {WS_WRF}
    v_lshl_add_u32 v46, v1, 4, s34
    s_cmp_eq_u32 s31, 4
    s_cbranch_scc1 ka_cg
    v_lshrrev_b32 v44, 5, v1
    v_lshlrev_b32 v44, 12, v44
    v_and_b32 v45, 31, v1
    v_lshl_add_u32 v44, v45, 1, v44
    v_lshl_add_u32 v44, s31, 7, v44
    s_waitcnt lgkmcnt(0)
    """)
    for j in range(16):
        a(f"global_load_ushort v{48+j}, v44, s[38:39] offset:{(j&7)*512+(j>>3)*64}")
    a(f"""
    s_branch ka_pk
ka_cg:
    v_and_b32 v44, 3, v1
    v_lshlrev_b32 v44, 1, v44
    s_waitcnt lgkmcnt(0)
    """)
    for j in range(16):
        a(f"global_load_ushort v{48+j}, v44, s[36:37] offset:{j*8}")
    a("ka_pk:")
    a("s_waitcnt vmcnt(0)")
    for i in range(8):
        a(f"v_lshl_or_b32 v{64+i}, v{49+2*i}, 16, v{48+2*i}")
    a(f"""
    global_store_dwordx4 v46, v[64:67], s[14:15]{pst}
    global_store_dwordx4 v46, v[68:71], s[14:15] offset:1024{pst}
    """)
    if fused: a("ka_xend:\ns_waitcnt vmcnt(0) lgkmcnt(0)\ns_barrier\ns_cmp_lg_u32 s18, 11\ns_cbranch_scc1 mn_start")
    arrive("x", 1, 0, 0, N1)
    a(f"""
    {END}
    """)
    a = real
    a(f"""
{BC}
ka_end:
    s_endpgm
    """)
    if not fused:
        a.end_kernel(name, 88, 40)
        a.launch(name, 256, 768, L_END)
```

```python
from layout13 import *
KNAME='standalone__tensor_product_equiv_mace__graph_kernel'

L_CNT=0; L_MORE=272; L_DONE=276; L_DIFF=288; L_ZERO=320; L_TOT=384; L_GO=304; L_LIST=512
SSTR=576
NR=5; LPR=4

vTR=1; vE=2; vEAa=3; vX=4; vSh=8; vAop=12; vSHa=18; vSl=19; vB=20; vD=28; vRW=44; vEA1=60; vEA2=64
vW1=68; vW2=72; vCG=76; vSa=84; vSd=85; vKc=86; vAW=87; vAcc=88
NV=168
sX=4; sLOW=8; sOUT=12
sWv=16; sQ=17; sG=18; sLeft=19; sLim=20; sMore=21; sTot=23; sDone=24; sTo=25; sA=28; sStart=32; sEnd=33; sRem=34; sOR=35; sM=40; sRet=48; sK=58; sP=59; sC=84
sT=64

def gen_main(a, rld='', stamps=0, exp='', ost=' sc0 sc1', KN=XS, wld='', xld='', prio=3, slp=2, R=6, wd=1, steer=1, soff=2, gprio=0,
             ntouch=0, pfs=2, wa=8, wb=16, w0=0, b2=1, xe=2, ez=0, b3=99, gfirst=0, gt=0, fl=0, wn=0, fused=0, psl=4, wc=0, rb3=0, ppol=' sc1', one=0, mbox=0, nsh=0, own=0, smb=0, nwb=4, wla=4, wlb=2):
    name="main_kernel"
    PAD=2*R+8
    QSTR=16*SSTR+R*1024; GSTR=4*QSTR; RB=163840-2*GSTR
    CAP=min(900,(RB-L_LIST-8*PAD-48)//52)
    L_RAW=L_ZERO+((L_LIST+4*(CAP+2*PAD)-L_ZERO+47)//48)*48
    RI0=(L_RAW-L_ZERO)//48
    assert RI0+CAP < 1024
    assert L_RAW+48*CAP <= RB and RB % 256 == 0 and CAP >= 512 and 24 % R == 0
    if fused: name=KNAME; ntouch=ntouch*one
    else: a.begin_kernel(name)
    def st(i):
        if stamps == 5: return ""
        if stamps == 2 and i in (5,6): return f"s_memrealtime s[{sT+2*i}:{sT+2*i+1}]\ns_memtime s[{sT+2*(i-3)}:{sT+2*(i-3)+1}]"
        return f"s_memrealtime s[{sT+2*i}:{sT+2*i+1}]" if (stamps and (stamps == 1 or i in (0,5,6,7))) else ""
    LO = f"s[{sLOW}:{sLOW+3}]"
    vWd=20; vK=25; vRk=30; vJ=35; vG=36; vRi=41; vN=42; vNs=43; vT2=44; vCb=46; vL4=47; vOne=48; vPadv=49; vDum=50; vLane=51
    vC0=52; vC1=53; vC2=54; u0=55; u1=56; u2=57; vTt_=58; vB2=59
    SCAN6 = ("row_shr:1 row_mask:0xf","row_shr:2 row_mask:0xf","row_shr:4 row_mask:0xf","row_shr:8 row_mask:0xf","row_bcast:15 row_mask:0xa","row_bcast:31 row_mask:0xc")
    TOFF = f"""
    v_lshrrev_b32 v{u1}, 6, v0
    v_lshlrev_b32 v{u0}, 1, v0
    v_and_b32 v{u0}, 0x78, v{u0}
    v_or_b32 v{u0}, v{u0}, v{u1}
    v_cmp_gt_u32 vcc, {NCHUNK}, v{u0}
    v_mul_u32_u24 v{vCb}, {CHUNK*4}, v{u0}
    v_add_u32 v{vCb}, {WS_OV}, v{vCb}
    v_bfrev_b32 v{u1}, 2
    v_lshlrev_b32 v{vT2}, 4, v0
    v_cndmask_b32 v{vT2}, v{u1}, v{vT2}, vcc
    v_and_b32 v{vLane}, 63, v0
"""
    CLD = f"buffer_load_dwordx4 v[{vWd}:{vWd+3}], v{vT2}, {LO}, s22 offen{rld}"
    HDR = f"v_mov_b32_dpp v{vTt_}, v{vWd+3} quad_perm:[3,3,3,3] row_mask:0xf bank_mask:0xf"
    def poll(tag, off, vz, vr, tgt=0):
        a(f"""
    v_mov_b32 v{vz}, 0
    s_mov_b32 s63, 0x100000
mn_poll{tag}:
    global_load_dword v{vr}, v{vz}, s[60:61] offset:{off}{ppol}
    s_sub_u32 s63, s63, 1
    s_cbranch_scc1 mn_poll{tag}x
    s_waitcnt vmcnt(0)
    v_readfirstlane_b32 s62, v{vr}
    s_cmp_gt_u32 s62, {tgt}
    s_cbranch_scc1 mn_poll{tag}x
    s_sleep {psl}
    s_branch mn_poll{tag}
mn_poll{tag}x:
    """)
    def mpoll():
        if nsh:
            a(f"""
    s_and_b32 s62, s2, {(smb if smb else 64*mbox)-1}
    s_lshl_b32 s62, s62, 7
    s_add_u32 s62, s62, {WS_MB}
    v_mov_b32 v11, s62
    s_add_u32 s59, s59, {nsh}
    v_lshlrev_b32 v9, 6, v0
    v_and_b32 v9, 0xc0, v9
    s_mov_b32 s63, 0x100000
mn_poll1m:
    global_load_dword v10, v11, s[54:55] sc1
    s_sub_u32 s63, s63, 1
    s_cbranch_scc1 mn_poll1x
    s_waitcnt vmcnt(0)
    v_cmp_eq_u32 vcc, s59, v10
    s_cbranch_vccnz mn_poll1x
    s_sleep {psl}
    s_and_b32 s62, s63, 63
    s_cbranch_scc1 mn_poll1m
    global_load_dword v10, v9, s[60:61] sc1
    s_waitcnt vmcnt(0)
    v_add_u32_dpp v10, v10, v10 quad_perm:[1,0,3,2] row_mask:0xf bank_mask:0xf
    s_nop 1
    v_add_u32_dpp v10, v10, v10 quad_perm:[2,3,0,1] row_mask:0xf bank_mask:0xf
    v_cmp_ne_u32 vcc, {NCHUNK+(0 if own else 6)}, v10
    s_cbranch_vccnz mn_poll1m
mn_poll1x:
    """)
            return
        a(f"""
    s_and_b32 s62, s2, {64*mbox-1}
    s_lshl_b32 s62, s62, 7
    s_add_u32 s62, s62, {WS_MB}
    v_mov_b32 v11, s62
    v_mov_b32 v9, 0
    s_mov_b32 s63, 0x100000
    global_load_dword v8, v11, s[54:55] sc1
    s_waitcnt vmcnt(0)
mn_poll1:
    global_load_dword v10, v9, s[60:61] offset:128 sc1
    s_waitcnt vmcnt(0)
    v_cmp_ne_u32 vcc, 0, v10
    s_cbranch_vccnz mn_poll1x
mn_poll1m:
    global_load_dword v10, v11, s[54:55] sc1
    s_sub_u32 s63, s63, 1
    s_cbranch_scc1 mn_poll1x
    s_waitcnt vmcnt(0)
    v_cmp_ne_u32 vcc, v8, v10
    s_cbranch_vccnz mn_poll1x
    s_sleep {psl}
    s_and_b32 s62, s63, 15
    s_cbranch_scc1 mn_poll1m
    s_branch mn_poll1
mn_poll1x:
    """)
    assert not fl
    L_WR = RB+7*QSTR
    OWNL = f"""{CLD}
    s_barrier
    ds_read_b64_tr_b16 v[{vCG}:{vCG+1}], v{vSh+1}
    ds_read_b64_tr_b16 v[{vCG+2}:{vCG+3}], v{vSh+1} offset:32
    ds_read_b64_tr_b16 v[{vCG+4}:{vCG+5}], v{vSh+1} offset:64
    ds_read_b64_tr_b16 v[{vCG+6}:{vCG+7}], v{vSh+1} offset:96
    ds_read_b64_tr_b16 v[{vW1}:{vW1+1}], v{vSh}
    ds_read_b64_tr_b16 v[{vW1+2}:{vW1+3}], v{vSh} offset:2048
    ds_read_b64_tr_b16 v[{vW2}:{vW2+1}], v{vSh} offset:64
    ds_read_b64_tr_b16 v[{vW2+2}:{vW2+3}], v{vSh} offset:{2048+64}"""
    OWNA = f"""v_bfe_u32 v{vSh}, v0, 2, 2
    v_bfe_u32 v{vSh+2}, v0, 5, 1
    v_lshlrev_b32 v{vSh+1}, 3, v{vSh}
    v_add_u32 v{vSh+1}, {L_WR+8192}, v{vSh+1}
    v_lshl_add_u32 v{vSh}, v{vSh+2}, 3, v{vSh}
    v_lshlrev_b32 v{vSh}, 9, v{vSh}
    v_bfe_u32 v{vSh+2}, v0, 4, 1
    v_lshl_add_u32 v{vSh}, v{vSh+2}, 5, v{vSh}
    v_lshl_add_u32 v{vSh}, v{vJ}, 3, v{vSh}
    v_lshl_add_u32 v{vSh}, s{sQ}, 7, v{vSh}
    v_add_u32 v{vSh}, {L_WR}, v{vSh}"""
    LOADS = f"""{CLD}
    s_barrier
    buffer_load_dwordx4 v[{vW1}:{vW1+3}], v{vC0}, {LO}, s62 offen{wld}
    buffer_load_dwordx4 v[{vW2}:{vW2+3}], v{vC0}, {LO}, s62 offen offset:1024{wld}
    buffer_load_dwordx4 v[{vCG}:{vCG+3}], v{vC0}, {LO}, s63 offen{wld}
    buffer_load_dwordx4 v[{vCG+4}:{vCG+7}], v{vC0}, {LO}, s63 offen offset:1024{wld}"""
    a(f"""
    {"mn_start:" if fused else ""}
    {"s_waitcnt vmcnt(0) lgkmcnt(0)" if fused else ""}
    {"mn_start2:" if fused else ""}
    {st(0) if not fused else ""}
    s_cmp_ge_u32 s2, {NBLK}
    s_cbranch_scc1 mn_end
    s_load_dwordx2 s[54:55], s[0:1], 80
    s_load_dwordx2 s[50:51], s[0:1], 0
    {"s_load_dwordx2 s[60:61], s[0:1], 72" if fused else ""}
    v_lshrrev_b32 v{u1}, 6, v0
    s_and_b32 s48, s2, 7
    v_readfirstlane_b32 s{sWv}, v{u1}
    s_lshr_b32 s47, s2, 3
    s_lshl_b32 s22, s48, 5
    s_add_u32 s22, s22, s47
    s_lshl_b32 s22, s22, 13
    s_add_u32 s22, s22, {WS_C}
    s_mov_b32 s{sLOW+2}, {WS_LOW}
    s_mov_b32 s{sLOW+3}, 0x20000
    s_and_b32 s{sQ}, s{sWv}, 3
    s_movk_i32 s{sLim}, {LPR*NR}
    s_mov_b32 s{sDone}, 0
    s_cmp_ge_u32 s{sWv}, 8
    s_cbranch_scc1 gm_main
    {TOFF}
    s_lshl_b32 s62, s{sQ}, 11
    s_add_u32 s62, s62, {WS_WRF}
    s_mov_b32 s63, {WS_CGF}
    v_lshlrev_b32 v{vC0}, 4, v{vLane}
    s_waitcnt lgkmcnt(0)
    s_mov_b32 s{sLOW}, s54
    s_and_b32 s{sLOW+1}, s55, 0xffff
    {LOADS if not fused else ""}
    v_mov_b32 v{vWd+4}, 0
    s_lshr_b32 s{sG}, s{sWv}, 2
    s_lshl_b32 s53, s{sQ}, 7
    s_add_u32 s{sX}, s50, s53
    s_addc_u32 s{sX+1}, s51, 0
    s_and_b32 s{sX+1}, s{sX+1}, 0xffff
    s_or_b32 s{sX+1}, s{sX+1}, 0x08000000
    s_movk_i32 s{sX+2}, {N}
    s_mov_b32 s{sX+3}, 0x20000
    s_mul_i32 s{sM}, s{sWv}, {QSTR}
    s_add_u32 s{sM}, s{sM}, {RB}
    v_lshl_add_u32 v{vAW}, v{vLane}, 3, s{sM}
    s_add_u32 s{sM}, s{sM}, {16*SSTR}
    """)
    for r in range(1, R): a(f"s_add_u32 s{sM+r}, s{sM}, {1024*r}")
    a(f"""
    v_and_b32 v{u0}, 3, v0
    v_bfe_u32 v{u1}, v0, 2, 2
    v_bfe_u32 v{u2}, v0, 4, 1
    v_bfe_u32 v{vC1}, v0, 5, 1
    v_lshlrev_b32 v{vTR}, 3, v{u0}
    v_lshl_add_u32 v{vTR}, v{u2}, 5, v{vTR}
    v_lshl_add_u32 v{vTR}, v{u1}, 6, v{vTR}
    v_lshl_add_u32 v{vTR}, v{vC1}, 8, v{vTR}
    v_add_u32 v{vTR}, s{sM}, v{vTR}
    v_lshlrev_b32 v{vX+1}, 4, v{u0}
    v_lshl_add_u32 v{vX+1}, v{u2}, 6, v{vX+1}
    v_lshl_add_u32 v{vX+1}, v{u1}, 9, v{vX+1}
    v_mov_b32 v{vX+3}, v{vX+1}
    v_bfe_u32 v{u0}, v0, 2, 1
    v_lshlrev_b32 v{vKc}, 4, v{vC1}
    v_lshl_or_b32 v{vKc}, v{u0}, 18, v{vKc}
    """)
    CONST = f"""
    v_mov_b32 v{vOne}, 1
    v_lshlrev_b32 v{vL4}, 2, v{vLane}
    v_bfe_u32 v{vE}, v0, 5, 1
    v_bfe_u32 v{vEAa}, v0, 3, 2
    v_and_b32 v{vJ}, 3, v0
    v_lshl_add_u32 v{vEAa}, v{vEAa}, 2, v{vJ}
    v_mul_u32_u24 v{vPadv}, {PAD}, v{vE}
    v_lshrrev_b32 v{vSHa}, 2, v{vLane}
    v_lshl_add_u32 v{vSHa}, v{vJ}, 4, v{vSHa}
    v_mov_b32 v{vDum}, 0x3fff
    s_lshl_b32 s37, s{sWv}, 2
    v_mov_b32 v{vB2}, s37
    s_sub_u32 s36, s{sWv}, 1
"""
    a(CONST)
    for i in range(0, 80, 2): a(f"v_mov_b64 v[{vAcc+i}:{vAcc+i+1}], 0")
    a(f"""
    {OWNA if own else ""}
    {"s_barrier" if fused else ""}
    {(OWNL if own else LOADS) if fused else ""}
    s_mov_b32 s52, 0x100000
    s_waitcnt vmcnt({0 if own else 4})
    {st(1)}
    {HDR}
    v_cmp_le_u32 vcc, s52, v{vTt_}
    s_cbranch_vccnz mn_w5
mn_count:
    """)
    def rounds(tag, body):
        for r in range(NR):
            a(f"v_cmpx_gt_i32 vcc, 0, v{vWd+r}")
            a(f"s_cbranch_execz mn_{tag}_done")
            body(r)
        a(f"mn_{tag}_done:")
        a("s_mov_b64 exec, -1")
    def cnt(r):
        a(f"v_lshrrev_b32 v{vK+r}, 23, v{vWd+r}")
        a(f"v_and_b32 v{vK+r}, 0xfc, v{vK+r}")
        a(f"ds_add_rtn_u32 v{vRk+r}, v{vK+r}, v{vOne}")
    rounds("cn", cnt)
    def clampn(dst, src):
        a(f"v_lshrrev_b32 v{dst}, 16, v{src}")
        a(f"v_subrev_u32 v{dst}, s{sDone}, v{dst}")
        a(f"v_med3_i32 v{dst}, v{dst}, 0, s{sLim}")
    clampn(vN, vTt_)
    a(f"v_mov_b32 v{vNs}, v{vN}")
    fl_ = [f"v_mov_b32 v{vC0}, 0", f"s_lshl_b32 s52, s{sG}, 5", f"s_add_u32 s53, s52, 31", "s_movk_i32 s48, 0x3fff"] + ["s_nop 0"]*4
    for op in SCAN6[2:]:
        a(fl_.pop(0)); a(fl_.pop(0))
        a(f"v_add_u32_dpp v{vNs}, v{vNs}, v{vNs} {op} bank_mask:0xf")
    a(f"""
    s_brev_b64 exec, 1
    ds_write_b32 v{vB2}, v{vNs} offset:{L_TOT}
    s_mov_b64 exec, -1
    v_sub_u32 v{vRi}, v{vNs}, v{vN}
    s_waitcnt lgkmcnt(0)
    s_barrier
    {st(3)}
    ds_read_b32 v{u0}, v{vL4} offset:{L_TOT}
    ds_read_b32 v{vC1}, v{vL4} offset:{L_CNT}
    ds_read_b32 v{vC0}, v{vC0} offset:{L_MORE}
    s_waitcnt lgkmcnt(2)
    v_add_u32_dpp v{u0}, v{u0}, v{u0} row_shr:1 row_mask:0xf bank_mask:0xf
    s_waitcnt lgkmcnt(1)
    v_mov_b32 v{vC2}, v{vC1}
    v_add_u32_dpp v{u0}, v{u0}, v{u0} row_shr:2 row_mask:0xf bank_mask:0xf
    v_sub_u32 v{vC1}, v{vPadv}, v{vC1}
    v_add_u32 v{vRi}, v{vRi}, v{vJ}
    v_add_u32_dpp v{u0}, v{u0}, v{u0} row_shr:4 row_mask:0xf bank_mask:0xf
    s_cmp_eq_u32 s{sWv}, 0
    v_readlane_b32 s49, v{u0}, s36
    s_cmov_b32 s49, 0
    s_add_u32 s49, s49, {RI0}
    """)
    fill = [f"v_add_u32 v{vRi}, s49, v{vRi}", f"v_lshlrev_b32 v{vRi}, 16, v{vRi}"]
    for r in range(NR):
        fill += [f"v_and_or_b32 v{vG+r}, v{vWd+r}, s48, v{vRi}"] + ([f"v_add_u32 v{vRi}, {LPR<<16}, v{vRi}"] if r < NR-1 else [])
    for i, op in enumerate(SCAN6):
        a(f"v_add_u32_dpp v{vC2}, v{vC2}, v{vC2} {op} bank_mask:0xf")
        if i < 5: a(fill.pop(0)); a(fill.pop(0))
    a(f"""
    v_add_u32 v{vC1}, v{vC1}, v{vC2}
    v_add_u32 v{vC2}, v{vC2}, v{vPadv}
    """)
    for r in range(NR):
        a(f"ds_bpermute_b32 v{vK+r}, v{vK+r}, v{vC1}")
    for o in fill: a(o)
    for r in range(NR):
        a(f"v_bfe_u32 v{u1}, v{vWd+r}, 14, 5")
        a(f"v_lshl_or_b32 v{vG+r}, v{u1}, 26, v{vG+r}")
    a(f"""
    v_readlane_b32 s{sTot}, v{vC2}, 63
    v_readlane_b32 s{sEnd}, v{vC2}, s53
    v_readlane_b32 s{sStart}, v{vC1}, s52
    s_cmp_gt_u32 s{sTot}, {CAP+PAD}
    s_cbranch_scc1 mn_ovf
    v_add_lshl_u32 v{u0}, s{sEnd}, v{vLane}, 2
    s_mov_b32 exec_lo, {(1<<PAD)-1}
    s_mov_b32 exec_hi, 0
    ds_write_b32 v{u0}, v{vDum} offset:{L_LIST}
    s_mov_b64 exec, -1
    v_add_lshl_u32 v{vE}, s{sStart}, v{vE}, 2
    v_add_lshl_u32 v{vEAa}, s{sStart}, v{vEAa}, 2
    v_add_lshl_u32 v{vSHa}, s{sStart}, v{vSHa}, 2
    s_waitcnt lgkmcnt(1)
    v_readfirstlane_b32 s{sMore}, v{vC0}
    """)
    def w2(r):
        a(f"v_add_lshl_u32 v{vK+r}, v{vK+r}, v{vRk+r}, 2")
        a(f"ds_write_b32 v{vK+r}, v{vG+r} offset:{L_LIST}")
    rounds("w2", w2)
    def ea_adr():
        a(f"v_and_b32 v{vSa}, 0x3ff, v{vSa}")
        a(f"v_mad_u32_u24 v{vSa}, v{vSa}, 48, v{vKc}")
        a(f"v_xor_b32 v{vSd}, 0x40000, v{vSa}")
    def ea_rd():
        a(f"ds_read_b128 v[{vEA1}:{vEA1+3}], v{vSa} offset:{L_ZERO}")
        a(f"ds_read_b128 v[{vEA2}:{vEA2+3}], v{vSd} offset:{L_ZERO}")
    def sh_adr():
        a(f"v_lshrrev_b32 v{vSh+3}, 8, v{vSh}")
        a(f"v_and_b32 v{vSh}, 0x3ff, v{vSh}")
        a(f"v_mul_u32_u24 v{vSh}, 48, v{vSh}")
    def sh_rd(): a(f"ds_read_b64 v[{vSh}:{vSh+1}], v{vSh} offset:{L_ZERO+32}")
    def mk_sl():
        a(f"v_and_b32 v{vSh+3}, 0x7c, v{vSh+3}")
        a(f"v_or_b32 v{vSh+3}, 0xc000, v{vSh+3}")
        a(f"v_lshlrev_b32 v{vSh+2}, 16, v{vSh+3}")
    def mk_sl2():
        a(f"v_or_b32_dpp v{vSl}, v{vSh+2}, v{vSh+3} row_shl:4 row_mask:0xf bank_mask:0xf bound_ctrl:0")
    def a_mfma():
        for u in range(4):
            a(f"v_mfma_f32_4x4x4_16b_bf16 v[{vD+4*u}:{vD+4*u+3}], v[{vSh}:{vSh+1}], v[{vCG+2*u}:{vCG+2*u+1}], 0")
    def a_cvt():
        for h in range(2):
            for i in range(3):
                a(f"v_cvt_pk_bf16_f32 v{vAop+2*i+h}, v{vD+8*h+i}, v{vD+8*h+4+i}")
    def rw_mfma():
        a(f"v_mfma_f32_32x32x16_bf16 v[{vRW}:{vRW+15}], v[{vEA1}:{vEA1+3}], v[{vW1}:{vW1+3}], 0")
        a(f"v_mfma_f32_32x32x16_bf16 v[{vRW}:{vRW+15}], v[{vEA2}:{vEA2+3}], v[{vW2}:{vW2+3}], v[{vRW}:{vRW+15}]")
    def trreads(slot, h):
        for j in range(2):
            a(f"ds_read_b64_tr_b16 v[{vB+4*h+2*j}:{vB+4*h+2*j+1}], v{vTR} offset:{slot*1024+j*512}")
    FLI = f"""s_cselect_b64 vcc, -1, 0
    s_getpc_b64 s[60:61]
mn_pc:
    s_add_u32 s60, s60, mn_fl0-mn_pc
    s_addc_u32 s61, s61, 0
    s_mul_i32 s62, s{sG}, 7
    s_add_u32 s62, s62, 1""" if fl else ""
    assert steer or not fl
    vS0 = vB
    def XD(j): return f"buffer_load_dwordx4 v[{vX+2*j}:{vX+2*j+1}], s[{sX}:{sX+3}], 0 idxen offen{xld} lds"
    a(f"""
    s_mov_b32 m0, s{sM}
    s_sub_u32 s{sStart}, s{sStart}, 3
    s_sub_u32 s{sP}, s{sEnd}, s{sStart}
    s_lshr_b32 s{sP}, s{sP}, 2
    s_waitcnt lgkmcnt(0)
    s_barrier
    {st(4)}
    ds_read_u16 v{vX}, v{vE} offset:{L_LIST}
    ds_read_u16 v{vX+2}, v{vE} offset:{L_LIST+8}
    ds_read_u16 v{vSh}, v{vSHa} offset:{L_LIST+2}
    ds_read_u16 v{vSa}, v{vEAa} offset:{L_LIST+2}
    """)
    for r in range(2, R+2): a(f"ds_read_u16 v{vS0+r}, v{vE} offset:{L_LIST+8*r}")
    a(f"""
    s_sub_u32 s53, s53, 4
    v_readlane_b32 s{sC}, v{vC2}, s53
    s_add_u32 s53, s53, 1
    v_readlane_b32 s{sC+1}, v{vC2}, s53
    s_add_u32 s53, s53, 1
    v_readlane_b32 s{sC+2}, v{vC2}, s53
    s_add_u32 s53, s53, 1
    v_readlane_b32 s{sC+3}, v{vC2}, s53
    s_waitcnt lgkmcnt({R+2})
    """)
    a(XD(0)); a(f"s_mov_b32 m0, s{sM+1}"); a(f"s_waitcnt lgkmcnt({R})"); a(XD(1))
    sh_adr(); ea_adr()
    def xrest(r0, r1):
        for r in range(r0, r1):
            a(f"s_mov_b32 m0, s{sM+r}")
            a(f"v_mov_b32 v{vX}, v{vS0+r}")
            a(XD(0))
    if xe > 2: a("s_waitcnt lgkmcnt(0)")
    xrest(2, xe)
    if prio: a(f"s_setprio {prio}")
    a(f"s_waitcnt vmcnt({xe}) lgkmcnt(0)")
    a("s_barrier")
    a(st(2))
    sh_rd(); ea_rd()
    xrest(xe, R)
    a(f"""
    v_mov_b32 v{vX}, v{vS0+R}
    v_mov_b32 v{vX+2}, v{vS0+R+1}
    s_waitcnt vmcnt({R-2})
    """)
    trreads(0,0); trreads(1,1)
    a("s_waitcnt lgkmcnt(6)")
    a_mfma()
    if steer:
        a(f"""
    v_min_u32 v0, 1, v{vLane}
    v_lshlrev_b32 v0, 18, v0
    v_lshl_add_u32 v0, s{sQ}, 2, v0
    s_lshl_b32 s52, s{sG}, 1
    s_sub_i32 s52, 1, s52
    s_mul_i32 s53, s52, s{sP}
    s_add_i32 s53, s53, {soff}
    v_mov_b32 v{vSl}, s53
    """)
    mk_sl()
    a(f"s_waitcnt lgkmcnt(4)")
    rw_mfma()
    a(f"s_mov_b32 m0, s{sM}")
    a("s_waitcnt lgkmcnt(0)")
    a(XD(0))
    a(f"s_mov_b32 m0, s{sM+1}")
    if steer: a(f"ds_add_u32 v0, v{vSl} offset:{L_DIFF}")
    else: a("s_nop 0")
    a(XD(1))
    mk_sl2()
    a_cvt()
    for k in range(4): a(f"s_sub_u32 s{sC+k}, s{sC+k}, s{sStart}"); a(f"s_lshr_b32 s{sC+k}, s{sC+k}, 2")
    a(f"""
    s_sub_u32 s{sC+4}, s{sP}, s{sC+3}
    s_sub_u32 s{sC+3}, s{sC+3}, s{sC+2}
    s_sub_u32 s{sC+2}, s{sC+2}, s{sC+1}
    s_sub_u32 s{sC+1}, s{sC+1}, s{sC}
    s_cmp_lg_u32 s{sMore}, 0
    s_cselect_b32 s{sLeft}, s{sP}, s{sC}
    {FLI}
    s_mov_b32 s{sK}, 0
    s_mov_b32 s{sOR}, 0
    s_mov_b64 s[46:47], -1
    s_sub_i32 s{sRem}, s{sP}, {1+R//2}
    s_max_i32 s{sRem}, s{sRem}, 0
    s_mul_i32 s30, s52, -4
    s_lshl_b32 s26, s{sG}, 31
    s_set_gpr_idx_on s{sM}, gpr_idx(SRC2,DST)
    {st(5)}
    s_sub_u32 s{sLeft}, s{sLeft}, 1
    s_cbranch_scc1 mn_st12
mn_st12_back:
    """)
    if stamps == 3: a(f"s_mov_b32 s{sT+6}, 0")
    a("mn_loop:")
    for d in range(12):
        b = d >> 2; k0 = 4*(d & 3)
        for j in range(4):
            a(f"v_mfma_f32_4x4x4_16b_bf16 v[{vD+4*j}:{vD+4*j+3}], v[{vAop+2*b}:{vAop+2*b+1}], v[{vB+2*j}:{vB+2*j+1}], 0 cbsz:4 abid:{k0+j}")
        s0 = (2*d+2) % R; s1 = (2*d+3) % R
        a(f"ds_read_u16 v{vX}, v{vE} offset:{L_LIST+8*(2*d+2+R)}")
        a(f"ds_read_u16 v{vX+2}, v{vE} offset:{L_LIST+8*(2*d+3+R)}")
        for j in range(2): a(f"v_readlane_b32 s{sA+j}, v{vSl}, {4*(k0+2*j)+b}")
        if steer and (d & 3) == 3:
            a(f"v_mov_b32 v{vSd}, s30")
            a(f"ds_add_rtn_u32 v{vSd}, v0, v{vSd} offset:{L_DIFF}")
        if (d & 3) == 1: a(f"ds_read_u16 v{vSa}, v{vEAa} offset:{L_LIST+2+64*(b+1)}")
        if (d & 3) == 2: ea_adr(); ea_rd()
        if d == 8: a(f"ds_read_u16 v{vSh}, v{vSHa} offset:{L_LIST+2+48*4}")
        if d == 9: sh_adr(); sh_rd()
        a(f"s_waitcnt vmcnt({R-1})"); trreads(s0, 0)
        a(f"s_waitcnt vmcnt({R-2})"); trreads(s1, 1)
        a(f"s_sub_u32 s{sRem}, s{sRem}, 1")
        a(f"s_cmov_b32 s{sOR}, 0x30000" if not ez else "s_cmov_b64 s[46:47], 0")
        for j in range(4):
            a(f"s_mov_b32 m0, s{sA+j//2}" if j%2 == 0 else f"s_lshr_b32 m0, s{sA+j//2}, 16")
            for w in range(4):
                if 'f' not in exp: a(f"v_fmac_f32 v{vAcc+w}, v{vD+4*j+w}, v{vRW+k0+j}")
        a(f"s_or_b32 m0, s{sM+s0}, s{sOR}")
        if d == 11: a_mfma()
        if (d & 3) == 3: rw_mfma()
        if ez: a("s_mov_b64 exec, s[46:47]")
        a("s_waitcnt lgkmcnt(2)")
        a(XD(0))
        a(f"s_or_b32 m0, s{sM+s1}, s{sOR}")
        a("s_waitcnt lgkmcnt(0)")
        a(XD(1))
        if ez: a("s_mov_b64 exec, -1")
        if d == 10: mk_sl()
        if d == 11:
            a_cvt()
            mk_sl2()
            for r in (vE, vEAa, vSHa): a(f"v_add_u32 v{r}, {48*4}, v{r}")
        if steer and (d & 3) == 3:
            a(f"v_readfirstlane_b32 s27, v{vSd}")
            a(f"s_setprio {prio}")
            a(f"s_xor_b32 s27, s27, s26")
            a(f"s_cmp_ge_i32 s27, 0")
            a(f"s_cbranch_scc1 mn_pr{d}")
            a(f"s_setprio {prio-1}")
            a(f"mn_pr{d}:")
        a(f"s_sub_u32 s{sLeft}, s{sLeft}, 1")
        a(f"s_cbranch_scc1 mn_st{d}")
        a(f"mn_st{d}_back:")
    if stamps == 3:
        a(f"s_memrealtime s[62:63]\ns_waitcnt lgkmcnt(0)")
        for i in range(6): a(f"s_cmp_eq_u32 s{sT+6}, {i}\ns_cmov_b32 s{90+i}, s62")
        a(f"s_add_u32 s{sT+6}, s{sT+6}, 1")
    a("s_branch mn_loop")
    if fl:
        for d in range(13):
            a(f"mn_st{d}:")
            a(f"s_cbranch_vccnz mn_next")
            a(f"s_swappc_b64 s[{sRet}:{sRet+1}], s[60:61]")
            a(f"s_branch mn_st{d}_back")
        for k in range(5):
            a(f"mn_fl{k}:")
            if stamps == 4 and k < 4: a(f"s_memrealtime s[{sT+2+2*k}:{sT+3+2*k}]")
            if k == 4:
                a(st(6))
                a(f"s_cmp_ge_u32 s{sP}, {R//2+1}\ns_cbranch_scc1 mn_fl4b\ns_waitcnt vmcnt(0)\nmn_fl4b:")
            for j in range(4*k, 4*k+4):
                a(f"v_cvt_pk_bf16_f32 v{vAcc+4*j}, v{vAcc+4*j}, v{vAcc+4*j+1}")
                a(f"v_cvt_pk_bf16_f32 v{vAcc+4*j+1}, v{vAcc+4*j+2}, v{vAcc+4*j+3}")
                if j % 2: a(f"ds_write2_b64 v{vAW}, v[{vAcc+4*j-4}:{vAcc+4*j-3}], v[{vAcc+4*j}:{vAcc+4*j+1}] offset0:{(j%4-1)*SSTR//8} offset1:{(j%4)*SSTR//8}")
            z = vAcc+16*k+2
            a(f"""
    v_mov_b32 v{z}, s62
    v_and_b32 v{z+1}, 0x40000, v0
    ds_add_u32 v{z+1}, v{z} offset:{L_DONE}
    """)
            if k < 4:
                a(f"""
    v_add_u32 v{vAW}, {4*SSTR}, v{vAW}
    s_lshl_b32 s62, s62, 6
    s_add_u32 s60, s60, mn_fl{k+1}-mn_fl{k}
    s_addc_u32 s61, s61, 0
    s_sub_u32 s{sLeft}, s{sC+k+1}, 1
    s_cbranch_scc1 mn_fl{k+1}
    s_setpc_b64 s[{sRet}:{sRet+1}]
    """)
    else:
        for d in range(13):
            a(f"mn_st{d}:")
            a(f"s_cmp_lg_u32 s{sMore}, 0")
            a(f"s_cbranch_scc1 mn_next")
            a(f"s_call_b64 s[{sRet}:{sRet+1}], mn_flush")
            a(f"s_branch mn_st{d}_back")
        a("mn_flush:")
        for k in (4,3,2,1): a(f"s_cmp_eq_u32 s{sK}, {k}\ns_cbranch_scc1 mn_fl{k}")
        for k in range(5):
            a(f"mn_fl{k}:")
            if stamps == 4 and k < 4: a(f"s_memrealtime s[{sT+2+2*k}:{sT+3+2*k}]")
            if k == 4:
                a(st(6))
                a(f"s_cmp_ge_u32 s{sP}, {R//2+1}\ns_cbranch_scc1 mn_fl4b\ns_waitcnt vmcnt(0)\nmn_fl4b:")
            for j in range(4*k, 4*k+4):
                a(f"v_cvt_pk_bf16_f32 v{vAcc+4*j}, v{vAcc+4*j}, v{vAcc+4*j+1}")
                a(f"v_cvt_pk_bf16_f32 v{vAcc+4*j+1}, v{vAcc+4*j+2}, v{vAcc+4*j+3}")
                a(f"ds_write_b64 v{vAW}, v[{vAcc+4*j}:{vAcc+4*j+1}] offset:{SSTR*j}")
            z = vAcc+16*k+2
            a(f"""
    s_mul_i32 s52, s{sG}, 3
    s_lshl_b32 s52, {1<<(6*k)}, s52
    v_mov_b32 v{z}, s52
    v_mov_b32 v{z+1}, 0
    s_mov_b64 exec, 1
    ds_add_u32 v{z+1}, v{z} offset:{L_DONE}
    s_mov_b64 exec, -1
    """)
            if k < 4:
                a(f"""
    s_add_u32 s{sK}, s{sK}, 1
    s_sub_u32 s{sLeft}, s{sC+k+1}, 1
    s_cbranch_scc1 mn_fl{k+1}
    s_setpc_b64 s[{sRet}:{sRet+1}]
    """)
    a(f"""
    s_waitcnt vmcnt(0) lgkmcnt(0)
    {st(7)}
    {"s_branch mn_fin" if stamps else ""}
mn_end:
    s_endpgm
    """)
    vAa=0; vOut=1; vTt=2; vO=4; vA=12; vC=24; vW=40
    sTodo=36; sO=37; sOb=38; sAb=39; sOp=32; sOn=33; sNx=34; sWo=40; sN0=41
    AH=2; KS=8
    gL=3; gW=2; gT=4; gT2=6; gN=8; gNs=9; gB=10; gA=11; gR=12; gCb=13; gD=14; gM=15; gTa=16; gP=17; gX=18
    def wl(f0, f1, trickle):
        for f in range(f0, f1):
            if 'w' in exp: continue
            if f % 4 == 0 or f == f0: a(f"s_add_u32 s52, s{sWo}, {(f//4)*4096}")
            a(f"buffer_load_dwordx4 v[{vW+4*f}:{vW+4*f+3}], v{gW}, {LO}, s52 offen offset:{(f%4)*1024}{wld}")
            if trickle and f-f0 >= wd: a(f"s_waitcnt vmcnt({wd if f >= wn else wd+1})")
    a(f"""
gm_main:
    s_load_dwordx2 s[56:57], s[0:1], 64
    {"s_load_dwordx4 s[28:31], s[0:1], 40" if own else ""}
    {"s_load_dwordx2 s[26:27], s[0:1], 56" if own else ""}
    {"v_readfirstlane_b32 s59, v87" if nsh else ""}
    v_and_b32 v{gL}, 63, v0
    v_and_b32 v{gA}, 0x7f, v0
    v_min_u32 v{gA}, 95, v{gA}
    v_lshlrev_b32 v{gA}, 2, v{gA}
    v_mov_b32 v{gB}, 0
    ds_write_b32 v{gA}, v{gB}
    v_bfe_u32 v{gR}, v0, 1, 7
    v_and_b32 v{gA}, 15, v{gR}
    v_lshrrev_b32 v{gB}, 4, v{gR}
    v_lshl_or_b32 v{gA}, v{gA}, 3, v{gB}
    v_cmp_gt_u32 vcc, {NCHUNK}, v{gA}
    v_mul_u32_u24 v{gCb}, {CH_STRIDE}, v{gA}
    v_bfrev_b32 v{gB}, 2
    v_lshlrev_b32 v{gR}, 6, v{gR}
    v_cndmask_b32 v{gR}, v{gB}, v{gR}, vcc
    v_lshlrev_b32 v{gW}, 4, v{gL}
    s_lshl_b32 s{sWo}, s{sQ}, 15
    s_add_u32 s{sWo}, s{sWo}, {WS_WT}
    s_waitcnt lgkmcnt(0)
    s_mov_b32 s{sLOW}, s54
    s_and_b32 s{sLOW+1}, s55, 0xffff
    """)
    def g_poll():
        if fused:
            a(f"s_cmp_lg_u32 s{sWv}, 11\ns_cbranch_scc1 mn_poll1x")
            poll(1, 128, gA, gB) if not mbox else mpoll()
            if stamps == 5: a("s_memrealtime s[72:73]")
            a("s_barrier")
            if stamps == 5: a("s_memrealtime s[74:75]")
        a(f"""
    buffer_load_dword v{gT}, v{gR}, {LO}, s22 offen offset:60{rld}
    s_barrier
    """)
        if ntouch:
            a(f"""
    s_lshl2_add_u32 s47, s47, s{sQ}
    s_mul_i32 s47, s47, {CH_STRIDE}
    s_mul_i32 s48, s48, {CH_STRIDE//8}
    s_add_u32 s47, s47, s48
    s_sub_i32 s47, s47, 896
    s_max_i32 s47, s47, 0
    v_lshlrev_b32 v{gA}, 7, v{gL}
    buffer_load_dword v39, v{gA}, {LO}, s47 offen
    """)
    def g_setup():
        a(f"""
    s_mul_i32 s{sN0}, s2, 625
    s_add_u32 s52, s{sN0}, {625+15}
    s_add_u32 s{sN0}, s{sN0}, 15
    s_lshr_b32 s{sN0}, s{sN0}, 4
    s_lshr_b32 s52, s52, 4
    s_mov_b32 s{sOUT}, s56
    s_and_b32 s{sOUT+1}, s57, 0xffff
    s_lshl_b32 s{sOUT+2}, s52, 11
    s_mov_b32 s{sOUT+3}, 0x20000
    s_mul_i32 s42, s{sQ}, {QSTR}
    s_add_u32 s42, s42, {RB}
    s_lshl_b32 s43, s{sQ}, 1
    s_sub_u32 s43, s43, 1
    v_lshlrev_b32 v{gT2}, 2, v{gL}
    """)
        for i in range(3):
            a(f"v_add_u32 v{gA}, {64*i}, v{gL}")
            a(f"v_mul_u32_u24 v{gB}, 21846, v{gA}")
            a(f"v_lshrrev_b32 v{gB}, 16, v{gB}")
            a(f"v_lshl_add_u32 v{34+i}, v{gB}, 2, s42")
            a(f"v_mad_i32_i24 v{gB}, v{gB}, -3, v{gA}")
            a(f"v_lshlrev_b32 v{30+i}, 4, v{gB}")
    if own:
        a(f"""
    s_cmp_lg_u32 s{sWv}, 10
    s_cbranch_scc1 gm_nowr
    s_mov_b32 m0, {L_WR}
    v_add_u32 v{gB}, 4096, v{gW}
    """)
        for i in range(4): a(f"global_load_lds_dwordx4 v{gW}, s[30:31] offset:{1024*i}")
        a(f"s_mov_b32 m0, {L_WR+4096}\ns_nop 0")
        for i in range(4): a(f"global_load_lds_dwordx4 v{gB}, s[30:31] offset:{1024*i}")
        a(f"""
    s_mov_b32 m0, {L_WR+8192}
    s_mov_b64 exec, 0xff
    global_load_lds_dwordx4 v{gW}, s[28:29]
    s_mov_b64 exec, -1
gm_nowr:
    v_lshrrev_b32 v{gA}, 4, v{gL}
    v_lshlrev_b32 v{gA}, 11, v{gA}
    v_and_b32 v{gB}, 7, v{gL}
    v_lshl_add_u32 v{gA}, v{gB}, 4, v{gA}
    v_and_b32 v{gB}, 8, v{gL}
    v_lshlrev_b32 v{gB}, 10, v{gB}
    s_lshl_b32 s52, s{sQ}, 7
    s_add_u32 s52, s52, {7*16384}
    v_add3_u32 v{gA}, v{gA}, v{gB}, s52
    s_mov_b32 s44, 0x05040100
    s_mov_b32 s45, 0x07060302
    """)
        def wraw(sx):
            for t in range(4):
                r = vW+16*(sx-1)+4*t
                a(f"global_load_dwordx4 v[{r}:{r+3}], v5, s[26:27] offset:{t*512}")
            if sx: a(f"v_subrev_u32 v5, 0x4000, v5")
        def wperm(sx):
            b = vW+16*(sx-1); o = vW+16*sx
            pairs = [(b+4*t+d_, b+4*t+2+d_) for t in range(4) for d_ in range(2)]
            for i, (p, q_) in enumerate(pairs): a(f"v_mov_b32_dpp v{o+i}, v{q_} row_ror:8 row_mask:0xf bank_mask:0xf")
            for p, q_ in pairs: a(f"v_mov_b32_dpp v{q_}, v{p} row_ror:8 row_mask:0xf bank_mask:0x3")
            for i, (p, q_) in enumerate(pairs): a(f"v_mov_b32_dpp v{p}, v{o+i} quad_perm:[0,1,2,3] row_mask:0xf bank_mask:0xc")
            row = lambda j, d_: b+4*(j&3)+2*(j>>2)+d_
            for jp in range(4):
                for i in range(4):
                    a(f"v_perm_b32 v{o+4*jp+i}, v{row(2*i+1, jp>>1)}, v{row(2*i, jp>>1)}, s{44+(jp&1)}")
        def wbuild(hi, lo, LA):
            for sx in range(hi, max(hi-LA, lo-1), -1): wraw(sx)
            for sx in range(hi, lo-1, -1):
                a(f"s_waitcnt vmcnt({4*min(LA-1, sx-lo)})")
                if sx-LA >= lo: wraw(sx-LA)
                wperm(sx)
        a(f"""
    v_mov_b32 v5, v{gA}
    s_cmp_ge_u32 s2, {NCHUNK}
    s_cbranch_scc1 gm_wgo
gm_wsp:
    v_mov_b32 v{gA}, 0
    ds_read_b32 v{gA}, v{gA} offset:448
    s_waitcnt lgkmcnt(0)
    v_readfirstlane_b32 s52, v{gA}
    s_cmp_ge_u32 s52, 11
    s_cbranch_scc1 gm_wgo
    s_sleep 1
    s_branch gm_wsp
gm_wgo:
    """)
        wbuild(7, 8-nwb, wla)
        if nwb < 8:
            a(f"s_cmp_lt_u32 s2, {NCHUNK}\ns_cbranch_scc1 gm_wskip")
            a(f"s_call_b64 s[{sRet}:{sRet+1}], gm_wrest") if False else None
            wbuild(7-nwb, 0, wla)
            a("gm_wskip:")
        a("s_waitcnt vmcnt(0)")
        g_setup(); g_poll()
        w0 = wa = wb = 32
    else:
        g_poll(); wl(0, w0, False); g_setup()
    a(f"s_waitcnt vmcnt({(1 if ntouch else 0)+(w0 if 'w' not in exp and not own else 0)})")
    a(st(1))
    a("gm_pass:")
    clampn(gN, gT)
    a(f"""
    v_mov_b32 v{gNs}, v{gN}
    v_and_b32 v{gR}, 1, v0
    v_and_b32 v{gD}, 0xffff, v{gT}
    """)
    fill = [f"v_add3_u32 v{gD}, v{gD}, v{gR}, s{sDone}", f"v_mad_u32_u24 v{gD}, v{gD}, {REC}, v{gCb}", f"v_sub_u32 v{gM}, v{gN}, v{gR}", "s_nop 0", "s_nop 0"]
    for i, op in enumerate(SCAN6[1:]):
        a(f"v_add_u32_dpp v{gNs}, v{gNs}, v{gNs} {op} bank_mask:0xf")
        a(fill.pop(0)); a("s_nop 0")
    a(f"""
    v_readlane_b32 s47, v{gNs}, 63
    v_sub_u32 v{gTa}, v{gNs}, v{gM}
    v_lshl_add_u32 v{gTa}, v{gTa}, 2, s42
    """)
    for r in range(LPR*NR//2):
        a(f"v_cmpx_lt_i32 vcc, {2*r}, v{gM}")
        a(f"s_cbranch_execz gm_tb_done")
        a(f"ds_write_b32 v{gTa}, v{gD} offset:{8*r}")
        if r < LPR*NR//2-1: a(f"v_add_u32 v{gD}, {2*REC}, v{gD}")
    a(f"""
gm_tb_done:
    s_mov_b64 exec, -1
    s_mul_i32 s47, s47, 3
    v_mov_b32 v{gP}, 0
    {st(4)}
    s_barrier
    ds_read_b32 v{gM}, v{gT2} offset:{L_TOT}
    ds_read_b32 v{gP}, v{gP} offset:{L_MORE}
    v_mov_b32 v{gA}, v34
    v_mov_b32 v{gB}, v35
    v_mov_b32 v{gD}, v36
    s_waitcnt lgkmcnt(1)
    v_add_u32_dpp v{gM}, v{gM}, v{gM} row_shr:1 row_mask:0xf bank_mask:0xf
    s_nop 1
    v_add_u32_dpp v{gM}, v{gM}, v{gM} row_shr:2 row_mask:0xf bank_mask:0xf
    s_nop 1
    v_add_u32_dpp v{gM}, v{gM}, v{gM} row_shr:4 row_mask:0xf bank_mask:0xf
    s_waitcnt lgkmcnt(0)
    v_readfirstlane_b32 s{sMore}, v{gP}
    v_readlane_b32 s{sTot}, v{gM}, 7
    v_readlane_b32 s46, v{gM}, s43
    s_cmp_gt_u32 s{sTot}, {CAP}
    s_cbranch_scc1 gm_ovf
    s_cmp_eq_u32 s{sQ}, 0
    s_cmov_b32 s46, 0
    s_mul_i32 s46, s46, 48
    s_add_u32 m0, s46, {L_RAW}
    """)
    if fused:
        wl(w0, wa, False)
        if not rb3: a("s_barrier")
        wl(wa, wb, False)
        if not one:
            a(f"s_cmp_lg_u32 s{sWv}, 11\ns_cbranch_scc1 gm_wait2")
            poll(2, 64, gM, gP, NCHUNK-1)
            a(f"v_mov_b32 v{gP}, 1\nds_write_b32 v{gM}, v{gP} offset:{L_GO}")
        a(f"""
gm_go2:
    {"s_memrealtime s[76:77]" if stamps == 5 else ""}
    """)
    a(f"""
gm_raw:
    """)
    tb = (gA, gB, gD)
    for i in range(9): a(f"ds_read_b32 v{gX+i}, v{tb[i%3]} offset:{256*(i//3)}")
    for i in range(9):
        a(f"v_cmpx_gt_i32 vcc, s47, v{gL}")
        a(f"s_cbranch_execz gm_raw_done")
        a(f"s_waitcnt lgkmcnt({8-i})")
        a(f"v_add_u32 v{gX+i}, v{gX+i}, v{30+i%3}")
        a(f"buffer_load_dwordx4 v{gX+i}, {LO}, 0 offen{rld} lds")
        a(f"s_add_u32 m0, m0, 1024")
        a(f"s_sub_i32 s47, s47, 64")
    for r in tb: a(f"v_add_u32 v{r}, 768, v{r}")
    a(f"""
    s_branch gm_raw
gm_raw_done:
    {st(2)}
    s_mov_b64 exec, -1
    """)
    if fused:
        if rb3: a("s_barrier")
        wl(wb, max(wb,wc), False); nyoung = max(wb,wc)-wb; wb = max(wb,wc)
    else:
        wl(w0, wa, False)
        a("s_barrier")
        wl(wa, wb, False); nyoung = wb-w0
    a(f"""
    s_waitcnt vmcnt({nyoung if 'w' not in exp else 0}) lgkmcnt(0)
    {st(3)}
    s_barrier
    s_cmp_lg_u32 s{sMore}, 0
    s_cbranch_scc1 gm_next
    {st(5)}
    {f"s_setprio {gprio}" if gprio else ""}
    """)
    if pfs and KN < XS:
        per = ((XS-KN)*16+127)//128
        per = (per+7)//8*8
        a(f"""
    s_lshr_b32 s52, s2, 3
    s_lshl2_add_u32 s52, s52, s{sQ}
    s_lshl_b32 s52, s52, 3
    s_and_b32 s53, s2, 7
    s_mul_i32 s53, s53, {XS*16}
    s_add_u32 s52, s52, s53
    s_add_u32 s52, s52, {KN*16}
    s_movk_i32 s53, {per//8}
gm_pf:
    s_min_u32 s36, s52, {N*16-8}
    s_lshl_b32 s36, s36, 7
    """)
        for j in range(8):
            for h in range(pfs): a(f"s_load_dword s37, s[50:51], s36 offset:{j*128+h*64}")
        a(f"""
    s_addk_i32 s52, 1024
    s_sub_u32 s53, s53, 1
    s_cmp_lg_u32 s53, 0
    s_cbranch_scc1 gm_pf
    s_waitcnt lgkmcnt(0)
    """)
    wl(wb, 32, True)
    if own and nwb < 8:
        a(f"s_cmp_ge_u32 s2, {NCHUNK}\ns_cbranch_scc1 gm_wdone")
        wbuild(7-nwb, 0, wlb)
        a("gm_wdone:")
    a(f"""
    v_lshrrev_b32 v{vOut}, 4, v{gL}
    v_lshlrev_b32 v{vOut}, 11, v{vOut}
    v_and_b32 v4, 7, v{gL}
    v_lshl_add_u32 v{vOut}, v4, 4, v{vOut}
    v_bfe_u32 v4, v{gL}, 3, 1
    v_lshl_add_u32 v{vOut}, v4, 9, v{vOut}
    v_and_b32 v4, 3, v{gL}
    v_lshrrev_b32 v5, 2, v{gL}
    v_mul_u32_u24 v{vAa}, {SSTR}, v4
    v_lshl_add_u32 v{vAa}, v5, 3, v{vAa}
    v_add_u32 v{vAa}, {RB}, v{vAa}
    s_lshl_b32 s{sOb}, s{sN0}, 11
    s_lshl_b32 s53, s{sQ}, 7
    s_add_u32 s{sOb}, s{sOb}, s53
    s_mov_b32 s{sTodo}, 0x24924924
    s_mov_b32 s{sAb}, 0
    s_waitcnt vmcnt(0)
    {st(6)}
gm_poll:
    v_mov_b32 v{vTt}, 0
    ds_read_b32 v{vTt}, v{vTt} offset:{L_DONE}
    s_waitcnt lgkmcnt(0)
    v_readfirstlane_b32 s52, v{vTt}
    s_and_b32 s52, s52, s{sTodo}
    s_cbranch_scc1 gm_go
    s_sleep {slp}
    s_branch gm_poll
gm_go:
    {st(7) if stamps != 4 else ""}
    """)
    dec = [f"s_ff1_i32_b32 s52, s52", f"s_bitset0_b32 s{sTodo}, s52", f"s_mul_i32 s52, s52, 11", f"s_bfe_u32 s53, s52, 0x10005", f"s_bfe_u32 s52, s52, 0x30006"]
    adr0 = [f"s_mul_i32 s35, s53, {GSTR}", f"s_mul_i32 s31, s52, {4*SSTR}", f"s_add_u32 s31, s31, s35", f"s_sub_u32 s35, s31, s{sAb}", f"v_add_u32 v{vAa}, s35, v{vAa}"]
    out0 = [f"s_mov_b32 s{sAb}, s31", f"s_mul_i32 s{sOn}, s53, 5", f"s_add_u32 s{sOn}, s{sOn}, s52", f"s_lshl_b32 s{sOn}, s{sOn}, 13", f"s_add_u32 s{sOn}, s{sOn}, s{sOb}"]
    def rd(base, s, half):
        bn = vA + 4*((base+s) % 3); s %= KS
        a(f"ds_read_b64_tr_b16 v[{bn+2*half}:{bn+2*half+1}], v{vAa} offset:{(s>>1)*QSTR+(s&1)*256+128*half}")
    for o in dec + adr0: a(o)
    for s in range(AH): rd(0,s,0); rd(0,s,1)
    for o in out0: a(o)
    a(f"s_mov_b32 s{sO}, s{sOn}")
    a(f"s_mov_b32 s{sOp}, 0x7ffffff0")
    cvlo = [f"v_cvt_pk_bf16_f32 v{vO+2*r}, v{vC+r}, v{vC+4+r}" for r in range(4)]
    cvhi = [f"v_cvt_pk_bf16_f32 v{vO+2*r+1}, v{vC+8+r}, v{vC+12+r}" for r in (1,0,3,2)]
    def fin():
        ops = []
        for h in range(2):
            O = vO + 4*h
            ops += [f"v_mov_b32_dpp v{vTt}, v{O+2} row_ror:8 row_mask:0xf bank_mask:0xf",
                    f"v_mov_b32_dpp v{vTt+1}, v{O+3} row_ror:8 row_mask:0xf bank_mask:0xf",
                    f"v_mov_b32_dpp v{O+2}, v{O} row_ror:8 row_mask:0xf bank_mask:0x3",
                    f"v_mov_b32_dpp v{O+3}, v{O+1} row_ror:8 row_mask:0xf bank_mask:0x3",
                    f"v_mov_b32_dpp v{O}, v{vTt} quad_perm:[0,1,2,3] row_mask:0xf bank_mask:0xc",
                    f"v_mov_b32_dpp v{O+1}, v{vTt+1} quad_perm:[0,1,2,3] row_mask:0xf bank_mask:0xc",
                    f"buffer_store_dwordx4 v[{O}:{O+3}], v{vOut}, s[{sOUT}:{sOUT+3}], s{sOp} offen offset:{h*1024}{ost}"]
        if 's' in exp: ops = [o if not o.startswith('buffer_store') else 's_nop 0' for o in ops]
        return ops
    a("gm_loop:")
    for base in (0, 2, 1):
        ops = fin()
        G = {(s_, j): [] for s_ in range(KS) for j in range(4)}
        for s_ in range(KS):
            G[(s_,0)].append(("rd", s_+AH, 0)); G[(s_,1)].append(("rd", s_+AH, 1))
        G[(0,0)] = [cvhi[0], cvhi[1]] + G[(0,0)]; G[(0,1)] = [cvhi[2], cvhi[3]] + G[(0,1)]
        h0, h1 = ops[:7], ops[7:]
        G[(0,2)] += h0[0:2]; G[(0,3)] += h0[2:4]; G[(1,0)] += h0[4:5]; G[(1,1)] += h0[5:6]; G[(1,2)] += h0[6:7] + h1[0:1]
        G[(1,3)] += h1[1:3]; G[(2,0)] += h1[3:4]; G[(2,1)] += h1[4:5]; G[(2,2)] += h1[5:7]
        G[(3,2)] += [f"v_mov_b32 v{vTt}, 0"]; G[(3,3)] += [f"ds_read_b32 v{vTt}, v{vTt} offset:{L_DONE}"]
        G[(4,2)] += ["s_waitcnt lgkmcnt(2)", f"v_readfirstlane_b32 s52, v{vTt}", f"s_and_b32 s52, s52, s{sTodo}"]
        G[(4,3)] += [f"s_cselect_b32 s{sNx}, 1, 0", dec[0]]
        G[(5,0)] += dec[1:3]; G[(5,1)] += dec[3:5]; G[(5,2)] += adr0[:3]; G[(5,3)] += adr0[3:]
        G[(6,2)] += out0[:3]; G[(6,3)] += out0[3:]
        G[(7,1)] += [f"s_mov_b32 s{sOp}, s{sO}", f"s_mov_b32 s{sO}, s{sOn}"]
        G[(7,2)] += [f"s_cmp_eq_u32 s{sNx}, 0", "s_nop 1"]
        if gt == 1:
            G[(7,3)] += ["s_setprio 3"]; G[(2,2)] += ["s_setprio 0"]
        if gt == 2:
            for key in list(G):
                if any(isinstance(o, str) and o.startswith("v_") for o in G[key]):
                    G[key] = ["s_setprio 3"] + G[key] + ["s_setprio 0"]
            G[(7,3)] += ["s_setprio 3"]
        for s in range(KS):
            a(f"s_waitcnt lgkmcnt({3 if s == 4 else 2})")
            b = vA + 4*((base+s) % 3)
            for j in range(4):
                w = vW + 4*(s*4+j)
                c = "0" if s == 0 else f"v[{vC+4*j}:{vC+4*j+3}]"
                if 'm' not in exp: a(f"v_mfma_f32_16x16x32_bf16 v[{vC+4*j}:{vC+4*j+3}], v[{b}:{b+3}], v[{w}:{w+3}], {c}")
                for o in G[(s,j)]:
                    if isinstance(o, tuple): rd(base, o[1], o[2])
                    else: a(o)
        if stamps == 4:
            for i in range(9): a(f"s_mov_b32 s{sT+2*i}, s{sT+2*i+2}")
            a(f"s_memrealtime s[{sT+18}:{sT+19}]")
        for o in cvlo: a(o)
        a("s_nop 0" if gt != 2 else "s_setprio 0")
        a("s_cbranch_scc1 gm_drain" if base != 1 else "s_cbranch_scc0 gm_loop")
    a("gm_drain:")
    a("s_nop 2")
    if gt: a("s_setprio 3")
    for o in cvhi: a(o)
    for o in fin(): a(o)
    a(f"""
    {"s_setprio 0" if gt else ""}
    s_cmp_lg_u32 s{sTodo}, 0
    s_cbranch_scc1 gm_poll
    {"s_branch mn_fin" if stamps else ""}
    s_endpgm
gm_wait2:
    v_mov_b32 v{gM}, 0
    ds_read_b32 v{gP}, v{gM} offset:{L_GO}
    s_waitcnt lgkmcnt(0)
    v_readfirstlane_b32 s62, v{gP}
    s_cmp_lg_u32 s62, 0
    s_cbranch_scc1 {"gm_go2" if fused else "gm_wait2"}
    s_sleep 1
    s_branch gm_wait2
gm_ovf:
    s_movk_i32 s{sLim}, {LPR}
    s_barrier
    s_barrier
    s_branch gm_pass
gm_next:
    s_add_u32 s{sDone}, s{sDone}, s{sLim}
    s_barrier
    s_branch gm_pass
    """)
    def gen(r):
        a(f"""
    v_add_u32 v{u0}, {LPR*r}, v{vJ}
    v_add_u32 v{u0}, s{sDone}, v{u0}
    v_lshrrev_b32 v{u1}, 16, v{vTt_}
    v_mov_b32 v{vWd+r}, 0
    v_cmpx_lt_u32 vcc, v{u0}, v{u1}
    s_cbranch_execz mn_g{gen.n}
    v_cmp_gt_u32 vcc, 15, v{u0}
    v_and_b32 v{u1}, 0xffff, v{vTt_}
    v_add_lshl_u32 v{u1}, v{u0}, v{u1}, 2
    v_add_u32 v{u1}, v{u1}, v{vCb}
    v_lshl_add_u32 v{u2}, v0, 4, s22
    v_and_or_b32 v{u2}, v{u0}, 12, v{u2}
    v_cndmask_b32 v{u1}, v{u1}, v{u2}, vcc
    buffer_load_dword v{vWd+r}, v{u1}, {LO}, 0 offen{rld}
    s_waitcnt vmcnt(0)
mn_g{gen.n}:
    s_mov_b64 exec, -1
    """)
        gen.n += 1
    gen.n = 0
    a("mn_w5:")
    if fused and not one: poll(3, 64, u0, u1, NCHUNK-1)
    gen(3); gen(4)
    a(f"""
mn_more:
    s_add_u32 s52, s{sDone}, s{sLim}
    v_lshrrev_b32 v{u1}, 16, v{vTt_}
    v_cmp_lt_u32 vcc, s52, v{u1}
    s_cbranch_vccz mn_count
    v_mov_b32 v{u0}, {L_MORE}
    ds_write_b32 v{u0}, v{vOne}
    s_branch mn_count
mn_ovf:
    s_movk_i32 s{sLim}, {LPR}
    s_waitcnt vmcnt(0) lgkmcnt(0)
    s_barrier
    s_branch mn_again
mn_next:
    s_set_gpr_idx_off
    s_waitcnt vmcnt(0) lgkmcnt(0)
    s_nop 7
    s_add_u32 s{sDone}, s{sDone}, s{sLim}
    v_mbcnt_lo_u32_b32 v0, -1, 0
    v_mbcnt_hi_u32_b32 v0, -1, v0
    v_lshl_add_u32 v0, s{sWv}, 6, v0
    {TOFF}
    {CLD}
    {CONST}
    s_waitcnt vmcnt(0)
    {HDR}
mn_again:
    v_mov_b32 v{u0}, 0
    ds_write_b32 v{vL4}, v{u0} offset:{L_CNT}
    ds_write_b32 v{vL4}, v{u0} offset:{L_CNT+256}
    s_waitcnt vmcnt(0) lgkmcnt(0)
    s_barrier
    """)
    gen(0)
    for r in range(1, NR): a(f"v_mov_b32 v{vWd+r}, 0")
    a(f"s_cmp_le_u32 s{sLim}, {LPR}\ns_cbranch_scc1 mn_more")
    for r in range(1, NR): gen(r)
    a("s_branch mn_more")
    if stamps:
        a(f"""
mn_fin:
    s_set_gpr_idx_off
    {f"s_memrealtime s[{sT+16}:{sT+17}]" if stamps != 4 else ""}
    s_waitcnt vmcnt(0)
    {f"s_memrealtime s[{sT+18}:{sT+19}]" if stamps != 4 else "s_memrealtime s[88:89]"}
    s_waitcnt lgkmcnt(0)
    s_lshl_b32 s96, s2, 4
    s_add_u32 s96, s96, s{sWv}
    s_lshl_b32 s96, s96, 6
    s_add_u32 s96, s96, 0xF000000
    s_add_u32 s98, s54, s96
    s_addc_u32 s99, s55, 0
    """)
        a("v_mov_b32 v0, 0")
        if stamps == 3:
            for i in range(6): a(f"v_mov_b32 v1, s{90+i}\nglobal_store_dword v0, v1, s[98:99] offset:{40+4*i}")
        if stamps == 2: a(f"s_mov_b32 s{sT+2}, s{sP}")
        for i in range(10):
            a(f"v_mov_b32 v1, s{sT+2*i}")
            a(f"global_store_dword v0, v1, s[98:99] offset:{4*i}")
        if stamps == 4: a("v_mov_b32 v1, s88\nglobal_store_dword v0, v1, s[98:99] offset:40")
        a("s_endpgm")
    a("mn_last:\ns_endpgm")
    a.end_kernel(name, NV, 100 if stamps else 96)
    a.launch(name, NBLK, 768, 163840)
```

```python
import sys
from common import *
from k_a21 import gen_ka
from k_main21 import gen_main
a = Asm()
opts=dict(x.split('=') for x in sys.argv[2:])
def pol(k, d):
    v = opts.get(k, d)
    return '' if v in ('', '0') else ' ' + v.replace('+', ' ')
I = lambda k, d: int(opts.get(k, d))
gen_ka(a, prefetch=I('pfa',1), ld=pol('kld','0'), rst=pol('rst','sc1'), pfp=pol('pfpa','0'), KN=I('KN',448), R0=I('R0',8500), cst=pol('cst','0'), cpf=I('cpf',1), swap=I('swap',0), dly=I('dly',1), tst=pol('tst','0'), wb=I('kwb',0), fused=I('fused',0), cfirst=I('cfirst',I('fused',0)), stamps=I('stamps',0), sat=I('sat',2), one=I('one',0), mbox=I('mbox',0), nsh=I('nsh',0), own=I('own',0), smb=I('smb',0), pfb=I('pfb',0), spf=I('spf',1), nb0=I('nb0',3), late=I('late',1), hlp=I('hlp',5), XR=I('XR',0), XP=I('XP',I('KN',448)))
gen_main(a, rld=pol('rld','0'), stamps=I('stamps',0), exp=opts.get('exp',''), ost=pol('ost','sc0+sc1'), KN=I('KNM',1250), wld=pol('wld','0'), xld=pol('xld','0'),
  prio=I('prio',2), slp=I('slp',2), R=I('R',6), wd=I('wd',1), steer=I('steer',1), soff=I('soff',0), gprio=I('gprio',0), ntouch=I('ntouch',1), pfs=I('pfs',2), wa=I('wa',0), wb=I('wb',0), w0=I('w0',0), b2=I('b2',1), xe=I('xe',4), ez=I('ez',0), b3=I('b3',99), gfirst=I('gf',0), gt=I('gt',2), fl=I('fl',0), wn=I('wn',0), fused=I('fused',0), psl=I('psl',4), wc=I('wc',0), rb3=I('rb3',1), ppol=pol('ppol','sc1'), one=I('one',0), mbox=I('mbox',0), nsh=I('nsh',0), own=I('own',0), smb=I('smb',0), nwb=I('nwb',4), wla=I('wla',4), wlb=I('wlb',1))
open(sys.argv[1],'w').write(a.text())
```

```python
from layout13 import *
KNAME='standalone__tensor_product_equiv_mace__graph_kernel'

def gen_ka(a, ld='', rst='', pfp='', prefetch=True, KN=XS, R0=8500, cst='', cpf=1, swap=0, XR=XS, XP=XS, dly=0, spf=1, nb0=6, late=0, hlp=0, cearly=1, tst='', wb=0, fused=0, cfirst=1, stamps=0, sat=0, split=0, one=0, mbox=0, nsh=0, own=0, smb=0, pfb=0, two=0, wt=1, L_WR=0, xg=0):
    name="ka_kernel"
    H=1024; L_ARR=448
    L_TAB=H+1024; L_CELL=L_TAB+10*1024; L_PERM=L_CELL+16384; L_EA=L_PERM+5120; L_SH=L_EA+40960; L_END=L_SH+10240
    def unit(k, vi, vs, va):
        return f"""v_lshl_add_u32 v{va}, v0, 1, {k}
    v_mul_u32_u24 v{vi}, 13108, v{va}
    v_lshrrev_b32 v{vi}, 16, v{vi}
    v_mad_i32_i24 v{va}, v{vi}, -5, v{va}
    v_lshlrev_b32 v{vi}, 2, v{vi}
    v_cmp_eq_u32 vcc, 4, v{va}
    v_lshlrev_b32 v{va}, 3, v{va}
    v_add_u32 v{va}, {L_EA}, v{va}
    v_cndmask_b32 v{vs}, 5, 3, vcc
    v_cndmask_b32 v{va}, v{va}, v19, vcc
"""
    assert all((u*13108)>>16 == u//5 for u in range(1280))
    COPYC = f"""v_mov_b32 v19, {L_SH}
    {unit(0,16,17,18)}
    {unit(1,12,13,14)}
    s_mul_i32 s31, s2, {CH_STRIDE}"""
    assert cearly
    WT = """s_cmp_lg_u32 s18, 9
    s_cbranch_scc1 ka_nowt
    s_bfe_u32 s35, s2, 0x40003
    s_lshl_b32 s35, s35, 13
    v_lshl_add_u32 v46, v1, 7, s35
    global_load_dword v46, v46, s[32:33]
ka_nowt:""" if (wt and own) else ""
    MB0 = ""
    BC = f"""ka_bcast:
    s_mov_b64 exec, -1
    v_lshlrev_b32 v2, 7, v1
    v_add_u32 v2, {WS_MB}, v2
    v_mov_b32 v3, 1
    global_atomic_add v2, v3, s[14:15] sc1
    {"".join(f"v_add_u32 v2, 8192, v2{chr(10)}global_atomic_add v2, v3, s[14:15] sc1{chr(10)}" for _ in range(mbox-1))}
    {'' if nsh else 's_atomic_add s33, s[12:13], 128'}
    s_branch mn_start""" if mbox else ""
    NMB = smb if smb else 64*mbox
    if smb:
        BC = f"ka_bcast:\ns_mov_b64 exec, -1\ns_add_u32 s34, s14, {WS_MB}\ns_addc_u32 s35, s15, 0\n" + "".join(f"s_atomic_add s36, s[34:35], {128*i}\n" for i in range(smb)) + "s_branch mn_start"
    WB = f"""s_cmp_lg_u32 s18, {wb-1}
    s_cbranch_scc1 ka_nowb
    s_cmp_ge_u32 s2, 136
    s_cbranch_scc1 ka_nowb
    s_waitcnt vmcnt(0)
    buffer_wbl2 sc1
ka_nowb:""" if wb else ""
    NL=KN*16
    HL=(NL+16*64-1)//(16*64)*64
    assert HL <= 1280
    if fused: name=KNAME
    END = 's_branch mn_start' if fused else 's_endpgm'
    XE = 'mn_start' if fused else 'ka_end'
    pst = ' sc1' if fused else ''
    if fused: cst = ' sc1'; rst = ' sc1'
    a.begin_kernel(name)
    HLP = f"""s_sub_u32 s34, s2, 127
    s_mul_i32 s34, s34, {CHUNK*32}
    s_sub_u32 s34, s34, {hlp*8192}
    v_lshl_add_u32 v44, v0, 7, s34
    v_min_u32 v44, {E*32-4}, v44""" if hlp else ""
    HLP2 = f"""s_cmp_ge_u32 s18, {hlp}
    s_cbranch_scc1 ka_nohlp
    global_load_dword v45, v44, s[10:11]
ka_nohlp:""" if hlp else ""
    SPF = """s_cmp_lt_u32 s2, 128
    s_cbranch_scc1 ka_nospf
    s_getpc_b64 s[36:37]
ka_pc0:
    v_lshlrev_b32 v41, 7, v0
    v_min_u32 v41, mn_last-ka_pc0, v41
    global_load_dword v41, v41, s[36:37]
ka_nospf:""" if spf else ""
    if spf: cpf = 0
    CPF = """s_cmp_lg_u32 s18, 0
    s_cbranch_scc1 ka_nocpf
    s_cmp_ge_u32 s2, 144
    s_cbranch_scc1 ka_nocpf
    s_getpc_b64 s[36:37]
ka_pc:
    s_add_u32 s36, s36, main_kernel-ka_pc
    s_addc_u32 s37, s37, 0
    s_bfe_u32 s38, s2, 0x10003
    s_lshl_b32 s38, s38, 13
    v_lshl_add_u32 v41, v1, 7, s38
    v_min_u32 v41, mn_last-main_kernel, v41
    global_load_dword v41, v41, s[36:37]
ka_nocpf:""" if cpf else ""
    if fused and stamps: a("s_memrealtime s[64:65]")
    S5 = lambda i: f"s_memrealtime s[{64+2*i}:{65+2*i}]\ns_waitcnt lgkmcnt(0)" if stamps == 5 else ""
    a(f"""
    s_cmp_ge_u32 s2, 256
    s_cbranch_scc1 ka_end
    {SPF}
    s_load_dwordx8 s[4:11], s[0:1], 8
    s_load_dwordx2 s[16:17], s[0:1], 0
    s_load_dwordx4 s[12:15], s[0:1], 72
    s_load_dwordx2 s[32:33], s[0:1], 56
    v_lshrrev_b32 v9, 6, v0
    v_and_b32 v1, 63, v0
    v_readfirstlane_b32 s18, v9
    {MB0}
    s_and_b32 s3, s2, 127
    s_cmp_ge_u32 s3, {NCHUNK}
    s_cbranch_scc1 ka_idle
    s_cmp_ge_u32 s2, 128
    s_cbranch_scc1 ka_pf
    s_mul_i32 s3, s2, {CHUNK}
    v_add_u32 v4, s3, v0
    v_lshlrev_b32 v5, 2, v4
    s_mov_b32 s22, {WS_LOW}
    s_mov_b32 s23, 0x20000
    s_and_b32 s28, s2, 7
    s_lshl_b32 s28, s28, 4
    s_lshr_b32 s29, s2, 3
    s_add_u32 s28, s28, s29
    s_cmp_ge_u32 s18, 10
    s_waitcnt lgkmcnt(0)
    s_mov_b32 s20, s14
    s_cbranch_scc1 ka_dma
    global_load_dword v10, v5, s[6:7]{ld}
    global_load_dword v60, v5, s[6:7] offset:{640*4}{ld}
    global_load_dword v11, v5, s[4:5]{ld}
    global_load_dword v61, v5, s[4:5] offset:{640*4}{ld}
    v_lshlrev_b32 v2, 2, v0
    v_and_b32 v2, 0x3fc, v2
    v_lshlrev_b32 v5, 4, v0
    v_mov_b32 v44, 0
    v_mov_b32 v45, 0
    v_mov_b32 v46, 0
    v_mov_b32 v47, 0
    ds_write_b32 v2, v44 offset:{H}
    ds_write_b128 v5, v[44:47] offset:{L_CELL}
    ds_write_b128 v5, v[44:47] offset:{L_CELL+16384-10240}
    s_and_b32 s21, s15, 0xffff
    v_mov_b32 v3, 1
    v_lshlrev_b32 v26, 4, v1
    s_lshl_b32 s19, s18, 10
    v_add_u32 v27, s19, v26
    v_mov_b32 v4, 0x40000
    s_movk_i32 s29, 625
    s_movk_i32 s38, 0x3fff
    s_waitcnt lgkmcnt(0)
    s_barrier
    {COPYC}
    """)
    sets = [dict(d=10,s=11,L=32,T=33,A=35,R=36,U=39,sh=20,B=43,C=40,W=34),
            dict(d=60,s=61,L=62,T=63,A=66,R=67,U=68,sh=72,B=69,C=70,W=71)]
    for i,z in enumerate(sets):
        a(f"""
    s_waitcnt vmcnt({3-i})
    v_mul_u32_u24 v{z['L']}, {MAGICB}, v{z['d']}
    v_lshrrev_b32 v{z['L']}, 23, v{z['L']}
    v_min_u32 v{z['L']}, {NBLK-1}, v{z['L']}
    v_and_b32 v{z['A']}, 7, v{z['L']}
    v_lshrrev_b32 v{z['T']}, 3, v{z['L']}
    v_lshl_add_u32 v{z['A']}, v{z['A']}, 5, v{z['T']}
    v_lshlrev_b32 v{z['A']}, 2, v{z['A']}
    ds_add_rtn_u32 v{z['R']}, v{z['A']}, v3 offset:{H}
    """)
    MB = (27<<20)//R0
    assert XR == 0 and not swap
    pre = []; post = []
    for z in sets:
        w10 = z['sh']+2; w11 = z['sh']+3; t = z['W']
        pre += [f"v_mad_u32_u24 v{z['T']}, v{z['L']}, s29, 15",
                f"v_lshrrev_b32 v{z['T']}, 4, v{z['T']}",
                f"v_sub_u32 v{z['T']}, v{z['d']}, v{z['T']}",
                f"v_subrev_u32 v{z['L']}, 20, v{z['T']}",
                f"v_min_u32 v{z['L']}, v{z['L']}, v{z['T']}",
                f"v_min_u32 v{z['L']}, 19, v{z['L']}",
                f"v_lshlrev_b32 v{z['C']}, 4, v{z['A']}",
                f"v_add_u32 v{z['A']}, s19, v{z['A']}"]
        post += [f"v_mul_u32_u24 v{z['U']}, {MB}, v{z['s']}",
                 f"v_lshrrev_b32 v{z['U']}, 20, v{z['U']}",
                 f"v_lshrrev_b32 v{t}, 2, v{z['L']}",
                 f"v_cmp_gt_u32 vcc, 27, v{z['U']}",
                 f"v_add_u32 v{t}, 27, v{t}",
                 f"v_lshlrev_b32 v{w11}, 14, v{z['L']}",
                 f"v_cndmask_b32 v{z['U']}, v{t}, v{z['U']}, vcc",
                 f"v_cmp_le_u32 vcc, 20, v{z['T']}",
                 f"v_and_or_b32 v{w10}, v{z['s']}, s38, v{w11}",
                 f"v_or_b32 v{z['U']}, 64, v{z['U']}",
                 f"v_add_u32 v{t}, 32, v{z['U']}",
                 f"v_cndmask_b32 v{z['U']}, v{z['U']}, v{t}, vcc",
                 f"v_lshl_or_b32 v{w10}, v{z['U']}, 25, v{w10}",
                 f"v_cmp_lt_u32 vcc, 14, v{z['R']}",
                 f"v_and_b32 v{t}, 3, v{z['R']}",
                 f"v_lshl_add_u32 v{z['C']}, v{t}, 4, v{z['C']}",
                 f"v_and_or_b32 v{z['C']}, v{z['R']}, 12, v{z['C']}",
                 f"v_cndmask_b32 v{z['C']}, v{z['C']}, v4, vcc",
                 f"ds_write_b32 v{z['C']}, v{w10} offset:{L_CELL}"]
    for o in pre: a(o)
    if cearly:
        a("s_waitcnt vmcnt(0) lgkmcnt(0)")
        for o in post: a(o)
        post = []
    a(f"""
    s_waitcnt lgkmcnt(0)
    s_barrier
    ds_read_b128 v[44:47], v26 offset:{H}
    v_add_u32 v9, 640, v0
    v_max_u32 v8, v36, v67
    v_cmp_lt_u32 vcc, 14, v8
    """)
    P = lambda: a(post.pop(0) if post else "s_nop 0")
    if post:
        for _ in range(8): P()
    a(f"""
    s_waitcnt lgkmcnt(0)
    v_add_u32 v53, v44, v45
    v_add_u32 v54, v53, v46
    v_add_u32 v38, v54, v47
    v_mov_b32 v55, v38
    """)
    P()
    for i, op in enumerate(("row_shr:1 row_mask:0xf","row_shr:2 row_mask:0xf","row_shr:4 row_mask:0xf","row_shr:8 row_mask:0xf","row_bcast:15 row_mask:0xa","row_bcast:31 row_mask:0xc")):
        a(f"v_add_u32_dpp v38, v38, v38 {op} bank_mask:0xf")
        if i < 5: P(); P()
    a(f"""
    v_sub_u32 v56, v38, v55
    v_add_u32 v57, v56, v44
    v_add_u32 v58, v56, v53
    v_add_u32 v59, v56, v54
    ds_write_b128 v27, v[56:59] offset:{L_TAB}
    ds_read_b32 v{sets[0]['B']}, v{sets[0]['A']} offset:{L_TAB}
    ds_read_b32 v{sets[1]['B']}, v{sets[1]['A']} offset:{L_TAB}
    """)
    for o in post: a(o)
    a(f"""
    s_waitcnt lgkmcnt(0)
    v_add_lshl_u32 v{sets[0]['B']}, v{sets[0]['B']}, v{sets[0]['R']}, 2
    v_add_lshl_u32 v{sets[1]['B']}, v{sets[1]['B']}, v{sets[1]['R']}, 2
    ds_write_b32 v{sets[0]['B']}, v0 offset:{L_PERM}
    ds_write_b32 v{sets[1]['B']}, v9 offset:{L_PERM}
    s_cbranch_vccnz ka_ov
ka_ov_back:
    s_waitcnt lgkmcnt(0)
ka_copy:
    s_barrier
    {S5(1)}
    """)
    for r in range(5):
        a(f"ds_read_b32 v{20+2*r}, v16 offset:{L_PERM+1024*r}")
        a(f"ds_read_b32 v{21+2*r}, v12 offset:{L_PERM+1024*r}")
    for r in range(5):
        a(f"s_waitcnt lgkmcnt(8)")
        a(f"v_lshl_add_u32 v{20+2*r}, v{20+2*r}, v17, v18")
        a(f"v_lshl_add_u32 v{21+2*r}, v{21+2*r}, v13, v14")
        a(f"ds_read_b64 v[{44+4*r}:{45+4*r}], v{20+2*r}")
        a(f"ds_read_b64 v[{46+4*r}:{47+4*r}], v{21+2*r}")
    for r in range(5):
        a(f"s_waitcnt lgkmcnt({8-2*r})")
        a(f"buffer_store_dwordx4 v[{44+4*r}:{47+4*r}], v5, s[20:23], s31 offen{rst}")
        if r < 4: a("s_addk_i32 s31, 10240")
    def arrive(tag, nloc, loc, cnt, total):
        if not fused: return
        a("s_waitcnt vmcnt(0)"); a(S5(2))
        a("s_mov_b64 exec, 1\nv_mov_b32 v2, 0\nv_mov_b32 v3, 1")
        if nloc > 1:
            a(f"""
    ds_add_rtn_u32 v4, v2, v3 offset:{loc}
    s_waitcnt lgkmcnt(0)
    v_readfirstlane_b32 s33, v4
    s_cmp_lg_u32 s33, {nloc-1}
    s_cbranch_scc1 ka_ar{tag}
    """)
        if total == 0:
            a(f"s_mov_b32 s33, 1\ns_atomic_add s33, s[12:13], {cnt}" if sat == 2 else f"global_atomic_add v2, v3, s[12:13] offset:{cnt} sc1")
        elif nsh:
            prod = list(range(128)) + [253,254,255] if not own else list(range(NCHUNK))
            cnts = [sum(1 for p in prod if p % nsh == k)-1 for k in range(nsh)]
            pk = sum(c << (8*k) for k, c in enumerate(cnts))
            a(f"""
    s_and_b32 s34, s2, {nsh-1}
    s_lshl_b32 s35, s34, {8-(nsh.bit_length()-1)}
    s_add_u32 s35, s35, {cnt}
    s_mov_b32 s33, 1
    s_atomic_add s33, s[12:13], s35 glc
    s_mov_b32 s36, {0x10000 if cnt else 1}
    s_lshl_b32 s34, s34, 3
    s_lshr_b32 s34, {pk}, s34
    s_and_b32 s34, s34, 0xff
    s_waitcnt lgkmcnt(0)
    s_cmp_eq_u32 s33, s34
    s_cbranch_scc1 ka_bcast
    """)
        elif sat:
            a(f"""
    s_mov_b32 s33, 1
    s_atomic_add s33, s[12:13], {cnt} glc
    s_waitcnt lgkmcnt(0)
    s_cmp_lg_u32 s33, {total-1}
    s_cbranch_scc1 ka_ar{tag}
    {"s_branch ka_bcast" if mbox else f"s_atomic_add s33, s[12:13], {cnt+128}"}
    """)
        else:
            a(f"""
    global_atomic_add v4, v2, v3, s[12:13] offset:{cnt} sc0 sc1
    s_waitcnt vmcnt(0)
    v_readfirstlane_b32 s33, v4
    s_cmp_lg_u32 s33, {total-1}
    s_cbranch_scc1 ka_ar{tag}
    global_store_dword v2, v3, s[12:13] offset:{cnt+128} sc1
    """)
        a(f"""
ka_ar{tag}:
    s_mov_b64 exec, -1
    {S5(3)}
    """)
    N1 = NCHUNK+6
    a(f"""
    {END+"2" if fused else END}
ka_ov:
    s_mul_i32 s33, s2, {CHUNK*4}
    s_add_u32 s33, s33, {WS_OV}
    buffer_store_dword v{sets[0]['sh']+2}, v{sets[0]['B']}, s[20:23], s33 offen{pst}
    buffer_store_dword v{sets[1]['sh']+2}, v{sets[1]['B']}, s[20:23], s33 offen{pst}
    s_branch ka_ov_back
ka_dma:
    s_and_b32 s21, s15, 0xffff
    s_cmp_eq_u32 s18, 11
    s_cbranch_scc1 ka_cell
    s_mul_i32 s35, s2, {CHUNK*32}
    v_lshl_add_u32 v7, v1, 4, s35
    s_mul_i32 s35, s2, {CHUNK*8}
    v_lshl_add_u32 v8, v1, 4, s35
    s_mov_b32 m0, {L_SH}
    s_load_dwordx4 s[36:39], s[0:1], 40
    s_barrier
    """)
    def dma(v, sb, n0, n1):
        for i in range(n0, n1):
            a(f"global_load_lds_dwordx4 v{v}, {sb} offset:{(i%4)*1024-2048 if False else (i%2)*1024}{ld}")
            if i % 2 == 1:
                a(f"s_add_u32 m0, m0, 2048")
                a(f"v_add_u32 v{v}, 2048, v{v}")
    dma(8, "s[8:9]", 0, 10)
    a(f"s_mov_b32 m0, {L_EA}\ns_nop 0")
    dma(7, "s[10:11]", 0, 2*nb0)
    a("s_barrier")
    dma(7, "s[10:11]", 2*nb0, 40)
    a(f"""
    s_mov_b32 s35, m0
    s_mov_b32 m0, {L_WR}
    v_lshlrev_b32 v9, 4, v1
    v_add_u32 v10, 4096, v9
    s_waitcnt lgkmcnt(0)
    global_load_lds_dwordx4 v9, s[38:39]
    global_load_lds_dwordx4 v9, s[38:39] offset:1024
    global_load_lds_dwordx4 v9, s[38:39] offset:2048
    global_load_lds_dwordx4 v9, s[38:39] offset:3072
    s_mov_b32 m0, {L_WR+4096}
    s_nop 0
    global_load_lds_dwordx4 v10, s[38:39]
    global_load_lds_dwordx4 v10, s[38:39] offset:1024
    global_load_lds_dwordx4 v10, s[38:39] offset:2048
    global_load_lds_dwordx4 v10, s[38:39] offset:3072
    s_mov_b32 m0, {L_WR+8192}
    s_mov_b64 exec, 0xff
    global_load_lds_dwordx4 v9, s[36:37]
    s_mov_b64 exec, -1
    s_mov_b32 m0, s35
    """)
    a(S5(1))
    a(f"""
    s_waitcnt vmcnt(0)
    s_barrier
    {END}
ka_cell:
    s_lshl_b32 s30, s28, 6
    s_add_u32 s30, s30, {WS_C}
    v_lshlrev_b32 v3, 3, v1
    v_mov_b32 v4, 0
    v_mov_b32 v5, 0
    ds_write_b64 v3, v[4:5]
    v_lshlrev_b32 v26, 4, v1
    v_lshrrev_b32 v6, 2, v1
    v_lshlrev_b32 v6, 13, v6
    v_and_or_b32 v6, v26, 0x30, v6
    v_lshlrev_b32 v27, 8, v1
    s_waitcnt lgkmcnt(0)
    s_barrier
    s_and_b32 s58, s2, {smb-1}
    s_lshl_b32 s58, s58, 7
    s_add_u32 s58, s58, {WS_MB}
    v_mov_b32 v86, s58
    global_load_dword v87, v86, s[14:15] sc1
    s_barrier
    ds_read_b128 v[12:15], v26 offset:{H}
    s_waitcnt lgkmcnt(0)
    v_add_u32 v17, v12, v13
    v_add_u32 v18, v17, v14
    v_add_u32 v16, v18, v15
    v_mov_b32 v19, v16
    v_lshlrev_b32 v20, 16, v12
    """)
    fl = [f"v_lshl_add_u32 v21, v13, 16, v12", f"v_lshl_add_u32 v22, v14, 16, v17", f"v_lshl_add_u32 v23, v15, 16, v18"]
    for i, op in enumerate(("row_shr:1 row_mask:0xf","row_shr:2 row_mask:0xf","row_shr:4 row_mask:0xf","row_shr:8 row_mask:0xf","row_bcast:15 row_mask:0xa","row_bcast:31 row_mask:0xc")):
        a(f"v_add_u32_dpp v16, v16, v16 {op} bank_mask:0xf")
        if i < 5:
            if fl: a(fl.pop(0)); a("s_nop 0")
            else: a("s_nop 1")
    a("v_sub_u32 v16, v16, v19")
    a("""
    v_mov_b32 v86, 0
    s_waitcnt vmcnt(0)
    ds_write_b32 v86, v87 offset:456
    """)
    for k in range(4):
        a(f"v_add_u32 v{20+k}, v{20+k}, v16")
        a(f"ds_write_b32 v27, v{20+k} offset:{L_CELL+64*k+60}")
    reg = lambda r: 28+4*(r % 14)
    for r in range(8): a(f"ds_read_b128 v[{reg(r)}:{reg(r)+3}], v26 offset:{L_CELL+1024*r}")
    for r in range(16):
        a(f"s_waitcnt lgkmcnt({min(7, 15-r)})")
        a(f"buffer_store_dwordx4 v[{reg(r)}:{reg(r)+3}], v6, s[20:23], s30 offen{cst}")
        if r+8 < 16: a(f"ds_read_b128 v[{reg(r+8)}:{reg(r+8)+3}], v26 offset:{L_CELL+1024*(r+8)}")
        if r < 15: a(f"s_add_u32 s30, s30, {16*8192}")
    a(S5(1))
    a("s_barrier")
    arrive("c", 1, 0, 0, N1) if (two or not one) else arrive("c", 11, L_ARR, 0, N1)
    a(f"""
    {END}
ka_pf:
    {HLP}
    s_waitcnt lgkmcnt(0)
    {HLP2}
    s_and_b32 s34, s2, 7
    s_mul_i32 s34, s34, {XP*2048}
    s_add_u32 s24, s16, s34
    s_addc_u32 s25, s17, 0
    s_and_b32 s25, s25, 0xffff
    s_mov_b32 s26, {KN*2048}
    s_mov_b32 s27, 0x20000
    s_bfe_u32 s30, s2, 0x40003
    v_lshlrev_b32 v40, 7, v0
    s_mul_i32 s30, s30, {HL*128}
    {CPF}
    {WT}
    """)
    a("ka_pf1:")
    if xg: a('s_waitcnt vmcnt(0)' if xg == 1 else '')
    if prefetch and not xg:
        n1 = min(10, HL//64); n2 = max(0, HL//64-10)
        a(f"""
    s_cmp_ge_u32 s18, {n1}
    s_cbranch_scc1 {'ka_pfe' if pfb else XE}
    {"s_waitcnt vmcnt(0)" if dly == 1 else (f"s_sleep {dly}" if dly else "")}
    buffer_load_dword v42, v40, s[24:27], s30 offen{pfp}
    {WB}
    s_cmp_ge_u32 s18, {n2}
    s_cbranch_scc1 {'ka_pfe' if pfb else XE}
    s_add_u32 s30, s30, {640*128}
    buffer_load_dword v43, v40, s[24:27], s30 offen{pfp}
    """)
    a(f"""
    s_branch ka_pfe
ka_idle:
    s_waitcnt lgkmcnt(0)
ka_pfe:
    s_cmp_lt_u32 s18, 10
    s_cbranch_scc1 ka_pfb
    s_cmp_eq_u32 s18, 11
    s_cbranch_scc1 ka_pfz
    s_load_dwordx4 s[36:39], s[0:1], 40
    s_mov_b32 m0, {L_WR}
    v_lshlrev_b32 v9, 4, v1
    v_add_u32 v10, 4096, v9
    s_waitcnt lgkmcnt(0)
    global_load_lds_dwordx4 v9, s[38:39]
    global_load_lds_dwordx4 v9, s[38:39] offset:1024
    global_load_lds_dwordx4 v9, s[38:39] offset:2048
    global_load_lds_dwordx4 v9, s[38:39] offset:3072
    s_mov_b32 m0, {L_WR+4096}
    s_nop 0
    global_load_lds_dwordx4 v10, s[38:39]
    global_load_lds_dwordx4 v10, s[38:39] offset:1024
    global_load_lds_dwordx4 v10, s[38:39] offset:2048
    global_load_lds_dwordx4 v10, s[38:39] offset:3072
    s_mov_b32 m0, {L_WR+8192}
    s_mov_b64 exec, 0xff
    global_load_lds_dwordx4 v9, s[36:37]
    s_mov_b64 exec, -1
    s_waitcnt vmcnt(0)
    s_branch ka_pfb
ka_pfz:
    s_and_b32 s58, s2, {smb-1}
    s_lshl_b32 s58, s58, 7
    s_add_u32 s58, s58, {WS_MB}
    v_mov_b32 v86, s58
    global_load_dword v87, v86, s[14:15] sc1
    v_lshlrev_b32 v3, 3, v1
    v_mov_b32 v4, 0
    v_mov_b32 v5, 0
    ds_write_b64 v3, v[4:5]
    v_mov_b32 v86, 0
    s_waitcnt vmcnt(0)
    ds_write_b32 v86, v87 offset:456
    s_waitcnt lgkmcnt(0)
ka_pfb:
    s_barrier
    """)
    a(f"""
    {END}
    """)
    real = a
    if own:
        class _N:
            def __call__(self, x): pass
        a = _N()
    a(f"""
ka_extra:
    s_sub_u32 s31, s3, {NCHUNK}
    s_lshr_b32 s34, s2, 7
    s_lshl1_add_u32 s31, s31, s34
    s_mul_i32 s34, s18, 6
    s_add_u32 s31, s31, s34
    s_cmp_ge_u32 s31, 64
    s_cbranch_scc1 ka_wr
    s_and_b32 s35, s31, 7
    s_lshr_b32 s36, s31, 3
    s_lshl_b32 s37, s35, 14
    s_lshr_b32 s38, s36, 1
    s_lshl_b32 s38, s38, 7
    s_add_u32 s37, s37, s38
    s_and_b32 s38, s36, 1
    s_lshl2_add_u32 s37, s38, s37
    v_lshrrev_b32 v44, 4, v1
    v_lshlrev_b32 v44, 11, v44
    v_and_b32 v45, 7, v1
    v_lshl_add_u32 v44, v45, 4, v44
    v_and_b32 v45, 8, v1
    v_add3_u32 v44, v44, v45, s37
    v_add_u32 v45, 0x2000, v44
    s_waitcnt lgkmcnt(0)
    """)
    for j in range(8):
        a(f"global_load_dword v{48+j}, v{44+(j>>2)}, s[32:33] offset:{(j&3)*512}")
    a(f"""
    s_lshr_b32 s36, s36, 1
    s_lshl3_add_u32 s36, s36, s35
    s_lshl1_add_u32 s36, s36, s38
    s_lshl_b32 s36, s36, 11
    s_add_u32 s36, s36, {WS_WT}
    v_lshl_add_u32 v46, v1, 4, s36
    s_mov_b32 s38, 0x05040100
    s_mov_b32 s39, 0x07060302
    s_waitcnt vmcnt(0)
    """)
    for i in range(4):
        a(f"v_perm_b32 v{56+i}, v{49+2*i}, v{48+2*i}, s38")
        a(f"v_perm_b32 v{60+i}, v{49+2*i}, v{48+2*i}, s39")
    a(f"""
    global_store_dwordx4 v46, v[56:59], s[14:15]{pst}
    global_store_dwordx4 v46, v[60:63], s[14:15] offset:1024{pst}
    """)
    a(f"""
    {"s_branch ka_xend" if fused else "s_endpgm"}
ka_wr:
    s_sub_u32 s31, s31, 64
    s_cmp_ge_u32 s31, 5
    s_cbranch_scc1 {"ka_xend" if fused else XE}
    s_load_dwordx4 s[36:39], s[0:1], 40
    s_lshl_b32 s34, s31, 11
    s_add_u32 s34, s34, {WS_WRF}
    v_lshl_add_u32 v46, v1, 4, s34
    s_cmp_eq_u32 s31, 4
    s_cbranch_scc1 ka_cg
    v_lshrrev_b32 v44, 5, v1
    v_lshlrev_b32 v44, 12, v44
    v_and_b32 v45, 31, v1
    v_lshl_add_u32 v44, v45, 1, v44
    v_lshl_add_u32 v44, s31, 7, v44
    s_waitcnt lgkmcnt(0)
    """)
    for j in range(16):
        a(f"global_load_ushort v{48+j}, v44, s[38:39] offset:{(j&7)*512+(j>>3)*64}")
    a(f"""
    s_branch ka_pk
ka_cg:
    v_and_b32 v44, 3, v1
    v_lshlrev_b32 v44, 1, v44
    s_waitcnt lgkmcnt(0)
    """)
    for j in range(16):
        a(f"global_load_ushort v{48+j}, v44, s[36:37] offset:{j*8}")
    a("ka_pk:")
    a("s_waitcnt vmcnt(0)")
    for i in range(8):
        a(f"v_lshl_or_b32 v{64+i}, v{49+2*i}, 16, v{48+2*i}")
    a(f"""
    global_store_dwordx4 v46, v[64:67], s[14:15]{pst}
    global_store_dwordx4 v46, v[68:71], s[14:15] offset:1024{pst}
    """)
    if fused: a("ka_xend:\ns_waitcnt vmcnt(0) lgkmcnt(0)\ns_barrier\ns_cmp_lg_u32 s18, 11\ns_cbranch_scc1 mn_start")
    arrive("x", 1, 0, 0, N1)
    a(f"""
    {END}
    """)
    a = real
    a(f"""
{BC}
ka_end:
    s_endpgm
    """)
    if not fused:
        a.end_kernel(name, 88, 40)
        a.launch(name, 256, 768, L_END)
```

```python
from layout13 import *
KNAME='standalone__tensor_product_equiv_mace__graph_kernel'

L_CNT=0; L_MORE=272; L_DONE=276; L_DIFF=288; L_ZERO=320; L_TOT=384; L_GO=304; L_GO1=308; L_ARR=448; L_LIST=512
SSTR=576
NR=5; LPR=4

vTR=1; vE=2; vEAa=3; vX=4; vSh=8; vAop=12; vSHa=18; vSl=19; vB=20; vD=28; vRW=44; vEA1=60; vEA2=64
vW1=68; vW2=72; vCG=76; vSa=84; vSd=85; vKc=86; vAW=87; vAcc=88
NV=168
sX=4; sLOW=8; sOUT=12
sWv=16; sQ=17; sG=18; sLeft=19; sLim=20; sMore=21; sTot=23; sDone=24; sTo=25; sA=28; sStart=32; sEnd=33; sRem=34; sOR=35; sM=40; sRet=48; sK=58; sP=57; sC=84
sT=64

def gen_main(a, rld='', stamps=0, exp='', ost=' sc0 sc1', KN=XS, wld='', xld='', prio=3, slp=2, R=6, wd=1, steer=1, soff=2, gprio=0,
             ntouch=0, pfs=2, wa=8, wb=16, w0=0, b2=1, xe=2, ez=0, b3=99, gfirst=0, gt=0, fl=0, wn=0, fused=0, psl=4, wc=0, rb3=0, ppol=' sc1', one=0, mbox=0, nsh=0, own=0, smb=0, nwb=4, wla=4, wlb=2, two=0, ep=0, psl2=2, xg=0, KX=448):
    name="main_kernel"
    PAD=2*R+8
    QSTR=16*SSTR+R*1024; GSTR=4*QSTR; RB=163840-2*GSTR
    CAP=min(900,(RB-L_LIST-8*PAD-48)//52)
    L_RAW=L_ZERO+((L_LIST+4*(CAP+2*PAD)-L_ZERO+47)//48)*48
    RI0=(L_RAW-L_ZERO)//48
    assert RI0+CAP < 1024
    assert L_RAW+48*CAP <= RB and RB % 256 == 0 and CAP >= 512 and 24 % R == 0
    if fused: name=KNAME; ntouch=ntouch*one*(1-two)
    else: a.begin_kernel(name)
    def st(i):
        if stamps == 5: return ""
        if stamps == 2 and i in (5,6): return f"s_memrealtime s[{sT+2*i}:{sT+2*i+1}]\ns_memtime s[{sT+2*(i-3)}:{sT+2*(i-3)+1}]"
        return f"s_memrealtime s[{sT+2*i}:{sT+2*i+1}]" if (stamps and (stamps == 1 or i in (0,5,6,7))) else ""
    LO = f"s[{sLOW}:{sLOW+3}]"
    vWd=20; vK=25; vRk=30; vJ=35; vG=36; vRi=41; vN=42; vNs=43; vT2=44; vCb=46; vL4=47; vOne=48; vPadv=49; vDum=50; vLane=51
    vC0=52; vC1=53; vC2=54; u0=55; u1=56; u2=57; vTt_=58; vB2=59
    SCAN6 = ("row_shr:1 row_mask:0xf","row_shr:2 row_mask:0xf","row_shr:4 row_mask:0xf","row_shr:8 row_mask:0xf","row_bcast:15 row_mask:0xa","row_bcast:31 row_mask:0xc")
    TOFF = f"""
    v_lshrrev_b32 v{u1}, 6, v0
    v_lshlrev_b32 v{u0}, 1, v0
    v_and_b32 v{u0}, 0x78, v{u0}
    v_or_b32 v{u0}, v{u0}, v{u1}
    v_cmp_gt_u32 vcc, {NCHUNK}, v{u0}
    v_mul_u32_u24 v{vCb}, {CHUNK*4}, v{u0}
    v_add_u32 v{vCb}, {WS_OV}, v{vCb}
    v_bfrev_b32 v{u1}, 2
    v_lshlrev_b32 v{vT2}, 4, v0
    v_cndmask_b32 v{vT2}, v{u1}, v{vT2}, vcc
    v_and_b32 v{vLane}, 63, v0
"""
    CLD = f"buffer_load_dwordx4 v[{vWd}:{vWd+3}], v{vT2}, {LO}, s22 offen{rld}"
    HDR = f"v_mov_b32_dpp v{vTt_}, v{vWd+3} quad_perm:[3,3,3,3] row_mask:0xf bank_mask:0xf"
    def poll(tag, off, vz, vr, tgt=0):
        a(f"""
    v_mov_b32 v{vz}, 0
    s_mov_b32 s63, 0x100000
mn_poll{tag}:
    global_load_dword v{vr}, v{vz}, s[60:61] offset:{off}{ppol}
    s_sub_u32 s63, s63, 1
    s_cbranch_scc1 mn_poll{tag}x
    s_waitcnt vmcnt(0)
    v_readfirstlane_b32 s62, v{vr}
    s_cmp_gt_u32 s62, {tgt}
    s_cbranch_scc1 mn_poll{tag}x
    s_sleep {psl}
    s_branch mn_poll{tag}
mn_poll{tag}x:
    """)
    def mpoll(stg=1, va=11, vb=9, vr=10, direct=False, sfx=''):
        if nsh:
            tg = f"{stg}{'d' if direct else ''}{sfx}"
            if not direct: a(f"v_mov_b32 v{vr}, 0\nds_read_b32 v{vr}, v{vr} offset:456\ns_waitcnt lgkmcnt(0)\nv_readfirstlane_b32 s59, v{vr}")
            a(f"""
    s_and_b32 s62, s2, {(smb if smb else 64*mbox)-1}
    s_lshl_b32 s62, s62, 7
    s_add_u32 s62, s62, {WS_MB}
    v_mov_b32 v{va}, s62
    v_lshlrev_b32 v{vb}, 6, v0
    v_and_b32 v{vb}, 0xc0, v{vb}
    s_mov_b32 s63, 0x100000
mn_poll{tg}m:
    s_sub_u32 s63, s63, 1
    s_cbranch_scc1 mn_poll{tg}x
    """)
            if not direct: a(f"""
    global_load_dword v{vr}, v{va}, s[54:55] sc1
    s_waitcnt vmcnt(0)
    v_readfirstlane_b32 s62, v{vr}
    s_sub_u32 s62, s62, s59
    s_bfe_u32 s62, s62, {0x100000 | (16*(stg-1))}
    s_cmp_eq_u32 s62, {nsh}
    s_cbranch_scc1 mn_poll{tg}x
    s_sleep {psl}
    s_and_b32 s62, s63, 63
    s_cbranch_scc1 mn_poll{tg}m
    """)
            assert nsh == 2
            a(f"""
    global_load_dword v{vr}, v{vb}, s[60:61] sc1
    s_waitcnt vmcnt(0)
    v_add_u32_dpp v{vr}, v{vr}, v{vr} quad_perm:[2,3,0,1] row_mask:0xf bank_mask:0xf
    {"s_sleep 8" if direct else "s_nop 0"}
    v_readlane_b32 s62, v{vr}, {stg-1}
    s_cmp_lg_u32 s62, {NCHUNK+(0 if own else 6)}
    s_cbranch_scc1 mn_poll{tg}m
mn_poll{tg}x:
    """)
            return
        a(f"""
    s_and_b32 s62, s2, {64*mbox-1}
    s_lshl_b32 s62, s62, 7
    s_add_u32 s62, s62, {WS_MB}
    v_mov_b32 v11, s62
    v_mov_b32 v9, 0
    s_mov_b32 s63, 0x100000
    global_load_dword v8, v11, s[54:55] sc1
    s_waitcnt vmcnt(0)
mn_poll1:
    global_load_dword v10, v9, s[60:61] offset:128 sc1
    s_waitcnt vmcnt(0)
    v_cmp_ne_u32 vcc, 0, v10
    s_cbranch_vccnz mn_poll1x
mn_poll1m:
    global_load_dword v10, v11, s[54:55] sc1
    s_sub_u32 s63, s63, 1
    s_cbranch_scc1 mn_poll1x
    s_waitcnt vmcnt(0)
    v_cmp_ne_u32 vcc, v8, v10
    s_cbranch_vccnz mn_poll1x
    s_sleep {psl}
    s_and_b32 s62, s63, 15
    s_cbranch_scc1 mn_poll1m
    s_branch mn_poll1
mn_poll1x:
    """)
    assert not fl
    L_WR = RB+7*QSTR
    OWNL = f"""
    ds_read_b64_tr_b16 v[{vCG}:{vCG+1}], v{vSh+1}
    ds_read_b64_tr_b16 v[{vCG+2}:{vCG+3}], v{vSh+1} offset:32
    ds_read_b64_tr_b16 v[{vCG+4}:{vCG+5}], v{vSh+1} offset:64
    ds_read_b64_tr_b16 v[{vCG+6}:{vCG+7}], v{vSh+1} offset:96
    ds_read_b64_tr_b16 v[{vW1}:{vW1+1}], v{vSh}
    ds_read_b64_tr_b16 v[{vW1+2}:{vW1+3}], v{vSh} offset:2048
    ds_read_b64_tr_b16 v[{vW2}:{vW2+1}], v{vSh} offset:64
    ds_read_b64_tr_b16 v[{vW2+2}:{vW2+3}], v{vSh} offset:{2048+64}"""
    OWNA = f"""v_bfe_u32 v{vSh}, v0, 2, 2
    v_bfe_u32 v{vSh+2}, v0, 5, 1
    v_lshlrev_b32 v{vSh+1}, 3, v{vSh}
    v_add_u32 v{vSh+1}, {L_WR+8192}, v{vSh+1}
    v_lshl_add_u32 v{vSh}, v{vSh+2}, 3, v{vSh}
    v_lshlrev_b32 v{vSh}, 9, v{vSh}
    v_bfe_u32 v{vSh+2}, v0, 4, 1
    v_lshl_add_u32 v{vSh}, v{vSh+2}, 5, v{vSh}
    v_lshl_add_u32 v{vSh}, v{vJ}, 3, v{vSh}
    v_lshl_add_u32 v{vSh}, s{sQ}, 7, v{vSh}
    v_add_u32 v{vSh}, {L_WR}, v{vSh}"""
    LOADS = f"""{CLD}
    s_barrier
    buffer_load_dwordx4 v[{vW1}:{vW1+3}], v{vC0}, {LO}, s62 offen{wld}
    buffer_load_dwordx4 v[{vW2}:{vW2+3}], v{vC0}, {LO}, s62 offen offset:1024{wld}
    buffer_load_dwordx4 v[{vCG}:{vCG+3}], v{vC0}, {LO}, s63 offen{wld}
    buffer_load_dwordx4 v[{vCG+4}:{vCG+7}], v{vC0}, {LO}, s63 offen offset:1024{wld}"""
    a(f"""
    {"mn_start:" if fused else ""}
    {"s_waitcnt vmcnt(0) lgkmcnt(0)" if fused else ""}
    {"mn_start2:" if fused else ""}
    {st(0) if not fused else ""}
    s_cmp_ge_u32 s2, {NBLK}
    s_cbranch_scc1 mn_end
    s_load_dwordx2 s[54:55], s[0:1], 80
    s_load_dwordx2 s[50:51], s[0:1], 0
    {"s_load_dwordx2 s[60:61], s[0:1], 72" if fused else ""}
    v_lshrrev_b32 v{u1}, 6, v0
    s_and_b32 s48, s2, 7
    v_readfirstlane_b32 s{sWv}, v{u1}
    s_lshr_b32 s47, s2, 3
    s_lshl_b32 s22, s48, 5
    s_add_u32 s22, s22, s47
    s_lshl_b32 s22, s22, 13
    s_add_u32 s22, s22, {WS_C}
    s_mov_b32 s{sLOW+2}, {WS_LOW}
    s_mov_b32 s{sLOW+3}, 0x20000
    s_and_b32 s{sQ}, s{sWv}, 3
    s_movk_i32 s{sLim}, {LPR*NR}
    s_mov_b32 s{sDone}, 0
    s_cmp_ge_u32 s{sWv}, 8
    s_cbranch_scc1 gm_main
    {TOFF}
    s_waitcnt lgkmcnt(0)
    s_mov_b32 s{sLOW}, s54
    s_and_b32 s{sLOW+1}, s55, 0xffff
    {LOADS if not fused else ""}
    v_mov_b32 v{vWd+4}, 0
    s_lshr_b32 s{sG}, s{sWv}, 2
    s_lshl_b32 s53, s{sQ}, 7
    s_add_u32 s{sX}, s50, s53
    s_addc_u32 s{sX+1}, s51, 0
    s_and_b32 s{sX+1}, s{sX+1}, 0xffff
    s_or_b32 s{sX+1}, s{sX+1}, 0x08000000
    s_movk_i32 s{sX+2}, {N}
    s_mov_b32 s{sX+3}, 0x20000
    s_mul_i32 s{sM}, s{sWv}, {QSTR}
    s_add_u32 s{sM}, s{sM}, {RB}
    v_lshl_add_u32 v{vAW}, v{vLane}, 3, s{sM}
    s_add_u32 s{sM}, s{sM}, {16*SSTR}
    """)
    for r in range(1, R): a(f"s_add_u32 s{sM+r}, s{sM}, {1024*r}")
    a(f"""
    v_and_b32 v{u0}, 3, v0
    v_bfe_u32 v{u1}, v0, 2, 2
    v_bfe_u32 v{u2}, v0, 4, 1
    v_bfe_u32 v{vC1}, v0, 5, 1
    v_lshlrev_b32 v{vTR}, 3, v{u0}
    v_lshl_add_u32 v{vTR}, v{u2}, 5, v{vTR}
    v_lshl_add_u32 v{vTR}, v{u1}, 6, v{vTR}
    v_lshl_add_u32 v{vTR}, v{vC1}, 8, v{vTR}
    v_add_u32 v{vTR}, s{sM}, v{vTR}
    v_lshlrev_b32 v{vX+1}, 4, v{u0}
    v_lshl_add_u32 v{vX+1}, v{u2}, 6, v{vX+1}
    v_lshl_add_u32 v{vX+1}, v{u1}, 9, v{vX+1}
    v_mov_b32 v{vX+3}, v{vX+1}
    v_bfe_u32 v{u0}, v0, 2, 1
    v_lshlrev_b32 v{vKc}, 4, v{vC1}
    v_lshl_or_b32 v{vKc}, v{u0}, 18, v{vKc}
    """)
    CONST = f"""
    v_mov_b32 v{vOne}, 1
    v_lshlrev_b32 v{vL4}, 2, v{vLane}
    v_bfe_u32 v{vE}, v0, 5, 1
    v_bfe_u32 v{vEAa}, v0, 3, 2
    v_and_b32 v{vJ}, 3, v0
    v_lshl_add_u32 v{vEAa}, v{vEAa}, 2, v{vJ}
    v_mul_u32_u24 v{vPadv}, {PAD}, v{vE}
    v_lshrrev_b32 v{vSHa}, 2, v{vLane}
    v_lshl_add_u32 v{vSHa}, v{vJ}, 4, v{vSHa}
    v_mov_b32 v{vDum}, 0x3fff
    s_lshl_b32 s37, s{sWv}, 2
    v_mov_b32 v{vB2}, s37
    s_sub_u32 s36, s{sWv}, 1
"""
    a(CONST)
    for i in range(0, 80, 2): a(f"v_mov_b64 v[{vAcc+i}:{vAcc+i+1}], 0")
    a(f"""
    {OWNA}
    {OWNL}
    s_cmp_ge_u32 s2, {NCHUNK}
    s_waitcnt vmcnt(0)
    s_cbranch_scc1 mn_noarr
    v_mov_b32 v{u0}, 0
    v_mov_b32 v{u1}, 1
    s_mov_b64 exec, 1
    ds_add_u32 v{u0}, v{u1} offset:{L_ARR}
    s_mov_b64 exec, -1
mn_noarr:
    {"s_memrealtime s[68:69]" if stamps == 5 else ""}
    s_cmp_lg_u32 s{sWv}, 7
    s_cbranch_scc1 mn_sp1
    """)
    mpoll(1, u0, u1, u2)
    a(f"""
    v_mov_b32 v{u0}, 0
    ds_write_b32 v{u0}, v{vOne} offset:{L_GO1}
mn_sp1x:
    {"s_memrealtime s[72:73]" if stamps == 5 else ""}
    {CLD}
    s_mov_b32 s52, 0x100000
    s_waitcnt vmcnt(0)
    {st(1)}
    {HDR}
    v_cmp_le_u32 vcc, s52, v{vTt_}
    s_cbranch_vccnz mn_w5
mn_count:
    """)
    def rounds(tag, body):
        for r in range(NR):
            a(f"v_cmpx_gt_i32 vcc, 0, v{vWd+r}")
            a(f"s_cbranch_execz mn_{tag}_done")
            body(r)
        a(f"mn_{tag}_done:")
        a("s_mov_b64 exec, -1")
    def cnt(r):
        a(f"v_lshrrev_b32 v{vK+r}, 23, v{vWd+r}")
        a(f"v_and_b32 v{vK+r}, 0xfc, v{vK+r}")
        a(f"ds_add_rtn_u32 v{vRk+r}, v{vK+r}, v{vOne}")
    rounds("cn", cnt)
    def clampn(dst, src):
        a(f"v_lshrrev_b32 v{dst}, 16, v{src}")
        a(f"v_subrev_u32 v{dst}, s{sDone}, v{dst}")
        a(f"v_med3_i32 v{dst}, v{dst}, 0, s{sLim}")
    clampn(vN, vTt_)
    a(f"v_mov_b32 v{vNs}, v{vN}")
    fl_ = [f"v_mov_b32 v{vC0}, 0", f"s_lshl_b32 s52, s{sG}, 5", f"s_add_u32 s53, s52, 31", "s_movk_i32 s48, 0x3fff"] + ["s_nop 0"]*4
    for op in SCAN6[2:]:
        a(fl_.pop(0)); a(fl_.pop(0))
        a(f"v_add_u32_dpp v{vNs}, v{vNs}, v{vNs} {op} bank_mask:0xf")
    a(f"""
    s_brev_b64 exec, 1
    ds_write_b32 v{vB2}, v{vNs} offset:{L_TOT}
    s_mov_b64 exec, -1
    v_sub_u32 v{vRi}, v{vNs}, v{vN}
    s_waitcnt lgkmcnt(0)
    s_barrier
    {st(3)}
    ds_read_b32 v{u0}, v{vL4} offset:{L_TOT}
    ds_read_b32 v{vC1}, v{vL4} offset:{L_CNT}
    ds_read_b32 v{vC0}, v{vC0} offset:{L_MORE}
    s_waitcnt lgkmcnt(2)
    v_add_u32_dpp v{u0}, v{u0}, v{u0} row_shr:1 row_mask:0xf bank_mask:0xf
    s_waitcnt lgkmcnt(1)
    v_mov_b32 v{vC2}, v{vC1}
    v_add_u32_dpp v{u0}, v{u0}, v{u0} row_shr:2 row_mask:0xf bank_mask:0xf
    v_sub_u32 v{vC1}, v{vPadv}, v{vC1}
    v_add_u32 v{vRi}, v{vRi}, v{vJ}
    v_add_u32_dpp v{u0}, v{u0}, v{u0} row_shr:4 row_mask:0xf bank_mask:0xf
    s_cmp_eq_u32 s{sWv}, 0
    v_readlane_b32 s49, v{u0}, s36
    s_cmov_b32 s49, 0
    s_add_u32 s49, s49, {RI0}
    """)
    fill = [f"v_add_u32 v{vRi}, s49, v{vRi}", f"v_lshlrev_b32 v{vRi}, 16, v{vRi}"]
    for r in range(NR):
        fill += [f"v_and_or_b32 v{vG+r}, v{vWd+r}, s48, v{vRi}"] + ([f"v_add_u32 v{vRi}, {LPR<<16}, v{vRi}"] if r < NR-1 else [])
    for i, op in enumerate(SCAN6):
        a(f"v_add_u32_dpp v{vC2}, v{vC2}, v{vC2} {op} bank_mask:0xf")
        if i < 5: a(fill.pop(0)); a(fill.pop(0))
    a(f"""
    v_add_u32 v{vC1}, v{vC1}, v{vC2}
    v_add_u32 v{vC2}, v{vC2}, v{vPadv}
    """)
    for r in range(NR):
        a(f"ds_bpermute_b32 v{vK+r}, v{vK+r}, v{vC1}")
    for o in fill: a(o)
    for r in range(NR):
        a(f"v_bfe_u32 v{u1}, v{vWd+r}, 14, 5")
        a(f"v_lshl_or_b32 v{vG+r}, v{u1}, 26, v{vG+r}")
    a(f"""
    v_readlane_b32 s{sTot}, v{vC2}, 63
    v_readlane_b32 s{sEnd}, v{vC2}, s53
    v_readlane_b32 s{sStart}, v{vC1}, s52
    s_cmp_gt_u32 s{sTot}, {CAP+PAD}
    s_cbranch_scc1 mn_ovf
    v_add_lshl_u32 v{u0}, s{sEnd}, v{vLane}, 2
    s_mov_b32 exec_lo, {(1<<PAD)-1}
    s_mov_b32 exec_hi, 0
    ds_write_b32 v{u0}, v{vDum} offset:{L_LIST}
    s_mov_b64 exec, -1
    v_add_lshl_u32 v{vE}, s{sStart}, v{vE}, 2
    v_add_lshl_u32 v{vEAa}, s{sStart}, v{vEAa}, 2
    v_add_lshl_u32 v{vSHa}, s{sStart}, v{vSHa}, 2
    s_waitcnt lgkmcnt(1)
    v_readfirstlane_b32 s{sMore}, v{vC0}
    """)
    def w2(r):
        a(f"v_add_lshl_u32 v{vK+r}, v{vK+r}, v{vRk+r}, 2")
        a(f"ds_write_b32 v{vK+r}, v{vG+r} offset:{L_LIST}")
    rounds("w2", w2)
    def ea_adr():
        a(f"v_and_b32 v{vSa}, 0x3ff, v{vSa}")
        a(f"v_mad_u32_u24 v{vSa}, v{vSa}, 48, v{vKc}")
        a(f"v_xor_b32 v{vSd}, 0x40000, v{vSa}")
    def ea_rd():
        a(f"ds_read_b128 v[{vEA1}:{vEA1+3}], v{vSa} offset:{L_ZERO}")
        a(f"ds_read_b128 v[{vEA2}:{vEA2+3}], v{vSd} offset:{L_ZERO}")
    def sh_adr():
        a(f"v_lshrrev_b32 v{vSh+3}, 8, v{vSh}")
        a(f"v_and_b32 v{vSh}, 0x3ff, v{vSh}")
        a(f"v_mul_u32_u24 v{vSh}, 48, v{vSh}")
    def sh_rd(): a(f"ds_read_b64 v[{vSh}:{vSh+1}], v{vSh} offset:{L_ZERO+32}")
    def mk_sl():
        a(f"v_and_b32 v{vSh+3}, 0x7c, v{vSh+3}")
        a(f"v_or_b32 v{vSh+3}, 0xc000, v{vSh+3}")
        a(f"v_lshlrev_b32 v{vSh+2}, 16, v{vSh+3}")
    def mk_sl2():
        a(f"v_or_b32_dpp v{vSl}, v{vSh+2}, v{vSh+3} row_shl:4 row_mask:0xf bank_mask:0xf bound_ctrl:0")
    def a_mfma():
        for u in range(4):
            a(f"v_mfma_f32_4x4x4_16b_bf16 v[{vD+4*u}:{vD+4*u+3}], v[{vSh}:{vSh+1}], v[{vCG+2*u}:{vCG+2*u+1}], 0")
    def a_cvt():
        for h in range(2):
            for i in range(3):
                a(f"v_cvt_pk_bf16_f32 v{vAop+2*i+h}, v{vD+8*h+i}, v{vD+8*h+4+i}")
    def rw_mfma():
        a(f"v_mfma_f32_32x32x16_bf16 v[{vRW}:{vRW+15}], v[{vEA1}:{vEA1+3}], v[{vW1}:{vW1+3}], 0")
        a(f"v_mfma_f32_32x32x16_bf16 v[{vRW}:{vRW+15}], v[{vEA2}:{vEA2+3}], v[{vW2}:{vW2+3}], v[{vRW}:{vRW+15}]")
    def trreads(slot, h):
        for j in range(2):
            a(f"ds_read_b64_tr_b16 v[{vB+4*h+2*j}:{vB+4*h+2*j+1}], v{vTR} offset:{slot*1024+j*512}")
    FLI = f"""s_cselect_b64 vcc, -1, 0
    s_getpc_b64 s[60:61]
mn_pc:
    s_add_u32 s60, s60, mn_fl0-mn_pc
    s_addc_u32 s61, s61, 0
    s_mul_i32 s62, s{sG}, 7
    s_add_u32 s62, s62, 1""" if fl else ""
    assert steer or not fl
    vS0 = vB
    def XD(j): return f"buffer_load_dwordx4 v[{vX+2*j}:{vX+2*j+1}], s[{sX}:{sX+3}], 0 idxen offen{xld} lds"
    a(f"""
    s_mov_b32 m0, s{sM}
    s_sub_u32 s{sStart}, s{sStart}, 3
    s_sub_u32 s{sP}, s{sEnd}, s{sStart}
    s_lshr_b32 s{sP}, s{sP}, 2
    s_waitcnt lgkmcnt(0)
    s_barrier
    {st(4)}
    ds_read_u16 v{vX}, v{vE} offset:{L_LIST}
    ds_read_u16 v{vX+2}, v{vE} offset:{L_LIST+8}
    ds_read_u16 v{vSh}, v{vSHa} offset:{L_LIST+2}
    ds_read_u16 v{vSa}, v{vEAa} offset:{L_LIST+2}
    """)
    for r in range(2, R+2): a(f"ds_read_u16 v{vS0+r}, v{vE} offset:{L_LIST+8*r}")
    a(f"""
    s_sub_u32 s53, s53, 4
    v_readlane_b32 s{sC}, v{vC2}, s53
    s_add_u32 s53, s53, 1
    v_readlane_b32 s{sC+1}, v{vC2}, s53
    s_add_u32 s53, s53, 1
    v_readlane_b32 s{sC+2}, v{vC2}, s53
    s_add_u32 s53, s53, 1
    v_readlane_b32 s{sC+3}, v{vC2}, s53
    s_waitcnt lgkmcnt({R+2})
    """)
    a(XD(0)); a(f"s_mov_b32 m0, s{sM+1}"); a(f"s_waitcnt lgkmcnt({R})"); a(XD(1))
    sh_adr(); ea_adr()
    def xrest(r0, r1):
        for r in range(r0, r1):
            a(f"s_mov_b32 m0, s{sM+r}")
            a(f"v_mov_b32 v{vX}, v{vS0+r}")
            a(XD(0))
    if xe > 2: a("s_waitcnt lgkmcnt(0)")
    xrest(2, xe)
    if prio: a(f"s_setprio {prio}")
    a(f"s_waitcnt vmcnt({xe}) lgkmcnt(0)")
    a("s_barrier")
    a(st(2))
    sh_rd(); ea_rd()
    xrest(xe, R)
    a(f"""
    v_mov_b32 v{vX}, v{vS0+R}
    v_mov_b32 v{vX+2}, v{vS0+R+1}
    s_waitcnt vmcnt({R-2})
    """)
    trreads(0,0); trreads(1,1)
    a("s_waitcnt lgkmcnt(6)")
    a_mfma()
    if steer:
        a(f"""
    v_min_u32 v0, 1, v{vLane}
    v_lshlrev_b32 v0, 18, v0
    v_lshl_add_u32 v0, s{sQ}, 2, v0
    s_lshl_b32 s52, s{sG}, 1
    s_sub_i32 s52, 1, s52
    s_mul_i32 s53, s52, s{sP}
    s_add_i32 s53, s53, {soff}
    v_mov_b32 v{vSl}, s53
    """)
    mk_sl()
    a(f"s_waitcnt lgkmcnt(4)")
    rw_mfma()
    a(f"s_mov_b32 m0, s{sM}")
    a("s_waitcnt lgkmcnt(0)")
    a(XD(0))
    a(f"s_mov_b32 m0, s{sM+1}")
    if steer: a(f"ds_add_u32 v0, v{vSl} offset:{L_DIFF}")
    else: a("s_nop 0")
    a(XD(1))
    mk_sl2()
    a_cvt()
    for k in range(4): a(f"s_sub_u32 s{sC+k}, s{sC+k}, s{sStart}"); a(f"s_lshr_b32 s{sC+k}, s{sC+k}, 2")
    a(f"""
    s_sub_u32 s{sC+4}, s{sP}, s{sC+3}
    s_sub_u32 s{sC+3}, s{sC+3}, s{sC+2}
    s_sub_u32 s{sC+2}, s{sC+2}, s{sC+1}
    s_sub_u32 s{sC+1}, s{sC+1}, s{sC}
    s_cmp_lg_u32 s{sMore}, 0
    s_cselect_b32 s{sLeft}, s{sP}, s{sC}
    {FLI}
    s_mov_b32 s{sK}, 0
    s_mov_b32 s{sOR}, 0
    s_mov_b64 s[46:47], -1
    s_sub_i32 s{sRem}, s{sP}, {1+R//2}
    s_max_i32 s{sRem}, s{sRem}, 0
    s_mul_i32 s30, s52, -4
    s_lshl_b32 s26, s{sG}, 31
    s_set_gpr_idx_on s{sM}, gpr_idx(SRC2,DST)
    {st(5)}
    s_sub_u32 s{sLeft}, s{sLeft}, 1
    s_cbranch_scc1 mn_st12
mn_st12_back:
    """)
    if stamps == 3: a(f"s_mov_b32 s{sT+6}, 0")
    a("mn_loop:")
    for d in range(12):
        b = d >> 2; k0 = 4*(d & 3)
        for j in range(4):
            a(f"v_mfma_f32_4x4x4_16b_bf16 v[{vD+4*j}:{vD+4*j+3}], v[{vAop+2*b}:{vAop+2*b+1}], v[{vB+2*j}:{vB+2*j+1}], 0 cbsz:4 abid:{k0+j}")
        s0 = (2*d+2) % R; s1 = (2*d+3) % R
        a(f"ds_read_u16 v{vX}, v{vE} offset:{L_LIST+8*(2*d+2+R)}")
        a(f"ds_read_u16 v{vX+2}, v{vE} offset:{L_LIST+8*(2*d+3+R)}")
        for j in range(2): a(f"v_readlane_b32 s{sA+j}, v{vSl}, {4*(k0+2*j)+b}")
        if steer and (d & 3) == 3:
            a(f"v_mov_b32 v{vSd}, s30")
            a(f"ds_add_rtn_u32 v{vSd}, v0, v{vSd} offset:{L_DIFF}")
        if (d & 3) == 1: a(f"ds_read_u16 v{vSa}, v{vEAa} offset:{L_LIST+2+64*(b+1)}")
        if (d & 3) == 2: ea_adr(); ea_rd()
        if d == 8: a(f"ds_read_u16 v{vSh}, v{vSHa} offset:{L_LIST+2+48*4}")
        if d == 9: sh_adr(); sh_rd()
        a(f"s_waitcnt vmcnt({R-1})"); trreads(s0, 0)
        a(f"s_waitcnt vmcnt({R-2})"); trreads(s1, 1)
        a(f"s_sub_u32 s{sRem}, s{sRem}, 1")
        a(f"s_cmov_b32 s{sOR}, 0x30000" if not ez else "s_cmov_b64 s[46:47], 0")
        for j in range(4):
            a(f"s_mov_b32 m0, s{sA+j//2}" if j%2 == 0 else f"s_lshr_b32 m0, s{sA+j//2}, 16")
            for w in range(4):
                if 'f' not in exp: a(f"v_fmac_f32 v{vAcc+w}, v{vD+4*j+w}, v{vRW+k0+j}")
        a(f"s_or_b32 m0, s{sM+s0}, s{sOR}")
        if d == 11: a_mfma()
        if (d & 3) == 3: rw_mfma()
        if ez: a("s_mov_b64 exec, s[46:47]")
        a("s_waitcnt lgkmcnt(2)")
        a(XD(0))
        a(f"s_or_b32 m0, s{sM+s1}, s{sOR}")
        a("s_waitcnt lgkmcnt(0)")
        a(XD(1))
        if ez: a("s_mov_b64 exec, -1")
        if d == 10: mk_sl()
        if d == 11:
            a_cvt()
            mk_sl2()
            for r in (vE, vEAa, vSHa): a(f"v_add_u32 v{r}, {48*4}, v{r}")
        if steer and (d & 3) == 3:
            a(f"v_readfirstlane_b32 s27, v{vSd}")
            a(f"s_setprio {prio}")
            a(f"s_xor_b32 s27, s27, s26")
            a(f"s_cmp_ge_i32 s27, 0")
            a(f"s_cbranch_scc1 mn_pr{d}")
            a(f"s_setprio {prio-1}")
            a(f"mn_pr{d}:")
        a(f"s_sub_u32 s{sLeft}, s{sLeft}, 1")
        a(f"s_cbranch_scc1 mn_st{d}")
        a(f"mn_st{d}_back:")
    if stamps == 3:
        a(f"s_memrealtime s[62:63]\ns_waitcnt lgkmcnt(0)")
        for i in range(6): a(f"s_cmp_eq_u32 s{sT+6}, {i}\ns_cmov_b32 s{90+i}, s62")
        a(f"s_add_u32 s{sT+6}, s{sT+6}, 1")
    a("s_branch mn_loop")
    if fl:
        for d in range(13):
            a(f"mn_st{d}:")
            a(f"s_cbranch_vccnz mn_next")
            a(f"s_swappc_b64 s[{sRet}:{sRet+1}], s[60:61]")
            a(f"s_branch mn_st{d}_back")
        for k in range(5):
            a(f"mn_fl{k}:")
            if stamps == 4 and k < 4: a(f"s_memrealtime s[{sT+2+2*k}:{sT+3+2*k}]")
            if k == 4:
                a(st(6))
                a(f"s_cmp_ge_u32 s{sP}, {R//2+1}\ns_cbranch_scc1 mn_fl4b\ns_waitcnt vmcnt(0)\nmn_fl4b:")
            for j in range(4*k, 4*k+4):
                a(f"v_cvt_pk_bf16_f32 v{vAcc+4*j}, v{vAcc+4*j}, v{vAcc+4*j+1}")
                a(f"v_cvt_pk_bf16_f32 v{vAcc+4*j+1}, v{vAcc+4*j+2}, v{vAcc+4*j+3}")
                if j % 2: a(f"ds_write2_b64 v{vAW}, v[{vAcc+4*j-4}:{vAcc+4*j-3}], v[{vAcc+4*j}:{vAcc+4*j+1}] offset0:{(j%4-1)*SSTR//8} offset1:{(j%4)*SSTR//8}")
            z = vAcc+16*k+2
            a(f"""
    v_mov_b32 v{z}, s62
    v_and_b32 v{z+1}, 0x40000, v0
    ds_add_u32 v{z+1}, v{z} offset:{L_DONE}
    """)
            if k < 4:
                a(f"""
    v_add_u32 v{vAW}, {4*SSTR}, v{vAW}
    s_lshl_b32 s62, s62, 6
    s_add_u32 s60, s60, mn_fl{k+1}-mn_fl{k}
    s_addc_u32 s61, s61, 0
    s_sub_u32 s{sLeft}, s{sC+k+1}, 1
    s_cbranch_scc1 mn_fl{k+1}
    s_setpc_b64 s[{sRet}:{sRet+1}]
    """)
    else:
        for d in range(13):
            a(f"mn_st{d}:")
            a(f"s_cmp_lg_u32 s{sMore}, 0")
            a(f"s_cbranch_scc1 mn_next")
            a(f"s_call_b64 s[{sRet}:{sRet+1}], mn_flush")
            a(f"s_branch mn_st{d}_back")
        a("mn_flush:")
        for k in (4,3,2,1): a(f"s_cmp_eq_u32 s{sK}, {k}\ns_cbranch_scc1 mn_fl{k}")
        for k in range(5):
            a(f"mn_fl{k}:")
            if stamps == 4 and k < 4: a(f"s_memrealtime s[{sT+2+2*k}:{sT+3+2*k}]")
            if k == 4:
                a(st(6))
                a(f"s_cmp_ge_u32 s{sP}, {R//2+1}\ns_cbranch_scc1 mn_fl4b\ns_waitcnt vmcnt(0)\nmn_fl4b:")
            for j in range(4*k, 4*k+4):
                a(f"v_cvt_pk_bf16_f32 v{vAcc+4*j}, v{vAcc+4*j}, v{vAcc+4*j+1}")
                a(f"v_cvt_pk_bf16_f32 v{vAcc+4*j+1}, v{vAcc+4*j+2}, v{vAcc+4*j+3}")
                a(f"ds_write_b64 v{vAW}, v[{vAcc+4*j}:{vAcc+4*j+1}] offset:{SSTR*j}")
            z = vAcc+16*k+2
            a(f"""
    s_mul_i32 s52, s{sG}, 3
    s_lshl_b32 s52, {1<<(6*k)}, s52
    v_mov_b32 v{z}, s52
    v_mov_b32 v{z+1}, 0
    s_mov_b64 exec, 1
    ds_add_u32 v{z+1}, v{z} offset:{L_DONE}
    s_mov_b64 exec, -1
    """)
            if k < 4:
                a(f"""
    s_add_u32 s{sK}, s{sK}, 1
    s_sub_u32 s{sLeft}, s{sC+k+1}, 1
    s_cbranch_scc1 mn_fl{k+1}
    s_setpc_b64 s[{sRet}:{sRet+1}]
    """)
    a(f"""
    s_waitcnt vmcnt(0) lgkmcnt(0)
    {st(7)}
    {"s_branch mn_fin" if stamps else ""}
mn_end:
    s_endpgm
    """)
    vAa=0; vOut=1; vTt=2; vO=4; vA=12; vC=24; vW=40
    sTodo=36; sO=37; sOb=38; sAb=39; sOp=32; sOn=33; sNx=34; sWo=40; sN0=41
    AH=2; KS=8
    gL=3; gW=2; gT=4; gT2=6; gN=8; gNs=9; gB=10; gA=11; gR=12; gCb=13; gD=14; gM=15; gTa=16; gP=17; gX=18
    EP1 = f"""ds_read_b32 v29, v{gP} offset:456
    s_and_b32 s62, s2, {smb-1}
    s_lshl_b32 s62, s62, 7
    s_add_u32 s62, s62, {WS_MB}
    v_mov_b32 v28, s62
    global_load_dword v27, v28, s[54:55] sc1""" if ep else ""
    def wl(f0, f1, trickle):
        for f in range(f0, f1):
            if 'w' in exp: continue
            if f % 4 == 0 or f == f0: a(f"s_add_u32 s52, s{sWo}, {(f//4)*4096}")
            a(f"buffer_load_dwordx4 v[{vW+4*f}:{vW+4*f+3}], v{gW}, {LO}, s52 offen offset:{(f%4)*1024}{wld}")
            if trickle and f-f0 >= wd: a(f"s_waitcnt vmcnt({wd if f >= wn else wd+1})")
    a(f"""
gm_main:
    s_load_dwordx2 s[56:57], s[0:1], 64
    {"s_load_dwordx2 s[26:27], s[0:1], 56" if own else ""}
    v_and_b32 v{gL}, 63, v0
    v_bfe_u32 v{gR}, v0, 1, 7
    v_and_b32 v{gA}, 15, v{gR}
    v_lshrrev_b32 v{gB}, 4, v{gR}
    v_lshl_or_b32 v{gA}, v{gA}, 3, v{gB}
    v_cmp_gt_u32 vcc, {NCHUNK}, v{gA}
    v_mul_u32_u24 v{gCb}, {CH_STRIDE}, v{gA}
    v_bfrev_b32 v{gB}, 2
    v_lshlrev_b32 v{gR}, 6, v{gR}
    v_cndmask_b32 v{gR}, v{gB}, v{gR}, vcc
    v_lshlrev_b32 v{gW}, 4, v{gL}
    s_lshl_b32 s{sWo}, s{sQ}, 15
    s_add_u32 s{sWo}, s{sWo}, {WS_WT}
    s_waitcnt lgkmcnt(0)
    s_mov_b32 s{sLOW}, s54
    s_and_b32 s{sLOW+1}, s55, 0xffff
    """)
    def g_poll():
        a(f"""
gm_sp1:
    v_mov_b32 v{gA}, 0
    ds_read_b32 v{gA}, v{gA} offset:{L_GO1}
    s_waitcnt lgkmcnt(0)
    v_readfirstlane_b32 s62, v{gA}
    s_cmp_ge_u32 s62, 1
    s_cbranch_scc1 gm_sp1x
    s_sleep 1
    s_branch gm_sp1
gm_sp1x:
    buffer_load_dword v{gT}, v{gR}, {LO}, s22 offen offset:60{rld}
    """)
    def g_setup():
        a(f"""
    s_mul_i32 s{sN0}, s2, 625
    s_add_u32 s52, s{sN0}, {625+15}
    s_add_u32 s{sN0}, s{sN0}, 15
    s_lshr_b32 s{sN0}, s{sN0}, 4
    s_lshr_b32 s52, s52, 4
    s_mov_b32 s{sOUT}, s56
    s_and_b32 s{sOUT+1}, s57, 0xffff
    s_lshl_b32 s{sOUT+2}, s52, 11
    s_mov_b32 s{sOUT+3}, 0x20000
    s_mul_i32 s42, s{sQ}, {QSTR}
    s_add_u32 s42, s42, {RB}
    s_lshl_b32 s43, s{sQ}, 1
    s_sub_u32 s43, s43, 1
    v_lshlrev_b32 v{gT2}, 2, v{gL}
    """)
        for i in range(3):
            a(f"v_add_u32 v{gA}, {64*i}, v{gL}")
            a(f"v_mul_u32_u24 v{gB}, 21846, v{gA}")
            a(f"v_lshrrev_b32 v{gB}, 16, v{gB}")
            a(f"v_lshl_add_u32 v{34+i}, v{gB}, 2, s42")
            a(f"v_mad_i32_i24 v{gB}, v{gB}, -3, v{gA}")
            a(f"v_lshlrev_b32 v{30+i}, 4, v{gB}")
    if own:
        a(f"""
    v_lshrrev_b32 v{gA}, 4, v{gL}
    v_lshlrev_b32 v{gA}, 11, v{gA}
    v_and_b32 v{gB}, 7, v{gL}
    v_lshl_add_u32 v{gA}, v{gB}, 4, v{gA}
    v_and_b32 v{gB}, 8, v{gL}
    v_lshlrev_b32 v{gB}, 10, v{gB}
    s_lshl_b32 s52, s{sQ}, 7
    s_add_u32 s52, s52, {7*16384}
    v_add3_u32 v{gA}, v{gA}, v{gB}, s52
    s_mov_b32 s44, 0x05040100
    s_mov_b32 s45, 0x07060302
    """)
        def wraw(sx):
            for t in range(4):
                r = vW+16*(sx-1)+4*t
                a(f"global_load_dwordx4 v[{r}:{r+3}], v5, s[26:27] offset:{t*512}")
            if sx: a(f"v_subrev_u32 v5, 0x4000, v5")
        def wperm(sx):
            b = vW+16*(sx-1); o = vW+16*sx
            pairs = [(b+4*t+d_, b+4*t+2+d_) for t in range(4) for d_ in range(2)]
            for i, (p, q_) in enumerate(pairs): a(f"v_mov_b32_dpp v{o+i}, v{q_} row_ror:8 row_mask:0xf bank_mask:0xf")
            for p, q_ in pairs: a(f"v_mov_b32_dpp v{q_}, v{p} row_ror:8 row_mask:0xf bank_mask:0x3")
            for i, (p, q_) in enumerate(pairs): a(f"v_mov_b32_dpp v{p}, v{o+i} quad_perm:[0,1,2,3] row_mask:0xf bank_mask:0xc")
            row = lambda j, d_: b+4*(j&3)+2*(j>>2)+d_
            for jp in range(4):
                for i in range(4):
                    a(f"v_perm_b32 v{o+4*jp+i}, v{row(2*i+1, jp>>1)}, v{row(2*i, jp>>1)}, s{44+(jp&1)}")
        def wbuild(hi, lo, LA):
            for sx in range(hi, max(hi-LA, lo-1), -1): wraw(sx)
            for sx in range(hi, lo-1, -1):
                a(f"s_waitcnt vmcnt({4*min(LA-1, sx-lo)})")
                if sx-LA >= lo: wraw(sx-LA)
                wperm(sx)
        pk = (62) | (61 << 8)
        a(f"""
    v_mov_b32 v5, v{gA}
    s_cmp_ge_u32 s2, {NCHUNK}
    s_cbranch_scc1 gm_wgo
    s_cmp_ge_u32 s{sWv}, 10
    s_cbranch_scc1 gm_wsp
    s_cmp_ge_u32 s2, {NCHUNK}
    s_waitcnt vmcnt(0)
    s_cbranch_scc1 gm_wsp
    v_mov_b32 v{gA}, 0
    v_mov_b32 v{gB}, 1
    s_mov_b64 exec, 1
    ds_add_u32 v{gA}, v{gB} offset:{L_ARR}
    s_mov_b64 exec, -1
gm_dummy:
gm_wsp:
    v_mov_b32 v{gA}, 0
    ds_read_b32 v{gA}, v{gA} offset:{L_ARR}
    s_waitcnt lgkmcnt(0)
    v_readfirstlane_b32 s62, v{gA}
    s_cmp_ge_u32 s62, 10
    s_cbranch_scc1 gm_wspx
    s_sleep 1
    s_branch gm_wsp
gm_wspx:
    s_cmp_lg_u32 s{sWv}, 10
    s_cbranch_scc1 gm_wgo
    s_and_b32 s52, s2, 1
    s_lshl_b32 s53, s52, 7
    s_add_u32 s53, s53, 64
    s_mov_b32 s62, 1
    s_atomic_add s62, s[60:61], s53 glc
    s_sub_u32 s52, 62, s52
    s_add_u32 s28, s54, {WS_MB}
    s_addc_u32 s29, s55, 0
    s_mov_b32 s53, 0x10000
    s_waitcnt lgkmcnt(0)
    {"s_memrealtime s[70:71]" if stamps == 5 else ""}
    s_cmp_lg_u32 s62, s52
    s_cbranch_scc1 gm_wgo
    """)
        for i in range(smb): a(f"s_atomic_add s53, s[28:29], {128*i}")
        a("gm_wgo:")
        if xg:
            NX = (KX+255)//256
            a(f"s_cmp_lt_u32 s2, {NCHUNK}\ns_cbranch_scc1 gm_wbin")
            for sx in range(7, -1, -1): wraw(sx)
            a(f"""
    s_and_b32 s52, s2, 127
    s_mul_i32 s52, s52, {KX*128}
    s_add_u32 s28, s50, s52
    s_addc_u32 s29, s51, 0
    s_and_b32 s29, s29, 0xffff
    s_mov_b32 s30, {KX*128}
    s_mov_b32 s31, 0x20000
    v_and_b32 v{gA}, 0xff, v0
    v_lshlrev_b32 v{gA}, 7, v{gA}
    s_mov_b32 s52, 0
    """)
            for i in range(NX):
                a(f"buffer_load_dword v1, v{gA}, s[28:31], s52 offen")
                a(f"s_add_u32 s52, s52, {256*128}")
            for sx in range(7, -1, -1):
                a(f"s_waitcnt vmcnt({4*sx+NX})")
                wperm(sx)
            a("s_branch gm_wskip\ngm_wbin:")
            if nwb: wbuild(7, 8-nwb, wla)
            a("gm_wskip:")
        else:
            if nwb: wbuild(7, 8-nwb, wla)
            if nwb < 8:
                a(f"s_cmp_lt_u32 s2, {NCHUNK}\ns_cbranch_scc1 gm_wskip")
                a(f"s_call_b64 s[{sRet}:{sRet+1}], gm_wrest") if False else None
                wbuild(7-nwb, 0, wla)
                a("gm_wskip:")
            a("s_waitcnt vmcnt(0)")
        g_setup(); g_poll()
        w0 = wa = wb = 32
    else:
        g_poll(); wl(0, w0, False); g_setup()
    a(f"s_waitcnt vmcnt({(1 if ntouch else 0)+(w0 if 'w' not in exp and not own else 0)})")
    a(st(1))
    a("gm_pass:")
    clampn(gN, gT)
    a(f"""
    v_mov_b32 v{gNs}, v{gN}
    v_and_b32 v{gR}, 1, v0
    v_and_b32 v{gD}, 0xffff, v{gT}
    """)
    fill = [f"v_add3_u32 v{gD}, v{gD}, v{gR}, s{sDone}", f"v_mad_u32_u24 v{gD}, v{gD}, {REC}, v{gCb}", f"v_sub_u32 v{gM}, v{gN}, v{gR}", "s_nop 0", "s_nop 0"]
    for i, op in enumerate(SCAN6[1:]):
        a(f"v_add_u32_dpp v{gNs}, v{gNs}, v{gNs} {op} bank_mask:0xf")
        a(fill.pop(0)); a("s_nop 0")
    a(f"""
    v_readlane_b32 s47, v{gNs}, 63
    v_sub_u32 v{gTa}, v{gNs}, v{gM}
    v_lshl_add_u32 v{gTa}, v{gTa}, 2, s42
    """)
    for r in range(LPR*NR//2):
        a(f"v_cmpx_lt_i32 vcc, {2*r}, v{gM}")
        a(f"s_cbranch_execz gm_tb_done")
        a(f"ds_write_b32 v{gTa}, v{gD} offset:{8*r}")
        if r < LPR*NR//2-1: a(f"v_add_u32 v{gD}, {2*REC}, v{gD}")
    a(f"""
gm_tb_done:
    s_mov_b64 exec, -1
    s_mul_i32 s47, s47, 3
    v_mov_b32 v{gP}, 0
    {EP1}
    {st(4)}
    s_barrier
    ds_read_b32 v{gM}, v{gT2} offset:{L_TOT}
    ds_read_b32 v{gP}, v{gP} offset:{L_MORE}
    v_mov_b32 v{gA}, v34
    v_mov_b32 v{gB}, v35
    v_mov_b32 v{gD}, v36
    s_waitcnt lgkmcnt(1)
    v_add_u32_dpp v{gM}, v{gM}, v{gM} row_shr:1 row_mask:0xf bank_mask:0xf
    s_nop 1
    v_add_u32_dpp v{gM}, v{gM}, v{gM} row_shr:2 row_mask:0xf bank_mask:0xf
    s_nop 1
    v_add_u32_dpp v{gM}, v{gM}, v{gM} row_shr:4 row_mask:0xf bank_mask:0xf
    s_waitcnt lgkmcnt(0)
    v_readfirstlane_b32 s{sMore}, v{gP}
    v_readlane_b32 s{sTot}, v{gM}, 7
    v_readlane_b32 s46, v{gM}, s43
    s_cmp_gt_u32 s{sTot}, {CAP}
    s_cbranch_scc1 gm_ovf
    s_cmp_eq_u32 s{sQ}, 0
    s_cmov_b32 s46, 0
    s_mul_i32 s46, s46, 48
    s_add_u32 m0, s46, {L_RAW}
    """)
    if fused:
        wl(w0, wa, False)
        if not rb3: a("s_barrier")
        wl(wa, wb, False)
        if ep:
            a(f"""
    s_mov_b32 s63, 0x100000
gm_ep:
    s_waitcnt vmcnt(0)
    v_sub_u32 v27, v27, v29
    v_lshrrev_b32 v27, 16, v27
    v_cmp_eq_u32 vcc, 2, v27
    s_cbranch_vccnz gm_go2
    s_and_b32 s62, s63, 31
    s_sub_u32 s63, s63, 1
    s_cmp_eq_u32 s62, 1
    s_cbranch_scc1 gm_epd
    s_sleep {psl2}
    global_load_dword v27, v28, s[54:55] sc1
    s_branch gm_ep
gm_epd:
    """)
            mpoll(2, 27, 28, 29, True, "e")
        else:
            if two or not one:
                a(f"s_cmp_lg_u32 s{sWv}, 11\ns_cbranch_scc1 gm_wait2")
                poll(2, 64, gM, gP, NCHUNK-1) if not two else (mpoll(2, gM, gP, gTa), a(f"v_mov_b32 v{gM}, 0"))
                a(f"v_mov_b32 v{gP}, 1\nds_write_b32 v{gM}, v{gP} offset:{L_GO}")
        a(f"""
gm_go2:
    {"s_memrealtime s[76:77]" if stamps == 5 else ""}
    """)
    a(f"""
gm_raw:
    """)
    tb = (gA, gB, gD)
    for i in range(9): a(f"ds_read_b32 v{gX+i}, v{tb[i%3]} offset:{256*(i//3)}")
    for i in range(9):
        a(f"v_cmpx_gt_i32 vcc, s47, v{gL}")
        a(f"s_cbranch_execz gm_raw_done")
        a(f"s_waitcnt lgkmcnt({8-i})")
        a(f"v_add_u32 v{gX+i}, v{gX+i}, v{30+i%3}")
        a(f"buffer_load_dwordx4 v{gX+i}, {LO}, 0 offen{rld} lds")
        a(f"s_add_u32 m0, m0, 1024")
        a(f"s_sub_i32 s47, s47, 64")
    for r in tb: a(f"v_add_u32 v{r}, 768, v{r}")
    a(f"""
    s_branch gm_raw
gm_raw_done:
    {st(2)}
    s_mov_b64 exec, -1
    """)
    if fused:
        if rb3: a("s_barrier")
        wl(wb, max(wb,wc), False); nyoung = max(wb,wc)-wb; wb = max(wb,wc)
    else:
        wl(w0, wa, False)
        a("s_barrier")
        wl(wa, wb, False); nyoung = wb-w0
    a(f"""
    s_waitcnt vmcnt({nyoung if 'w' not in exp else 0}) lgkmcnt(0)
    {st(3)}
    s_barrier
    s_cmp_lg_u32 s{sMore}, 0
    s_cbranch_scc1 gm_next
    {st(5)}
    {f"s_setprio {gprio}" if gprio else ""}
    """)
    if pfs and KN < XS:
        per = ((XS-KN)*16+127)//128
        per = (per+7)//8*8
        a(f"""
    s_lshr_b32 s52, s2, 3
    s_lshl2_add_u32 s52, s52, s{sQ}
    s_lshl_b32 s52, s52, 3
    s_and_b32 s53, s2, 7
    s_mul_i32 s53, s53, {XS*16}
    s_add_u32 s52, s52, s53
    s_add_u32 s52, s52, {KN*16}
    s_movk_i32 s53, {per//8}
gm_pf:
    s_min_u32 s36, s52, {N*16-8}
    s_lshl_b32 s36, s36, 7
    """)
        for j in range(8):
            for h in range(pfs): a(f"s_load_dword s37, s[50:51], s36 offset:{j*128+h*64}")
        a(f"""
    s_addk_i32 s52, 1024
    s_sub_u32 s53, s53, 1
    s_cmp_lg_u32 s53, 0
    s_cbranch_scc1 gm_pf
    s_waitcnt lgkmcnt(0)
    """)
    wl(wb, 32, True)
    if own and nwb < 8:
        a(f"s_cmp_ge_u32 s2, {NCHUNK}\ns_cbranch_scc1 gm_wdone")
        wbuild(7-nwb, 0, wlb)
        a("gm_wdone:")
    a(f"""
    v_lshrrev_b32 v{vOut}, 4, v{gL}
    v_lshlrev_b32 v{vOut}, 11, v{vOut}
    v_and_b32 v4, 7, v{gL}
    v_lshl_add_u32 v{vOut}, v4, 4, v{vOut}
    v_bfe_u32 v4, v{gL}, 3, 1
    v_lshl_add_u32 v{vOut}, v4, 9, v{vOut}
    v_and_b32 v4, 3, v{gL}
    v_lshrrev_b32 v5, 2, v{gL}
    v_mul_u32_u24 v{vAa}, {SSTR}, v4
    v_lshl_add_u32 v{vAa}, v5, 3, v{vAa}
    v_add_u32 v{vAa}, {RB}, v{vAa}
    s_lshl_b32 s{sOb}, s{sN0}, 11
    s_lshl_b32 s53, s{sQ}, 7
    s_add_u32 s{sOb}, s{sOb}, s53
    s_mov_b32 s{sTodo}, 0x24924924
    s_mov_b32 s{sAb}, 0
    s_waitcnt vmcnt(0)
    {st(6)}
gm_poll:
    v_mov_b32 v{vTt}, 0
    ds_read_b32 v{vTt}, v{vTt} offset:{L_DONE}
    s_waitcnt lgkmcnt(0)
    v_readfirstlane_b32 s52, v{vTt}
    s_and_b32 s52, s52, s{sTodo}
    s_cbranch_scc1 gm_go
    s_sleep {slp}
    s_branch gm_poll
gm_go:
    {st(7) if stamps != 4 else ""}
    """)
    dec = [f"s_ff1_i32_b32 s52, s52", f"s_bitset0_b32 s{sTodo}, s52", f"s_mul_i32 s52, s52, 11", f"s_bfe_u32 s53, s52, 0x10005", f"s_bfe_u32 s52, s52, 0x30006"]
    adr0 = [f"s_mul_i32 s35, s53, {GSTR}", f"s_mul_i32 s31, s52, {4*SSTR}", f"s_add_u32 s31, s31, s35", f"s_sub_u32 s35, s31, s{sAb}", f"v_add_u32 v{vAa}, s35, v{vAa}"]
    out0 = [f"s_mov_b32 s{sAb}, s31", f"s_mul_i32 s{sOn}, s53, 5", f"s_add_u32 s{sOn}, s{sOn}, s52", f"s_lshl_b32 s{sOn}, s{sOn}, 13", f"s_add_u32 s{sOn}, s{sOn}, s{sOb}"]
    def rd(base, s, half):
        bn = vA + 4*((base+s) % 3); s %= KS
        a(f"ds_read_b64_tr_b16 v[{bn+2*half}:{bn+2*half+1}], v{vAa} offset:{(s>>1)*QSTR+(s&1)*256+128*half}")
    for o in dec + adr0: a(o)
    for s in range(AH): rd(0,s,0); rd(0,s,1)
    for o in out0: a(o)
    a(f"s_mov_b32 s{sO}, s{sOn}")
    a(f"s_mov_b32 s{sOp}, 0x7ffffff0")
    cvlo = [f"v_cvt_pk_bf16_f32 v{vO+2*r}, v{vC+r}, v{vC+4+r}" for r in range(4)]
    cvhi = [f"v_cvt_pk_bf16_f32 v{vO+2*r+1}, v{vC+8+r}, v{vC+12+r}" for r in (1,0,3,2)]
    def fin():
        ops = []
        for h in range(2):
            O = vO + 4*h
            ops += [f"v_mov_b32_dpp v{vTt}, v{O+2} row_ror:8 row_mask:0xf bank_mask:0xf",
                    f"v_mov_b32_dpp v{vTt+1}, v{O+3} row_ror:8 row_mask:0xf bank_mask:0xf",
                    f"v_mov_b32_dpp v{O+2}, v{O} row_ror:8 row_mask:0xf bank_mask:0x3",
                    f"v_mov_b32_dpp v{O+3}, v{O+1} row_ror:8 row_mask:0xf bank_mask:0x3",
                    f"v_mov_b32_dpp v{O}, v{vTt} quad_perm:[0,1,2,3] row_mask:0xf bank_mask:0xc",
                    f"v_mov_b32_dpp v{O+1}, v{vTt+1} quad_perm:[0,1,2,3] row_mask:0xf bank_mask:0xc",
                    f"buffer_store_dwordx4 v[{O}:{O+3}], v{vOut}, s[{sOUT}:{sOUT+3}], s{sOp} offen offset:{h*1024}{ost}"]
        if 's' in exp: ops = [o if not o.startswith('buffer_store') else 's_nop 0' for o in ops]
        return ops
    a("gm_loop:")
    for base in (0, 2, 1):
        ops = fin()
        G = {(s_, j): [] for s_ in range(KS) for j in range(4)}
        for s_ in range(KS):
            G[(s_,0)].append(("rd", s_+AH, 0)); G[(s_,1)].append(("rd", s_+AH, 1))
        G[(0,0)] = [cvhi[0], cvhi[1]] + G[(0,0)]; G[(0,1)] = [cvhi[2], cvhi[3]] + G[(0,1)]
        h0, h1 = ops[:7], ops[7:]
        G[(0,2)] += h0[0:2]; G[(0,3)] += h0[2:4]; G[(1,0)] += h0[4:5]; G[(1,1)] += h0[5:6]; G[(1,2)] += h0[6:7] + h1[0:1]
        G[(1,3)] += h1[1:3]; G[(2,0)] += h1[3:4]; G[(2,1)] += h1[4:5]; G[(2,2)] += h1[5:7]
        G[(3,2)] += [f"v_mov_b32 v{vTt}, 0"]; G[(3,3)] += [f"ds_read_b32 v{vTt}, v{vTt} offset:{L_DONE}"]
        G[(4,2)] += ["s_waitcnt lgkmcnt(2)", f"v_readfirstlane_b32 s52, v{vTt}", f"s_and_b32 s52, s52, s{sTodo}"]
        G[(4,3)] += [f"s_cselect_b32 s{sNx}, 1, 0", dec[0]]
        G[(5,0)] += dec[1:3]; G[(5,1)] += dec[3:5]; G[(5,2)] += adr0[:3]; G[(5,3)] += adr0[3:]
        G[(6,2)] += out0[:3]; G[(6,3)] += out0[3:]
        G[(7,1)] += [f"s_mov_b32 s{sOp}, s{sO}", f"s_mov_b32 s{sO}, s{sOn}"]
        G[(7,2)] += [f"s_cmp_eq_u32 s{sNx}, 0", "s_nop 1"]
        if gt == 1:
            G[(7,3)] += ["s_setprio 3"]; G[(2,2)] += ["s_setprio 0"]
        if gt == 2:
            for key in list(G):
                if any(isinstance(o, str) and o.startswith("v_") for o in G[key]):
                    G[key] = ["s_setprio 3"] + G[key] + ["s_setprio 0"]
            G[(7,3)] += ["s_setprio 3"]
        for s in range(KS):
            a(f"s_waitcnt lgkmcnt({3 if s == 4 else 2})")
            b = vA + 4*((base+s) % 3)
            for j in range(4):
                w = vW + 4*(s*4+j)
                c = "0" if s == 0 else f"v[{vC+4*j}:{vC+4*j+3}]"
                if 'm' not in exp: a(f"v_mfma_f32_16x16x32_bf16 v[{vC+4*j}:{vC+4*j+3}], v[{b}:{b+3}], v[{w}:{w+3}], {c}")
                for o in G[(s,j)]:
                    if isinstance(o, tuple): rd(base, o[1], o[2])
                    else: a(o)
        if stamps == 4:
            for i in range(9): a(f"s_mov_b32 s{sT+2*i}, s{sT+2*i+2}")
            a(f"s_memrealtime s[{sT+18}:{sT+19}]")
        for o in cvlo: a(o)
        a("s_nop 0" if gt != 2 else "s_setprio 0")
        a("s_cbranch_scc1 gm_drain" if base != 1 else "s_cbranch_scc0 gm_loop")
    a("gm_drain:")
    a("s_nop 2")
    if gt: a("s_setprio 3")
    for o in cvhi: a(o)
    for o in fin(): a(o)
    a(f"""
    {"s_setprio 0" if gt else ""}
    s_cmp_lg_u32 s{sTodo}, 0
    s_cbranch_scc1 gm_poll
    {"s_branch mn_fin" if stamps else ""}
    s_endpgm
mn_sp1:
    v_mov_b32 v{u0}, 0
    ds_read_b32 v{u0}, v{u0} offset:{L_GO1}
    s_waitcnt lgkmcnt(0)
    v_readfirstlane_b32 s62, v{u0}
    s_cmp_ge_u32 s62, 1
    s_cbranch_scc1 mn_sp1x
    s_sleep 1
    s_branch mn_sp1
gm_wait2:
    v_mov_b32 v{gM}, 0
    ds_read_b32 v{gP}, v{gM} offset:{L_GO}
    s_waitcnt lgkmcnt(0)
    v_readfirstlane_b32 s62, v{gP}
    s_cmp_lg_u32 s62, 0
    s_cbranch_scc1 {"gm_go2" if fused else "gm_wait2"}
    s_sleep 1
    s_branch gm_wait2
gm_ovf:
    s_movk_i32 s{sLim}, {LPR}
    s_barrier
    s_barrier
    s_branch gm_pass
gm_next:
    s_add_u32 s{sDone}, s{sDone}, s{sLim}
    s_barrier
    s_branch gm_pass
    """)
    def gen(r):
        a(f"""
    v_add_u32 v{u0}, {LPR*r}, v{vJ}
    v_add_u32 v{u0}, s{sDone}, v{u0}
    v_lshrrev_b32 v{u1}, 16, v{vTt_}
    v_mov_b32 v{vWd+r}, 0
    v_cmpx_lt_u32 vcc, v{u0}, v{u1}
    s_cbranch_execz mn_g{gen.n}
    v_cmp_gt_u32 vcc, 15, v{u0}
    v_and_b32 v{u1}, 0xffff, v{vTt_}
    v_add_lshl_u32 v{u1}, v{u0}, v{u1}, 2
    v_add_u32 v{u1}, v{u1}, v{vCb}
    v_lshl_add_u32 v{u2}, v0, 4, s22
    v_and_or_b32 v{u2}, v{u0}, 12, v{u2}
    v_cndmask_b32 v{u1}, v{u1}, v{u2}, vcc
    buffer_load_dword v{vWd+r}, v{u1}, {LO}, 0 offen{rld}
    s_waitcnt vmcnt(0)
mn_g{gen.n}:
    s_mov_b64 exec, -1
    """)
        gen.n += 1
    gen.n = 0
    a("mn_w5:")
    if two: mpoll(2, u0, u1, u2, True)
    if fused and not one: poll(3, 64, u0, u1, NCHUNK-1)
    gen(3); gen(4)
    a(f"""
mn_more:
    s_add_u32 s52, s{sDone}, s{sLim}
    v_lshrrev_b32 v{u1}, 16, v{vTt_}
    v_cmp_lt_u32 vcc, s52, v{u1}
    s_cbranch_vccz mn_count
    v_mov_b32 v{u0}, {L_MORE}
    ds_write_b32 v{u0}, v{vOne}
    s_branch mn_count
mn_ovf:
    s_movk_i32 s{sLim}, {LPR}
    s_waitcnt vmcnt(0) lgkmcnt(0)
    s_barrier
    s_branch mn_again
mn_next:
    s_set_gpr_idx_off
    s_waitcnt vmcnt(0) lgkmcnt(0)
    s_nop 7
    s_add_u32 s{sDone}, s{sDone}, s{sLim}
    v_mbcnt_lo_u32_b32 v0, -1, 0
    v_mbcnt_hi_u32_b32 v0, -1, v0
    v_lshl_add_u32 v0, s{sWv}, 6, v0
    {TOFF}
    {CLD}
    {CONST}
    s_waitcnt vmcnt(0)
    {HDR}
mn_again:
    v_mov_b32 v{u0}, 0
    ds_write_b32 v{vL4}, v{u0} offset:{L_CNT}
    ds_write_b32 v{vL4}, v{u0} offset:{L_CNT+128}
    s_waitcnt vmcnt(0) lgkmcnt(0)
    s_barrier
    """)
    gen(0)
    for r in range(1, NR): a(f"v_mov_b32 v{vWd+r}, 0")
    a(f"s_cmp_le_u32 s{sLim}, {LPR}\ns_cbranch_scc1 mn_more")
    for r in range(1, NR): gen(r)
    a("s_branch mn_more")
    if stamps:
        a(f"""
mn_fin:
    s_set_gpr_idx_off
    {f"s_memrealtime s[{sT+16}:{sT+17}]" if stamps != 4 else ""}
    s_waitcnt vmcnt(0)
    {f"s_memrealtime s[{sT+18}:{sT+19}]" if stamps != 4 else "s_memrealtime s[88:89]"}
    s_waitcnt lgkmcnt(0)
    s_lshl_b32 s96, s2, 4
    s_add_u32 s96, s96, s{sWv}
    s_lshl_b32 s96, s96, 6
    s_add_u32 s96, s96, 0xF000000
    s_add_u32 s98, s54, s96
    s_addc_u32 s99, s55, 0
    """)
        a("v_mov_b32 v0, 0")
        if stamps == 3:
            for i in range(6): a(f"v_mov_b32 v1, s{90+i}\nglobal_store_dword v0, v1, s[98:99] offset:{40+4*i}")
        if stamps == 2: a(f"s_mov_b32 s{sT+2}, s{sP}")
        for i in range(10):
            a(f"v_mov_b32 v1, s{sT+2*i}")
            a(f"global_store_dword v0, v1, s[98:99] offset:{4*i}")
        if stamps == 4: a("v_mov_b32 v1, s88\nglobal_store_dword v0, v1, s[98:99] offset:40")
        a("s_endpgm")
    a("mn_last:\ns_endpgm")
    a.end_kernel(name, NV, 100 if stamps else 96)
    a.launch(name, NBLK, 768, 163840)
```

```python
import sys
from common import *
from k_a22 import gen_ka
from k_main22 import gen_main
a = Asm()
opts=dict(x.split('=') for x in sys.argv[2:])
def pol(k, d):
    v = opts.get(k, d)
    return '' if v in ('', '0') else ' ' + v.replace('+', ' ')
I = lambda k, d: int(opts.get(k, d))
gen_ka(a, prefetch=I('pfa',1), ld=pol('kld','0'), rst=pol('rst','sc1'), pfp=pol('pfpa','0'), KN=I('KN',448), R0=I('R0',8500), cst=pol('cst','0'), cpf=I('cpf',1), swap=I('swap',0), dly=I('dly',1), tst=pol('tst','0'), wb=I('kwb',0), fused=I('fused',1), cfirst=I('cfirst',I('fused',1)), stamps=I('stamps',0), sat=I('sat',2), one=I('one',1), mbox=I('mbox',1), nsh=I('nsh',2), own=I('own',1), smb=I('smb',16), pfb=I('pfb',1), two=1, wt=I('wt',1), L_WR=163840-15360, xg=I('xg',0), spf=I('spf',1), nb0=I('nb0',3), late=I('late',1), hlp=I('hlp',5), XR=I('XR',0), XP=I('XP',I('KN',448)))
gen_main(a, rld=pol('rld','sc1'), stamps=I('stamps',0), exp=opts.get('exp',''), ost=pol('ost','sc0+sc1'), KN=I('KNM',1250), wld=pol('wld','0'), xld=pol('xld','0'),
  prio=I('prio',2), slp=I('slp',2), R=I('R',6), wd=I('wd',1), steer=I('steer',1), soff=I('soff',0), gprio=I('gprio',0), ntouch=I('ntouch',1), pfs=I('pfs',2), wa=I('wa',0), wb=I('wb',0), w0=I('w0',0), b2=I('b2',1), xe=I('xe',4), ez=I('ez',0), b3=I('b3',99), gfirst=I('gf',0), gt=I('gt',2), fl=I('fl',0), wn=I('wn',0), fused=I('fused',1), psl=I('psl',6), wc=I('wc',0), rb3=I('rb3',1), ppol=pol('ppol','sc1'), one=I('one',1), mbox=I('mbox',1), nsh=I('nsh',2), own=I('own',1), smb=I('smb',16), nwb=I('nwb',3), wla=I('wla',4), wlb=I('wlb',1), two=1, ep=I('ep',1), psl2=I('psl2',6), xg=I('xg',0), KX=I('KN',448))
open(sys.argv[1],'w').write(a.text())
```
